```python
import torch

def _softmax(x, axis=-1):
    return torch.softmax(x, dim=axis)
def _gelu(x):
    return torch.nn.functional.gelu(x, approximate="tanh")
def _silu(x):
    return torch.nn.functional.silu(x)
def _sigmoid(x):
    return torch.sigmoid(x)
def _layernorm(x, axis=-1, eps=1e-5):
    m = x.mean(dim=axis, keepdim=True)
    v = x.var(dim=axis, keepdim=True, unbiased=False)
    return (x - m) / torch.sqrt(v + eps)
def _scatter_add(tgt, idx, src, axis=0):
    return tgt.clone().index_add_(axis, idx, src)
def _segment_sum(src, seg, n):
    out = torch.zeros((n,) + src.shape[1:], dtype=src.dtype)
    return out.index_add_(0, seg, src)
def _pad(x, pw):
    flat = tuple(v for pair in reversed(pw) for v in pair)
    return torch.nn.functional.pad(x, flat)

kernel_name = 'recurrent_scan__sliding_local_dilated__glu_gated_reglu__prompt'

def setup_inputs():

    _w = (lambda a: (lambda t: t.to(torch.bfloat16) if t.is_floating_point() else t)(torch.as_tensor(a)))
    def _A_setup():
        B, S, D = 1, 2048, 640
        return {
            "x": _w((lambda *s: torch.randn(*s, dtype=torch.bfloat16) * 0.05)(B, S, D)),
            "wqkv": _w((lambda *s: torch.randn(*s, dtype=torch.bfloat16) * 0.2)(D, 3 * D)),
            "wo": _w((lambda *s: torch.randn(*s, dtype=torch.bfloat16) * 0.2)(D, D)),
        }
    _A_in = _A_setup()

    def _B_setup():
        B, S, D, F = 1, 2048, 640, 1728
        return {
            "x": _w((lambda *s: torch.randn(*s, dtype=torch.bfloat16) * 0.05)(B, S, D)),
            "W_gate": _w((lambda *s: torch.randn(*s, dtype=torch.bfloat16) * 0.1)(D, F) * (2.0 / D) ** 0.5),
            "W_up": _w((lambda *s: torch.randn(*s, dtype=torch.bfloat16) * 0.1)(D, F) * (2.0 / D) ** 0.5),
            "W_down": _w((lambda *s: torch.randn(*s, dtype=torch.bfloat16) * 0.1)(F, D) * (1.0 / F) ** 0.5),
        }
    _B_in = _B_setup()

    return {
        "A_x": _A_in["x"],
        "A_wqkv": _A_in["wqkv"],
        "A_wo": _A_in["wo"],
        "B_x": _B_in["x"],
        "B_W_gate": _B_in["W_gate"],
        "B_W_up": _B_in["W_up"],
        "B_W_down": _B_in["W_down"],
    }

def reference(A_x, A_wqkv, A_wo, B_x, B_W_gate, B_W_up, B_W_down):
    def _A_ref(x, wqkv, wo):
        B, S, D = x.shape
        H = 32; Dh = D // H
        W, dil = 8, 2
        qkv = (lambda x, *d: x.permute(*d))((x @ wqkv).reshape(B, S, 3, H, Dh), 2, 0, 3, 1, 4)
        q, k, v = qkv[0], qkv[1], qkv[2]
        scale = Dh ** -0.5
        pos = torch.arange(S)
        off = torch.arange(W) * dil
        idx = pos[:, None] - off[None, :]
        mask = idx >= 0
        idx_c = torch.where(mask, idx, 0).reshape(-1)
        kg = k[:, :, idx_c, :].reshape(B, H, S, W, Dh)
        vg = v[:, :, idx_c, :].reshape(B, H, S, W, Dh)
        logits = torch.einsum("bhsd,bhswd->bhsw", q, kg) * scale
        logits = torch.where(mask[None, None, :, :], logits, -1e9)
        attn = _softmax(logits, axis=-1)
        o = torch.einsum("bhsw,bhswd->bhsd", attn, vg)
        return (lambda x, *d: x.permute(*d))(o, 0, 2, 1, 3).reshape(B, S, D) @ wo

    def _B_ref(x, W_gate, W_up, W_down):
        gate = torch.einsum("bsd,df->bsf", x, W_gate)
        up = torch.einsum("bsd,df->bsf", x, W_up)
        gate = gate * (lambda x, dt: x.to(dt))(gate > 0, gate.dtype)
        h = gate * up
        return torch.einsum("bsf,fd->bsd", h, W_down)

    x = A_x
    xn = _layernorm(x, axis=-1)
    s = _A_ref(xn, A_wqkv, A_wo)
    g = _silu(_B_ref(xn, B_W_gate, B_W_up, B_W_down))
    return x + s * g
```

```python
import re

TRANS = ("v_exp_f32", "v_log_f32", "v_rcp_f32", "v_rsq_f32", "v_sqrt_f32", "v_sin_f32", "v_cos_f32")
REG_RE = re.compile(r"(?<![\w.])(-|abs\()?([vas])(?:\[(\d+):(\d+)\]|(\d+))(?![\w])")


def regs_of(op):
    op = op.strip()
    out = set()
    if op in ("vcc", "vcc_lo", "vcc_hi"):
        return {"vcc"}
    if op in ("exec", "exec_lo", "exec_hi"):
        return {"exec"}
    if op == "m0":
        return {"m0"}
    m = REG_RE.search(op)
    if m:
        k = m.group(2)
        if m.group(3) is not None:
            for r in range(int(m.group(3)), int(m.group(4)) + 1):
                out.add(f"{k}{r}")
        else:
            out.add(f"{k}{m.group(5)}")
    return out


def split_ops(s):
    ops, depth, cur = [], 0, ""
    for ch in s:
        if ch in "[(":
            depth += 1
        if ch in "])":
            depth -= 1
        if ch == "," and depth == 0:
            ops.append(cur.strip())
            cur = ""
        else:
            cur += ch
    if cur.strip():
        ops.append(cur.strip())
    return ops


class Ins:
    def __init__(self, text):
        self.text = text
        t = text.split(";")[0].strip()
        self.is_label = t.endswith(":")
        self.is_dir = t.startswith(".") or t == ""
        self.mn = t.split()[0] if t else ""
        rest = t[len(self.mn):].strip()
        ops = split_ops(rest)
        mods = ""
        if ops:
            parts = ops[-1].split()
            ops[-1] = parts[0]
            mods = " ".join(parts[1:])
        self.ops, self.mods = ops, mods
        mn = self.mn
        self.R, self.W = set(), set()
        self.srcA = self.srcB = self.srcC = set()
        self.store_data = set()
        self.kind = "other"
        if self.is_label or self.is_dir:
            self.kind = "label"
            return
        ro = [regs_of(o) for o in ops]
        allr = lambda l: set().union(*l) if l else set()
        if mn.startswith("v_mfma"):
            self.kind = "mfma"
            self.W = ro[0]
            self.srcA, self.srcB, self.srcC = ro[1], ro[2], ro[3]
            self.R = allr(ro[1:])
            self.passes = 4 if "16x16x32" in mn or "16x16x16" in mn else 8
        elif mn.startswith("v_"):
            self.kind = "valu"
            self.W = set(ro[0])
            self.R = allr(ro[1:])
            if mn.startswith("v_permlane"):
                self.W = ro[0] | ro[1]
                self.R = ro[0] | ro[1]
            if mn.startswith(("v_fmac", "v_pk_fmac", "v_writelane", "v_dot2c")):
                self.R |= ro[0]
            if "_dpp" in mn or "row_" in mods or "quad_perm" in mods:
                self.R |= ro[0]
            if mn.startswith(("v_add_co", "v_sub_co", "v_addc_co", "v_subb_co", "v_mad_u64")):
                self.W = ro[0] | ro[1]
                self.R = allr(ro[2:])
            if mn.startswith("v_cmpx"):
                self.W |= {"exec"}
        elif mn.startswith(("buffer_", "global_")):
            self.kind = "vmem"
            lds = " lds" in (" " + mods)
            if mn.startswith("buffer_load") and lds:
                self.R = allr(ro) | {"m0"}
                self.ldsdma = True
            elif "_load" in mn:
                self.W = ro[0]
                self.R = allr(ro[1:])
            elif mn.startswith("buffer_"):
                self.R = allr(ro)
                if "x3" in mn or "x4" in mn:
                    self.store_data = ro[0]
                if "atomic" in mn and "sc0" in mods:
                    self.W = ro[0]
            else:
                self.R = allr(ro)
                if "x3" in mn or "x4" in mn:
                    self.store_data = ro[1]
        elif mn.startswith("ds_"):
            self.kind = "ds"
            if mn.startswith(("ds_read", "ds_bpermute", "ds_permute", "ds_swizzle")):
                self.W = ro[0]
                self.R = allr(ro[1:])
            else:
                self.R = allr(ro)
        elif mn.startswith("s_"):
            self.kind = "salu"
            if mn.startswith(("s_cmp", "s_cbranch", "s_branch", "s_waitcnt", "s_barrier", "s_nop", "s_sleep",
                              "s_endpgm", "s_setprio", "s_bitcmp")):
                self.R = allr(ro)
            else:
                self.W = ro[0] if ro else set()
                self.R = allr(ro[1:])
                if "saveexec" in mn:
                    self.W = self.W | {"exec"}
        self.is_trans = any(mn.startswith(x) for x in TRANS)
        self.is_dpp = "_dpp" in mn or "row_" in self.mods or "quad_perm" in self.mods
        self.is_perm = mn.startswith("v_permlane")
        self.is_rdlane = mn.startswith(("v_readlane", "v_readfirstlane"))
        self.opsel_dst = False

    def states(self):
        if self.kind == "label":
            return 0
        if self.mn == "s_nop":
            return int(self.ops[0], 0) + 1
        return 1


def need(p, c):
    n = 0
    vreg = lambda s: {r for r in s if r[0] in "va" and r != "vcc"}
    sreg = lambda s: {r for r in s if r[0] == "s" or r == "vcc"}
    if p.kind == "valu":
        pw_v, pw_s = vreg(p.W), sreg(p.W)
        if c.kind == "mfma" and pw_v & c.R:
            n = max(n, 2)
        if c.kind == "valu":
            if (c.is_dpp or c.is_perm) and pw_v & c.R:
                n = max(n, 2)
            if c.is_rdlane and pw_v & c.R:
                n = max(n, 1)
            if p.is_trans and pw_v & c.R:
                n = max(n, 1)
            if pw_s & c.R:
                n = max(n, 4 if c.mn.startswith(("v_readlane", "v_writelane")) else 2)
            if "exec" in p.W:
                n = max(n, 5)
        if c.kind == "vmem" and pw_s & c.R:
            n = max(n, 5)
        if c.kind == "salu" and pw_s & c.R:
            n = max(n, 1)
        if c.kind == "mfma" and "exec" in p.W:
            n = max(n, 4)
    if p.kind == "mfma":
        big = {4: 8, 8: 12}[p.passes]
        if c.kind == "mfma":
            if p.W & (c.srcA | c.srcB):
                n = max(n, big)
            if p.W & c.srcC and not (p.W == c.srcC and p.passes == c.passes):
                n = max(n, {4: 6, 8: 10}[p.passes])
            if p.W & c.W and not (p.W == c.srcC):
                n = max(n, {4: 6, 8: 10}[p.passes])
        elif c.kind in ("valu", "vmem", "ds"):
            if p.W & (c.R | c.W):
                n = max(n, big)
            if c.kind == "valu" and p.srcC & c.W:
                n = max(n, {4: 3, 8: 7}[p.passes])
    if p.kind == "vmem" and p.store_data:
        if c.kind in ("valu", "mfma") and p.store_data & c.W:
            n = max(n, 2)
        elif p.store_data & c.W:
            n = max(n, 1)
    if p.kind == "salu" and "m0" in p.W:
        if (c.kind == "vmem" and "m0" in c.R) or (c.kind == "valu" and "m0" in c.R):
            n = max(n, 1)
    return n


def hazard_pass(lines):
    out = []
    window = []
    total = 0
    n_nops = 0
    for text in lines:
        c = Ins(text)
        if c.kind == "label":
            out.append(text)
            continue
        req = 0
        for (p, end) in window:
            dist = total - end
            nd = need(p, c)
            if nd > dist:
                req = max(req, nd - dist)
        if req:
            out.append(f"s_nop {req - 1}")
            total += req
            n_nops += 1
        out.append(text)
        total += c.states()
        window.append((c, total))
        window = [(p, e) for (p, e) in window if total - e < 14]
    return out, n_nops


class Prog:
    def __init__(self):
        self.lines = []
        self.nvm = 0
        self.nds = 0
        self.vm_done = 0
        self.ds_done = 0

    def __call__(self, text):
        for l in text.strip().split("\n"):
            l = l.strip()
            if not l:
                continue
            mn = l.split()[0]
            assert not mn.startswith(("buffer_", "global_", "ds_")), "use vm()/ds(): " + l
            self.lines.append(l)

    def raw(self, text):
        self.lines.append(text)

    def vm(self, text, counted=True):
        self.lines.append(text)
        if counted:
            self.nvm += 1
        return self.nvm

    def ds(self, text):
        self.lines.append(text)
        self.nds += 1
        return self.nds

    def wait(self, vm=None, ds=None, force=False):
        parts = []
        if vm is not None and (vm > self.vm_done or force):
            n = self.nvm - vm
            assert n >= 0
            if n > 63:
                n = 63
            parts.append(f"vmcnt({n})")
            self.vm_done = max(self.vm_done, self.nvm - n)
        if ds is not None and (ds > self.ds_done or force):
            n = min(self.nds - ds, 15)
            parts.append(f"lgkmcnt({n})")
            self.ds_done = max(self.ds_done, self.nds - n)
        if parts:
            self.lines.append("s_waitcnt " + " ".join(parts))

    def wait_all_ds(self):
        self.wait(ds=self.nds)

    def wait_all_vm(self):
        self.wait(vm=self.nvm)

    def pad(self, n=15):
        self.lines.append(f"s_nop {n}")

    def text(self):
        out, n = hazard_pass(self.lines)
        self.n_nops = n
        return "\n".join(("" if l.endswith(":") else "    ") + l for l in out)


def interleave(P, mains, fillers, start=0, end=None, per=None):
    n = len(mains)
    end = n if end is None else end
    slots = [[] for _ in range(n)]
    for group in fillers:
        items, s, e = group
        if not items:
            continue
        e = min(e, n)
        span = e - s
        for k, it in enumerate(items):
            slots[s + (k * span) // len(items)].append(it)
    for i, m in enumerate(mains):
        m()
        for f in slots[i]:
            f()


class Alloc:
    def __init__(self, free):
        self.free = set(free)

    def get(self, n, align=2):
        if n == 1:
            align = 1
        for r in sorted(self.free):
            if r % align == 0 and all((r + k) in self.free for k in range(n)):
                for k in range(n):
                    self.free.remove(r + k)
                return r
        raise RuntimeError(f"no block of {n} free regs; free={sorted(self.free)}")

    def put(self, r, n):
        for k in range(n):
            assert (r + k) not in self.free
            self.free.add(r + k)
```

```python
import sys
from asmlib import Prog, interleave, Alloc

NAME = "recurrent_scan__sliding_local_dilated__glu_gated_reglu__prompt"

A2_MT = 74 * 4096
A2_SIZE = 32 * A2_MT
B2_OFF = 0xA00000
B2_NT = 74 * 5120
B2_SIZE = 8 * B2_NT
ST_OFF = 0xE00000
ST_SIZE = 0x8000
FLAG_OFF = 0x4000
STAMP_OFF = 0xF00000
OOB = 0x7FFF0000
X_BYTES = 2048 * 1280

sX, sWQKV, sWO, sWG, sWU, sWD, sOUT, sDBG, sWS = 4, 6, 8, 12, 14, 16, 18, 20, 22
rX, rW0, rW1, rA2, rB2, rST, rWR, rDBG, rOUT = 24, 28, 32, 36, 40, 44, 48, 52, 56
sW, sMT, sNT = 60, 61, 62
sT0, sT1, sT2, sT3 = 63, 64, 65, 66
sM0A, sM0B, sM0R = 67, 68, 69
sKA, sKB = 70, 71
sEXA = 72
sMK0, sMK1, sMK2 = 74, 76, 78
sRP = 80
sSPIN = 81
sPC = 82
sSTAMP = 84


def srd(r):
    return f"s[{r}:{r + 3}]"


def vq(r, n=4):
    return f"v[{r}:{r + n - 1}]"


def aq(r, n=4):
    return f"a[{r}:{r + n - 1}]"


class Cfg:
    fused = False
    stamp = False
    sc = ""


def mk_srd(P, r, ptr, size, off=0):
    if off:
        P(f"s_add_u32 s{r}, s{ptr}, {off}")
        P(f"s_addc_u32 s{r + 1}, s{ptr + 1}, 0")
    else:
        P(f"s_mov_b32 s{r}, s{ptr}")
        P(f"s_mov_b32 s{r + 1}, s{ptr + 1}")
    P(f"s_mov_b32 s{r + 2}, {size}")
    P(f"s_mov_b32 s{r + 3}, 0x20000")


def smask(P, s, m):
    P(f"s_mov_b32 s{s}, 0x{m & 0xffffffff:x}")
    P(f"s_mov_b32 s{s + 1}, 0x{m >> 32:x}")


def stamp(P, cfg, k, real=False):
    if cfg.stamp:
        P(f"{'s_memrealtime' if real else 's_memtime'} s[{sSTAMP + 2 * k}:{sSTAMP + 2 * k + 1}]")


def stamp_flush(P, cfg, n, slot):
    if not cfg.stamp:
        return
    P("s_waitcnt lgkmcnt(0)")
    P("s_mov_b64 exec, -1")
    mk_srd(P, rWR, sWS, 0x10000, STAMP_OFF)
    P("v_mov_b32 v1, 0")
    for k in range(n):
        P(f"v_writelane_b32 v1, s{sSTAMP + 2 * k}, {k}")
    P(f"s_lshl_b32 s{sT0}, s2, 6")
    P(f"s_add_u32 s{sT0}, s{sT0}, {slot * 16384}")
    P(f"v_lshlrev_b32 v2, 2, v0")
    P(f"v_add_u32 v2, s{sT0}, v2")
    P(f"v_mov_b32 v3, {OOB}")
    P("v_cmp_gt_u32 vcc, 16, v0")
    P("v_cndmask_b32 v2, v3, v2, vcc")
    P.vm(f"buffer_store_dword v1, v2, {srd(rWR)}, 0 offen")


def divc(P, dst, src, c):
    m = (65536 + c - 1) // c
    for x in range(1024):
        assert (x * m) >> 16 == x // c
    P(f"v_mul_u32_u24 v{dst}, {m}, v{src}")
    P(f"v_lshrrev_b32 v{dst}, 16, v{dst}")


class Stats:
    def __init__(self, P, base):
        self.P, self.b = P, base

    def addr(self):
        P, b = self.P, self.b
        P(f"s_lshl_b32 s{sT0}, s2, 3")
        P(f"v_lshrrev_b32 v{b + 20}, 5, v0")
        P(f"v_add_u32 v{b + 20}, s{sT0}, v{b + 20}")
        P(f"v_mul_u32_u24 v{b + 22}, 1280, v{b + 20}")
        P(f"v_and_b32 v{b + 23}, 31, v0")
        P(f"v_lshl_add_u32 v{b + 21}, v{b + 23}, 4, v{b + 22}")
        P(f"v_lshl_add_u32 v{b + 22}, v{b + 23}, 3, v{b + 22}")

    def load(self):
        P, b = self.P, self.b
        P.vm(f"buffer_load_dwordx4 {vq(b)}, v{b + 21}, {srd(rX)}, 0 offen")
        P.vm(f"buffer_load_dwordx4 {vq(b + 4)}, v{b + 21}, {srd(rX)}, 0 offen offset:512")
        self.tok = P.vm(f"buffer_load_dwordx2 {vq(b + 8, 2)}, v{b + 22}, {srd(rX)}, 0 offen offset:1024")

    def ops(self):
        P, b = self.P, self.b
        L = []
        e = lambda t: L.append(lambda t=t: P(t))
        L.append(lambda: P.wait(vm=self.tok))
        for i in range(10):
            e(f"v_lshlrev_b32 v{b + 10 + i}, 16, v{b + i}")
            e(f"v_and_b32 v{b + i}, 0xffff0000, v{b + i}")
        s0, s1 = b + 21, b + 22

        def reduce32():
            e(f"v_add_f32 v{s0}, v{s0}, v{s1}")
            for sh in (8, 4, 2, 1):
                e(f"v_add_f32_dpp v{s0}, v{s0}, v{s0} row_ror:{sh} row_mask:0xf bank_mask:0xf")
            e(f"v_mov_b32 v{s1}, v{s0}")
            e(f"v_permlane16_swap_b32 v{s0}, v{s1}")
            e(f"v_add_f32 v{s0}, v{s0}, v{s1}")
            e(f"v_mul_f32 v{s0}, 0x3acccccd, v{s0}")

        e(f"v_add_f32 v{s0}, v{b}, v{b + 1}")
        e(f"v_add_f32 v{s1}, v{b + 10}, v{b + 11}")
        for i in range(2, 10):
            e(f"v_add_f32 v{s0}, v{s0}, v{b + i}")
            e(f"v_add_f32 v{s1}, v{s1}, v{b + 10 + i}")
        reduce32()
        for i in range(20):
            e(f"v_sub_f32 v{b + i}, v{b + i}, v{s0}")
        e(f"v_cvt_pk_bf16_f32 v{b + 23}, v{s0}, v{s0}")
        e(f"v_mul_f32 v{s0}, v{b}, v{b}")
        e(f"v_mul_f32 v{s1}, v{b + 1}, v{b + 1}")
        for i in range(2, 20):
            e(f"v_fmac_f32 v{s0 if i % 2 == 0 else s1}, v{b + i}, v{b + i}")
        e(f"v_lshlrev_b32 v{b + 23}, 16, v{b + 23}")
        reduce32()

        def rnd():
            e(f"v_cvt_pk_bf16_f32 v{s0}, v{s0}, v{s0}")
            e(f"v_lshlrev_b32 v{s0}, 16, v{s0}")
        rnd()
        e(f"v_add_f32 v{s0}, 0x3727c5ac, v{s0}")
        rnd()
        e(f"v_sqrt_f32 v{s0}, v{s0}")
        rnd()
        e(f"v_rcp_f32 v{s0}, v{s0}")
        e(f"v_lshlrev_b32 v{b + 20}, 2, v{b + 20}")
        e(f"v_and_b32 v{b}, 31, v0")
        e(f"v_mov_b32 v{b + 1}, {OOB}")
        e(f"v_cmp_eq_u32 vcc, 0, v{b}")
        e(f"v_cndmask_b32 v{b + 20}, v{b + 1}, v{b + 20}, vcc")
        e(f"v_add_u32 v{b + 1}, 8192, v{b + 20}")

        def st():
            P.vm(f"buffer_store_dword v{b + 23}, v{b + 20}, {srd(rST)}, 0 offen sc1")
            self.done = P.vm(f"buffer_store_dword v{s0}, v{b + 1}, {srd(rST)}, 0 offen sc1")
        L.append(st)
        return L


def early_signal(P, t0, t1):
    P(f"s_and_b32 s{sT0}, s2, 7")
    P(f"s_lshl_b32 s{sT0}, s{sT0}, 5")
    P(f"v_mov_b32 v{t0}, s{sT0}")
    P(f"v_mov_b32 v{t1}, {OOB}")
    P("v_cmp_eq_u32 vcc, 0, v0")
    P(f"v_cndmask_b32 v{t0}, v{t1}, v{t0}, vcc")
    P(f"v_mov_b32 v{t1}, 1")
    P.vm(f"buffer_atomic_add v{t1}, v{t0}, {srd(rDBG)}, 0 offen sc1")


class EarlyPoll:
    def __init__(self, P, va, vd, tag):
        self.P, self.va, self.vd, self.tag = P, va, vd, tag

    def issue(self):
        P = self.P
        P(f"v_and_b32 v{self.va}, 7, v0")
        P(f"v_lshlrev_b32 v{self.va}, 5, v{self.va}")
        self.tok = P.vm(f"buffer_load_dword v{self.vd}, v{self.va}, {srd(rDBG)}, 0 offen sc1")

    def check(self):
        P = self.P
        P.wait(vm=self.tok)
        P(f"v_cmp_ne_u32 vcc, 32, v{self.vd}")
        P("s_nop 1")
        P(f"s_cbranch_vccnz L_espin_{self.tag}")
        P(f"L_eback_{self.tag}:")

    def slow(self):
        P = self.P
        P(f"L_espin_{self.tag}:")
        P(f"s_mov_b32 s{sSPIN}, 0")
        P(f"L_espin2_{self.tag}:")
        P("s_sleep 2")
        P.vm(f"buffer_load_dword v{self.vd}, v{self.va}, {srd(rDBG)}, 0 offen sc1", counted=False)
        P(f"s_add_u32 s{sSPIN}, s{sSPIN}, 1")
        P("s_waitcnt vmcnt(0)")
        P(f"v_cmp_ne_u32 vcc, 32, v{self.vd}")
        P(f"s_cmp_lt_u32 s{sSPIN}, 0x100000")
        P("s_nop 1")
        P(f"s_cbranch_vccz L_eback_{self.tag}")
        P(f"s_cbranch_scc1 L_espin2_{self.tag}")
        P(f"s_branch L_eback_{self.tag}")


def phase1_loop(P, cfg, role):
    NS = 20
    tokA, tokB = {}, {}

    def dmaA(S, pieces):
        out = []
        for q in pieces:
            def f(S=S, q=q):
                tokA[S] = role.dmaA(S, q)
            out.append(f)
        return out

    def dmaB(s):
        out = []
        for q in range(role.nB):
            def f(s=s, q=q):
                tokB[s] = role.dmaB(s, q)
            out.append(f)
        return out

    nA = role.nA
    allA = list(range(nA))
    for f in dmaA(0, allA) + dmaB(0):
        f()
    role.stats.load()
    for f in dmaB(1):
        f()
    role.pro_lds()
    P.wait(vm=max(tokA[0], tokB[0]), ds=P.nds)
    P("s_barrier")
    stamp(P, cfg, 2)
    rd = role.reads(0)
    extra = dmaA(1, allA) + dmaB(2)
    for k, f in enumerate(rd):
        f()
        if k % 2 == 1 and extra:
            extra.pop(0)()
    for f in extra:
        f()

    sched = {s: [] for s in range(NS)}
    sched[0] = role.repack_dma() + dmaB(3) + dmaA(2, allA[1:]) + dmaB(4)
    for s in range(1, NS):
        if s + 4 < NS:
            sched[s] = dmaB(s + 4)
    sched[2] = dmaA(2, allA[:1]) + sched[2] if role.delay_a2 else sched[2]
    if not role.delay_a2:
        sched[0] = dmaA(2, allA[:1]) + sched[0]
    for S in range(3, 10):
        h = nA // 2
        sched[2 * (S - 3) + 1] += dmaA(S, allA[:h])
        sched[2 * (S - 3) + 2] += dmaA(S, allA[h:])

    for s in range(NS):
        need = None
        if s + 1 < NS:
            need = max(tokB[s + 1], tokA[(s + 1) // 2])
        extra_tok = role.barrier_needs(s)
        if extra_tok:
            need = max(need or 0, extra_tok)
        P.wait(vm=need, ds=P.nds)
        P("s_barrier")
        mains = role.mfmas(s)
        n = len(mains)
        fill = []
        if s + 1 < NS:
            fill.append((role.reads(s + 1), 0, n - 10))
        fill.append((sched[s], 1, n))
        fill += role.side(s, n)
        interleave(P, mains, fill)
    stamp(P, cfg, 3)


class GLU:
    nA, nB = 4, 6
    delay_a2 = True
    LB = 0
    LA = [98304, 114688, 147456]
    LR = 131072
    ACC = 64
    vAa = 2
    vBa = 6
    vRA = 9
    vRB = 11
    vRP = 19
    vST = 24
    vH = 56
    vM = 60
    aRP = 160

    def __init__(self, P, cfg):
        self.P, self.cfg = P, cfg
        self.stats = Stats(P, self.vST)
        self.poll = EarlyPoll(P, 2, 3, "glu")

    def acc(self, j, i):
        return self.ACC + (j * 4 + i) * 4

    def prologue(self):
        P = self.P
        t0, t1, t2, t3 = 48, 49, 50, 51
        P("v_and_b32 v1, 63, v0")
        P(f"s_mul_i32 s{sT0}, s{sMT}, 124")
        P(f"v_lshrrev_b32 v{t0}, 3, v0")
        P(f"v_lshrrev_b32 v{t1}, 1, v{t0}")
        P(f"v_xor_b32 v{t1}, v{t1}, v0")
        P(f"v_and_b32 v{t1}, 7, v{t1}")
        P(f"v_lshlrev_b32 v{t1}, 4, v{t1}")
        P(f"v_add_u32 v{t2}, s{sT0}, v{t0}")
        P(f"v_mul_u32_u24 v{t2}, 1280, v{t2}")
        P(f"v_add_u32 v{self.vAa}, v{t2}, v{t1}")
        for q in range(1, 4):
            P(f"v_add_u32 v{self.vAa + q}, {q * 32 * 1280}, v{self.vAa}")
        P(f"v_mov_b32 v{t3}, {OOB}")
        P(f"v_cmp_gt_u32 vcc, 28, v{t0}")
        P(f"v_cndmask_b32 v{self.vAa + 3}, v{t3}, v{self.vAa + 3}, vcc")
        P(f"s_mul_i32 s{sT0}, s{sNT}, 384")
        P(f"s_mul_i32 s{sT1}, s{sW}, {8 * 3456}")
        P(f"s_add_u32 s{sT0}, s{sT0}, s{sT1}")
        P(f"s_and_b32 s{sT1}, s{sW}, 1")
        P(f"s_lshl_b32 s{sT1}, s{sT1}, 2")
        for q in range(3):
            P(f"v_add_u32 v{t0}, {64 * q}, v1")
            divc(P, t1, t0, 24)
            P(f"v_mul_u32_u24 v{t2}, 24, v{t1}")
            P(f"v_sub_u32 v{t0}, v{t0}, v{t2}")
            P(f"v_and_b32 v{t2}, 2, v{t1}")
            P(f"v_or_b32 v{t2}, s{sT1}, v{t2}")
            P(f"v_xor_b32 v{t0}, v{t0}, v{t2}")
            P(f"v_mul_u32_u24 v{t1}, 3456, v{t1}")
            P(f"v_lshl_add_u32 v{t0}, v{t0}, 4, v{t1}")
            P(f"v_add_u32 v{self.vBa + q}, s{sT0}, v{t0}")
            if q:
                P(f"v_subrev_u32 v{self.vBa + q}, {1024 * q}, v{self.vBa + q}")
        P(f"s_lshl_b32 s{sM0A}, s{sW}, 10")
        P(f"s_mul_i32 s{sM0B}, s{sW}, 3072")
        P(f"s_mul_i32 s{sM0R}, s{sW}, 5120")
        P(f"s_add_u32 s{sM0R}, s{sM0R}, {self.LR}")
        P(f"s_cmp_eq_u32 s{sW}, 3")
        P(f"s_cselect_b32 s{sEXA + 1}, 0x00ffffff, -1")
        P(f"s_mov_b32 s{sEXA}, -1")
        self.stats.addr()
        P("s_waitcnt lgkmcnt(0)")
        mk_srd(P, rX, sX, X_BYTES)
        mk_srd(P, rW0, sWG, 640 * 3456)
        mk_srd(P, rW1, sWU, 640 * 3456)

    def late_setup(self):
        P = self.P
        t0, t1, t2, t3 = 48, 49, 50, 51
        mk_srd(P, rST, sWS, ST_SIZE, ST_OFF)
        mk_srd(P, rA2, sWS, A2_SIZE)
        mk_srd(P, rB2, sWS, B2_SIZE, B2_OFF)
        mk_srd(P, rDBG, sDBG, 256)
        P(f"v_and_b32 v{t0}, 15, v0")
        P(f"v_bfe_u32 v{t1}, v0, 4, 2")
        P(f"v_lshrrev_b32 v{t2}, 1, v{t0}")
        P(f"v_xor_b32 v{t2}, v{t2}, v{t1}")
        P(f"v_lshlrev_b32 v{t2}, 4, v{t2}")
        P(f"v_lshl_add_u32 v{t2}, v{t0}, 7, v{t2}")
        P(f"s_lshr_b32 s{sT0}, s{sW}, 1")
        P(f"s_lshl_b32 s{sT0}, s{sT0}, 13")
        P(f"s_add_u32 s{sT0}, s{sT0}, {self.LA[0]}")
        P(f"v_add_u32 v{self.vRA}, s{sT0}, v{t2}")
        P(f"v_xor_b32 v{self.vRA + 1}, 64, v{self.vRA}")
        P(f"v_bfe_u32 v{t0}, v0, 2, 2")
        P(f"v_lshl_add_u32 v{t2}, v{t1}, 3, v{t0}")
        P(f"v_mul_u32_u24 v{t2}, 384, v{t2}")
        P(f"v_and_b32 v{t3}, 3, v0")
        P(f"v_lshl_add_u32 v{t2}, v{t3}, 3, v{t2}")
        P(f"v_bfe_u32 v{t3}, v0, 3, 2")
        P(f"s_and_b32 s{sT0}, s{sW}, 1")
        P(f"s_mul_i32 s{sT0}, s{sT0}, 6")
        for k in range(4):
            P(f"s_add_u32 s{sT1}, s{sT0}, {k}")
            P(f"v_xor_b32 v{t0}, s{sT1}, v{t3}")
            P(f"v_lshl_add_u32 v{self.vRB + k}, v{t0}, 5, v{t2}")
            P(f"v_add_u32 v{self.vRB + 4 + k}, 49152, v{self.vRB + k}")
        P(f"s_mul_i32 s{sT0}, s{sMT}, 9")
        P(f"s_add_u32 s{sT0}, s{sT0}, s{sNT}")
        P(f"s_min_u32 s{sT0}, s{sT0}, 147")
        P(f"s_and_b32 s{sT1}, s{sT0}, 1")
        P(f"s_lshl_b32 s{sT1}, s{sT1}, 2")
        P(f"s_add_u32 s{sT1}, s{sT1}, s{sW}")
        P(f"s_lshr_b32 s{sT0}, s{sT0}, 1")
        P(f"s_mul_i32 s{sRP}, s{sT1}, {B2_NT}")
        P(f"s_mul_i32 s{sT2}, s{sT0}, 5120")
        P(f"s_add_u32 s{sRP}, s{sRP}, s{sT2}")
        P(f"s_mul_i32 s{sT1}, s{sT1}, 160")
        sB, sC1, sC2 = sT2, sT3, sSPIN
        P(f"s_lshl_b32 s{sB}, s{sT0}, 5")
        P(f"s_sub_u32 s{sB}, s{sB}, 640")
        P(f"s_mov_b32 s{sC1}, 16")
        P(f"s_mov_b32 s{sC2}, 4")
        P(f"s_cmp_lt_u32 s{sT0}, 20")
        P(f"s_cselect_b32 s{rWR}, s{sWO}, s{sWD}")
        P(f"s_cselect_b32 s{rWR + 1}, s{sWO + 1}, s{sWD + 1}")
        P(f"s_mov_b32 s{rWR + 2}, {1728 * 1280}")
        P(f"s_cmov_b32 s{rWR + 2}, {640 * 1280}")
        P(f"s_mov_b32 s{rWR + 3}, 0x20000")
        P(f"s_cbranch_scc0 L_glu_rp_done")
        P(f"s_mul_i32 s{sB}, s{sT0}, 160")
        P(f"s_sub_u32 s{sB}, s{sB}, {160 * 16 - 16}")
        P(f"s_mov_b32 s{sC1}, 80")
        P(f"s_mov_b32 s{sC2}, 20")
        P(f"s_cmp_lt_u32 s{sT0}, 16")
        P(f"s_cbranch_scc0 L_glu_rp_done")
        P(f"s_mul_i32 s{sB}, s{sT0}, 40")
        P(f"s_mov_b32 s{sC1}, 20")
        P(f"s_mov_b32 s{sC2}, 4")
        P("L_glu_rp_done:")
        for q in range(5):
            P(f"v_add_u32 v{t0}, {64 * q}, v1")
            divc(P, t1, t0, 10)
            P(f"v_mul_u32_u24 v{t2}, 10, v{t1}")
            P(f"v_sub_u32 v{t0}, v{t0}, v{t2}")
            P(f"v_lshrrev_b32 v{t2}, 4, v{t1}")
            P(f"v_mul_u32_u24 v{t2}, s{sC1}, v{t2}")
            P(f"v_bfe_u32 v{t3}, v{t1}, 2, 2")
            P(f"v_mad_u32_u24 v{t2}, v{t3}, s{sC2}, v{t2}")
            P(f"v_and_b32 v{t1}, 3, v{t1}")
            P(f"v_add3_u32 v{t2}, v{t2}, v{t1}, s{sB}")
            P(f"v_mul_u32_u24 v{t2}, 1280, v{t2}")
            P(f"v_lshl_add_u32 v{t0}, v{t0}, 4, v{t2}")
            P(f"v_add_u32 v{self.vRP + q}, s{sT1}, v{t0}")
        P(f"s_mul_i32 s{sT0}, s{sMT}, 124")
        P(f"s_lshr_b32 s{sT1}, s{sW}, 1")
        P(f"s_lshl_b32 s{sT1}, s{sT1}, 6")
        P(f"s_add_u32 s{sT2}, s{sT0}, 124")
        P(f"s_min_u32 s{sT2}, s{sT2}, 2048")
        P(f"s_add_u32 s{sT0}, s{sT0}, s{sT1}")
        P(f"s_mov_b32 s{sT1}, {A2_MT}")
        for i in range(4):
            P(f"v_and_b32 v{t0}, 15, v0")
            P(f"v_add_u32 v{t0}, s{sT0}, v{t0}")
            if i:
                P(f"v_add_u32 v{t0}, {16 * i}, v{t0}")
            P(f"v_lshrrev_b32 v{t1}, 6, v{t0}")
            P(f"v_mul_lo_u32 v{t1}, v{t1}, s{sT1}")
            P(f"v_bfe_u32 v{t2}, v{t0}, 4, 2")
            P(f"v_lshl_add_u32 v{t1}, v{t2}, 10, v{t1}")
            P(f"v_and_b32 v{t2}, 15, v{t0}")
            P(f"v_and_b32 v{t3}, 48, v0")
            P(f"v_or_b32 v{t2}, v{t2}, v{t3}")
            P(f"v_lshl_add_u32 v{t1}, v{t2}, 4, v{t1}")
            P(f"v_mov_b32 v{t3}, {OOB}")
            P(f"v_cmp_gt_u32 vcc, s{sT2}, v{t0}")
            P(f"v_cndmask_b32 v{self.vH + i}, v{t3}, v{t1}, vcc")
            P(f"v_min_u32 v{t0}, 2047, v{t0}")
            P(f"v_lshlrev_b32 v{self.vM + i}, 2, v{t0}")

    def pro_lds(self):
        P = self.P
        self.late_setup()
        t = 48
        for k in range(4):
            P(f"v_mov_b32 v{t + k}, 0x3f803f80")
        P(f"v_and_b32 v{t + 4}, 7, v0")
        P(f"v_lshlrev_b32 v{t + 4}, 4, v{t + 4}")
        P(f"v_add_u32 v{t + 4}, {self.LA[0] + 127 * 128}, v{t + 4}")
        for k in range(3):
            P.ds(f"ds_write_b128 v{t + 4}, {vq(t)} offset:{self.LA[k] - self.LA[0]}")

    def dmaA(self, S, q):
        P = self.P
        P(f"s_add_u32 m0, s{sM0A}, {self.LA[S % 3] + q * 4096}")
        P(f"s_mov_b32 s{sKA}, {S * 128}")
        if q == 3:
            P(f"s_mov_b64 exec, s[{sEXA}:{sEXA + 1}]")
        t = P.vm(f"buffer_load_dwordx4 v{self.vAa + q}, {srd(rX)}, s{sKA} offen lds")
        if q == 3:
            P("s_mov_b64 exec, -1")
        return t

    def dmaB(self, s, q):
        P = self.P
        mat, qq = divmod(q, 3)
        P(f"s_add_u32 m0, s{sM0B}, {self.LB + (s % 4) * 24576 + mat * 12288}")
        P(f"s_mov_b32 s{sKB}, {s * 32 * 3456}")
        off = f" offset:{qq * 1024}" if qq else ""
        return P.vm(f"buffer_load_dwordx4 v{self.vBa + qq}, {srd(rW1 if mat else rW0)}, s{sKB} offen{off} lds")

    def repack_dma(self):
        P = self.P
        out = []
        for q in range(5):
            def f(q=q):
                P(f"s_add_u32 m0, s{sM0R}, {q * 1024}")
                P("s_nop 0")
                self.tokR = P.vm(f"buffer_load_dwordx4 v{self.vRP + q}, {srd(rWR)}, 0 offen lds")
            out.append(f)
        return out

    def reads(self, s):
        P = self.P
        base = (s % 2) * 64
        out = []
        S, ks = divmod(s, 2)
        for i in range(4):
            off = self.LA[S % 3] - self.LA[0] + i * 2048
            out.append(lambda i=i, off=off: P.ds(f"ds_read_b128 {aq(base + 4 * i)}, v{self.vRA + ks} offset:{off}"))
        slot = s % 4
        for j in range(12):
            mat, jj = divmod(j, 6)
            reg = self.vRB + (jj & 3) + (4 if slot >= 2 else 0)
            for half in range(2):
                off = (slot & 1) * 24576 + mat * 12288 + (jj >> 2) * 128 + half * 4 * 384
                d = base + 16 + 4 * j + 2 * half
                out.append(lambda d=d, reg=reg, off=off: P.ds(f"ds_read_b64_tr_b16 {aq(d, 2)}, v{reg} offset:{off}"))
        return out

    def mfmas(self, s):
        P = self.P
        base = (s % 2) * 64
        out = []
        for j in range(12):
            for ii in range(4):
                i = ii if j % 2 == 0 else 3 - ii
                d = vq(self.acc(j, i))
                c = d if s else "0"
                out.append(lambda d=d, c=c, j=j, i=i: P(
                    f"v_mfma_f32_16x16x32_bf16 {d}, {aq(base + 16 + 4 * j)}, {aq(base + 4 * i)}, {c}"))
        return out

    def barrier_needs(self, s):
        if s == 5:
            return max(self.stats.done, self.tokRS)
        return None

    def side(self, s, n):
        P = self.P
        e = lambda t: (lambda: P(t))
        if s == 0:
            self.sops = self.stats.ops()
        if s in (0, 1, 2):
            k = len(self.sops)
            part = self.sops[s * k // 3:(s + 1) * k // 3]
            fill = [(part, 2, n)]
            if s == 1:
                L = []
                a0, a1, t = self.vRP, self.vRP + 1, self.vRP + 2
                L.append(e(f"v_lshrrev_b32 v{t}, 2, v1"))
                L.append(e(f"v_mul_u32_u24 v{t}, 160, v{t}"))
                L.append(e(f"v_add_u32 v{t}, s{sM0R}, v{t}"))
                L.append(e(f"v_and_b32 v{a1}, 3, v1"))
                L.append(e(f"v_lshl_add_u32 v{a0}, v{a1}, 4, v{t}"))
                L.append(e(f"v_lshl_add_u32 v{a1}, v{a1}, 3, v{t}"))
                L.append(e(f"v_lshlrev_b32 v{t}, 4, v1"))
                L.append(e(f"v_add_u32 v{t + 1}, 4096, v{t}"))
                L.append(lambda: P.wait(vm=self.tokR))
                for j in range(5):
                    for half in range(2):
                        off = half * 16 * 160 + ((j >> 1) * 64 + (j & 1) * 8 if j < 4 else 128)
                        reg = a0 if j < 4 else a1
                        L.append(lambda j=j, half=half, off=off, reg=reg: P.ds(
                            f"ds_read_b64_tr_b16 {aq(self.aRP + 4 * j + 2 * half, 2)}, v{reg} offset:{off}"))
                fill.append((L, 14, n - 8))
            if s == 2:
                L = []
                for j in range(5):
                    def f(j=j):
                        reg = self.vRP + 2 + (j >> 2)
                        off = f" offset:{j * 1024}" if 0 < j < 4 else ""
                        self.tokRS = P.vm(f"buffer_store_dwordx4 {aq(self.aRP + 4 * j)}, v{reg}, {srd(rB2)}, s{sRP} offen{off} sc1")
                    L.append(f)
                fill.append((L, 4, n - 4))
            return fill
        if s == 5:
            return [([lambda: early_signal(P, 48, 49)], 3, 4)]
        if s == 16:
            return [([self.poll.issue], 3, 4)]
        if s == 18:
            def f():
                self.poll.check()
                for i in range(4):
                    self.tokM = P.vm(f"buffer_load_dword v{self.vM + i}, v{self.vM + i}, {srd(rST)}, 0 offen sc1")
            return [([f], 3, 4)]
        if s == 19:
            L = []
            L.append(e(f"s_and_b32 s{sT0}, s{sW}, 1"))
            L.append(e(f"s_mul_i32 s{sT1}, s{sT0}, 768"))
            L.append(e(f"v_and_b32 v2, 48, v0"))
            L.append(e(f"v_add_u32 v2, s{sT1}, v2"))
            L.append(e(f"s_mul_i32 s{sT0}, s{sT0}, 3"))
            L.append(e(f"s_mul_i32 s{sT1}, s{sNT}, 6"))
            L.append(e(f"s_add_u32 s{sT0}, s{sT0}, s{sT1}"))
            L.append(e(f"s_add_u32 s{sT0}, s{sT0}, 20"))
            L.append(e(f"s_lshl_b32 s{sT0}, s{sT0}, 12"))
            L.append(e(f"s_add_u32 s{sT1}, s{sT0}, 4096"))
            L.append(e(f"s_add_u32 s{sT2}, s{sT0}, 8192"))
            L.append(e(f"s_cmp_ge_u32 s{sW}, 2\ns_cselect_b32 s{sMK0}, 0x80008000, 0"))
            L.append(e(f"s_mov_b32 s{sMK0 + 1}, s{sMK0}"))
            return [(L, 2, n)]
        return []

    def epilogue(self):
        P, cfg = self.P, self.cfg
        P(f"s_mov_b64 exec, s[{sMK0}:{sMK0 + 1}]")
        for j in range(12):
            P.ds(f"ds_write_b128 v2, {vq(self.acc(j, 3))} offset:{j * 64}")
        P("s_mov_b64 exec, -1")
        P.wait(vm=self.tokM, ds=P.nds)
        P("s_barrier")
        CS = 8
        order = [0, 6, 1, 7, 2, 8, 3, 9, 4, 10, 5, 11]
        tk = {}
        for j in order:
            tk[j] = P.ds(f"ds_read_b128 {vq(CS + 4 * j)}, v2 offset:{j * 64}")
        for p in range(3):
            for i in range(4):
                mp = self.vM + (i & ~1)
                sel = i & 1
                mods = f"op_sel:[0,{sel},0] op_sel_hi:[1,{sel},1] neg_lo:[0,1,0] neg_hi:[0,1,0]"
                dst = self.acc(2 * p, i)
                for jj in (2 * p, 2 * p + 1):
                    g, u = self.acc(jj, i), self.acc(jj + 6, i)
                    P.wait(ds=tk[jj + 6])
                    for h in (0, 2):
                        P(f"v_pk_fma_f32 {vq(g + h, 2)}, {vq(CS + 4 * jj + h, 2)}, {vq(mp, 2)}, {vq(g + h, 2)} {mods}")
                    for h in (0, 2):
                        P(f"v_pk_fma_f32 {vq(u + h, 2)}, {vq(CS + 4 * (jj + 6) + h, 2)}, {vq(mp, 2)}, {vq(u + h, 2)} {mods}")
                    for r in range(4):
                        P(f"v_max_f32 v{g + r}, 0, v{g + r}")
                    for h in (0, 2):
                        P(f"v_pk_mul_f32 {vq(u + h, 2)}, {vq(u + h, 2)}, {vq(g + h, 2)}")
                    for h in (0, 2):
                        P(f"v_cvt_pk_bf16_f32 v{dst + 2 * (jj & 1) + h // 2}, v{u + h}, v{u + h + 1}")
                P.vm(f"buffer_store_dwordx4 {vq(dst)}, v{self.vH + i}, {srd(rA2)}, s{sT0 + p} offen{cfg.sc}")


class QKV:
    nA, nB = 6, 4
    delay_a2 = False
    LB = 0
    LA = [67584, 92160, 116736]
    ACC = 76
    vAa = 2
    vBa = 8
    vRA = 12
    vRB = 14
    vSEL = 16
    vST = 20
    vM1 = 44
    vR1 = 48
    vTK = 52
    vT = 58

    def __init__(self, P, cfg):
        self.P, self.cfg = P, cfg
        self.stats = Stats(P, self.vST)
        self.poll = EarlyPoll(P, 2, 3, "qkv")

    def acc(self, sec, i, G):
        return self.ACC + ((sec * 5 + i) * 3 + G) * 4

    def prologue(self):
        P = self.P
        t0, t1, t2, t3 = 58, 59, 60, 61
        P("v_and_b32 v1, 63, v0")
        P(f"s_mul_i32 s{sT0}, s{sMT}, 176")
        P(f"s_sub_u32 s{sT0}, s{sT0}, 16")
        P(f"v_lshrrev_b32 v{t0}, 3, v0")
        P(f"v_lshrrev_b32 v{t1}, 1, v{t0}")
        P(f"v_xor_b32 v{t1}, v{t1}, v0")
        P(f"v_and_b32 v{t1}, 7, v{t1}")
        P(f"v_lshlrev_b32 v{t1}, 4, v{t1}")
        P(f"v_add_u32 v{t2}, s{sT0}, v{t0}")
        P(f"v_mul_i32_i24 v{t0}, 1280, v{t2}")
        P(f"v_add_u32 v{self.vAa}, v{t0}, v{t1}")
        for q in range(1, 6):
            P(f"v_add_u32 v{self.vAa + q}, {q * 32 * 1280}, v{self.vAa}")
        P(f"v_mov_b32 v{t3}, {OOB}")
        P(f"v_cmp_le_i32 vcc, 0, v{t2}")
        P(f"v_cndmask_b32 v{self.vAa}, v{t3}, v{self.vAa}, vcc")
        P(f"s_mul_i32 s{sT0}, s{sNT}, 160")
        P(f"s_mul_i32 s{sT1}, s{sW}, {8 * 3840}")
        P(f"s_add_u32 s{sT0}, s{sT0}, s{sT1}")
        for q in range(4):
            P(f"v_add_u32 v{t0}, {64 * q}, v1")
            divc(P, t1, t0, 10)
            P(f"v_mul_u32_u24 v{t2}, 10, v{t1}")
            P(f"v_sub_u32 v{t0}, v{t0}, v{t2}")
            P(f"v_mul_u32_u24 v{t1}, 1280, v{t1}")
            P(f"v_lshl_add_u32 v{t0}, v{t0}, 4, v{t1}")
            P(f"v_add_u32 v{self.vBa + q}, s{sT0}, v{t0}")
            if q:
                P(f"v_subrev_u32 v{self.vBa + q}, {1024 * q}, v{self.vBa + q}")
        P(f"v_cmp_gt_u32 vcc, 48, v1")
        P(f"v_cndmask_b32 v{self.vBa + 3}, v{t3}, v{self.vBa + 3}, vcc")
        P(f"s_lshl_b32 s{sM0A}, s{sW}, 10")
        P(f"s_mul_i32 s{sM0B}, s{sW}, 4224")
        P(f"s_cmp_eq_u32 s{sW}, 0")
        P(f"s_cselect_b32 s{sEXA}, 0xffffff00, -1")
        P(f"s_mov_b32 s{sEXA + 1}, -1")
        self.stats.addr()
        P("s_waitcnt lgkmcnt(0)")
        mk_srd(P, rX, sX, X_BYTES)
        mk_srd(P, rW0, sWQKV, 640 * 3840)

    @staticmethod
    def masks():
        par = cur0 = cur1 = 0
        for l in range(64):
            q, g = l & 15, l >> 4
            if q & 1:
                par |= 1 << l
            if 4 * g + (q & 1) <= q:
                cur0 |= 1 << l
            if 4 * g + 2 + (q & 1) <= q:
                cur1 |= 1 << l
        return par, cur0, cur1

    def late_setup(self):
        P = self.P
        t0, t1, t2, t3 = 58, 59, 60, 61
        mk_srd(P, rST, sWS, ST_SIZE, ST_OFF)
        mk_srd(P, rA2, sWS, A2_SIZE)
        mk_srd(P, rDBG, sDBG, 256)
        P(f"v_and_b32 v{t0}, 15, v0")
        P(f"v_bfe_u32 v{t1}, v0, 4, 2")
        P(f"v_lshrrev_b32 v{t2}, 1, v{t0}")
        P(f"v_xor_b32 v{t2}, v{t2}, v{t1}")
        P(f"v_lshlrev_b32 v{t2}, 4, v{t2}")
        P(f"v_lshl_add_u32 v{t2}, v{t0}, 7, v{t2}")
        P(f"s_mul_i32 s{sT0}, s{sW}, 6144")
        P(f"s_add_u32 s{sT0}, s{sT0}, {self.LA[0]}")
        P(f"v_add_u32 v{self.vRA}, s{sT0}, v{t2}")
        P(f"v_xor_b32 v{self.vRA + 1}, 64, v{self.vRA}")
        P(f"v_mul_u32_u24 v{t2}, 4224, v{t1}")
        P(f"v_bfe_u32 v{t3}, v0, 2, 2")
        P(f"v_mul_u32_u24 v{t3}, 480, v{t3}")
        P(f"v_add_u32 v{t2}, v{t2}, v{t3}")
        P(f"v_and_b32 v{t3}, 3, v0")
        P(f"v_lshl_add_u32 v{self.vRB}, v{t3}, 3, v{t2}")
        P(f"v_mul_u32_u24 v{t3}, 40, v{t3}")
        P(f"v_add3_u32 v{self.vRB + 1}, v{t2}, v{t3}, 32")
        P(f"s_mul_i32 s{sT0}, s{sMT}, 176")
        P(f"s_mul_i32 s{sT1}, s{sW}, 48")
        P(f"s_add_u32 s{sT0}, s{sT0}, s{sT1}")
        P(f"s_sub_u32 s{sT0}, s{sT0}, 16")
        for G in range(3):
            P(f"s_add_u32 s{sT1}, s{sT0}, {16 * G}")
            P(f"s_max_i32 s{sT1}, s{sT1}, 0")
            P(f"s_min_i32 s{sT1}, s{sT1}, 2032")
            P(f"s_lshl_b32 s{sT1}, s{sT1}, 2")
            P(f"v_lshl_add_u32 v{self.vTK + G}, v{t0}, 2, s{sT1}")
            P(f"v_lshl_add_u32 v{self.vTK + 3 + G}, v{t1}, 4, s{sT1}")
        par, cur0, cur1 = self.masks()
        smask(P, sMK0, par)
        smask(P, sMK1, cur0)
        smask(P, sMK2, cur1)
        P(f"v_mov_b32 v{t3}, 0x0c0c0c0c")
        for u in range(2):
            lo = 0x0c0c0000 | ((2 * u + 1) << 8) | (2 * u)
            hi = 0x00000c0c | ((2 * u + 1) << 24) | ((2 * u) << 16)
            mk = sMK1 if u == 0 else sMK2
            P(f"v_mov_b32 v{t0}, 0x{lo:x}")
            P(f"v_mov_b32 v{t1}, 0x{hi:x}")
            P(f"v_cndmask_b32 v{t0}, v{t0}, v{t1}, s[{sMK0}:{sMK0 + 1}]")
            P(f"v_cndmask_b32 v{self.vSEL + u}, v{t3}, v{t0}, s[{mk}:{mk + 1}]")
            P(f"v_cndmask_b32 v{self.vSEL + 2 + u}, v{t0}, v{t3}, s[{mk}:{mk + 1}]")

    def pro_lds(self):
        P = self.P
        self.late_setup()
        t = 58
        for k in range(4):
            P(f"v_mov_b32 v{t + k}, 0x3f803f80")
        P(f"v_and_b32 v{t + 4}, 7, v0")
        P(f"v_lshlrev_b32 v{t + 4}, 4, v{t + 4}")
        P(f"v_add_u32 v{t + 4}, {self.LA[0]}, v{t + 4}")
        for k in range(3):
            P.ds(f"ds_write_b128 v{t + 4}, {vq(t)} offset:{self.LA[k] - self.LA[0]}")

    def dmaA(self, S, q):
        P = self.P
        P(f"s_add_u32 m0, s{sM0A}, {self.LA[S % 3] + q * 4096}")
        P(f"s_mov_b32 s{sKA}, {S * 128}")
        if q == 0:
            P(f"s_mov_b64 exec, s[{sEXA}:{sEXA + 1}]")
        t = P.vm(f"buffer_load_dwordx4 v{self.vAa + q}, {srd(rX)}, s{sKA} offen lds")
        if q == 0:
            P("s_mov_b64 exec, -1")
        return t

    def dmaB(self, s, q):
        P = self.P
        P(f"s_add_u32 m0, s{sM0B}, {self.LB + (s % 4) * 16896}")
        P(f"s_mov_b32 s{sKB}, {s * 32 * 3840}")
        off = f" offset:{q * 1024}" if q else ""
        return P.vm(f"buffer_load_dwordx4 v{self.vBa + q}, {srd(rW0)}, s{sKB} offen{off} lds")

    def repack_dma(self):
        return []

    def reads(self, s):
        P = self.P
        base = (s % 2) * 72
        out = []
        S, ks = divmod(s, 2)
        for G in range(3):
            off = self.LA[S % 3] - self.LA[0] + G * 2048
            out.append(lambda G=G, off=off: P.ds(f"ds_read_b128 {aq(base + 4 * G)}, v{self.vRA + ks} offset:{off}"))
        for j in range(15):
            sec, i = divmod(j, 5)
            for half in range(2):
                off = (s % 4) * 16896 + half * 4 * 480 + sec * 160 + (i * 40 if i < 4 else 0)
                reg = self.vRB + (1 if i == 4 else 0)
                d = base + 12 + 4 * j + 2 * half
                out.append(lambda d=d, reg=reg, off=off: P.ds(f"ds_read_b64_tr_b16 {aq(d, 2)}, v{reg} offset:{off}"))
        return out

    def mfmas(self, s):
        P = self.P
        base = (s % 2) * 72
        out = []
        for j in range(15):
            sec, i = divmod(j, 5)
            for gg in range(3):
                G = gg if j % 2 == 0 else 2 - gg
                d = vq(self.acc(sec, i, G))
                c = d if s else "0"
                w, x = aq(base + 12 + 4 * j), aq(base + 4 * G)
                a, b = (w, x) if sec < 2 else (x, w)
                out.append(lambda d=d, c=c, a=a, b=b: P(f"v_mfma_f32_16x16x32_bf16 {d}, {a}, {b}, {c}"))
        return out

    def barrier_needs(self, s):
        return self.stats.done if s == 5 else None

    def side(self, s, n):
        P = self.P
        e = lambda t: (lambda: P(t))
        if s == 0:
            self.sops = self.stats.ops()
        if s in (0, 1, 2):
            k = len(self.sops)
            return [(self.sops[s * k // 3:(s + 1) * k // 3], 2, n)]
        if s == 5:
            return [([lambda: early_signal(P, 58, 59)], 3, 4)]
        if s == 16:
            return [([self.poll.issue], 3, 4)]
        if s == 18:
            L = [self.poll.check, e(f"s_movk_i32 s{sT3}, 0x2000")]
            for G in range(3):
                def f(G=G):
                    P.vm(f"buffer_load_dword v{self.vM1 + G}, v{self.vTK + G}, {srd(rST)}, 0 offen sc1")
                    P.vm(f"buffer_load_dword v{self.vR1 + G}, v{self.vTK + G}, {srd(rST)}, s{sT3} offen sc1")
                def f2(G=G):
                    P.vm(f"buffer_load_dwordx4 {vq(self.vST + 8 * G)}, v{self.vTK + 3 + G}, {srd(rST)}, 0 offen sc1")
                    self.tokM = P.vm(f"buffer_load_dwordx4 {vq(self.vST + 8 * G + 4)}, v{self.vTK + 3 + G}, {srd(rST)}, s{sT3} offen sc1")
                L += [f, f2]
            return [(L, 3, 30)]
        if s == 19:
            L = []
            L.append(e("v_and_b32 v2, 48, v0"))
            L.append(e("v_and_b32 v3, 15, v0"))
            L.append(e("v_lshlrev_b32 v3, 2, v3"))
            L.append(e(f"s_mul_i32 s{sT0}, s{sW}, 5632"))
            L.append(e(f"s_add_u32 s{sT0}, s{sT0}, 4096"))
            L.append(e(f"v_lshl_add_u32 v4, v1, 4, s{sT0}"))
            L.append(e(f"v_lshl_add_u32 v5, v1, 3, s{sT0}"))
            L.append(e(f"s_add_u32 s{sT0}, s{sW}, 3"))
            L.append(e(f"s_and_b32 s{sT0}, s{sT0}, 3"))
            L.append(e(f"s_mul_i32 s{sT0}, s{sT0}, 5632"))
            L.append(e(f"s_add_u32 s{sT0}, s{sT0}, 4096"))
            L.append(e(f"v_lshl_add_u32 v6, v1, 4, s{sT0}"))
            L.append(e(f"v_lshl_add_u32 v7, v1, 3, s{sT0}"))
            L.append(e(f"s_mul_i32 s{sT0}, s{sMT}, 11\ns_mul_i32 s{sT1}, s{sW}, 3\ns_add_u32 s{sT0}, s{sT0}, s{sT1}"))
            for G in range(3):
                txt = f"s_add_u32 s{sT1}, s{sT0}, {G - 1}\n" if G != 1 else f"s_mov_b32 s{sT1}, s{sT0}\n"
                txt += (f"s_lshr_b32 s{sT2}, s{sT1}, 2\ns_mul_i32 s{sT2}, s{sT2}, {A2_MT}\n"
                        f"s_cmp_ge_u32 s{sT1}, 128\ns_cselect_b32 s{sT2}, {OOB}, s{sT2}\n")
                if G == 0:
                    txt += f"s_cmp_eq_u32 s{sW}, 0\ns_cselect_b32 s{sT2}, {OOB}, s{sT2}\n"
                txt += f"s_and_b32 s{sT1}, s{sT1}, 3\ns_lshl_b32 s{sT1}, s{sT1}, 6"
                L.append(e(txt))
                L.append(e(f"v_add_u32 v{self.vT}, s{sT1}, v1"))
                L.append(e(f"v_lshl_add_u32 v{self.vTK + G}, v{self.vT}, 4, s{sT2}"))
                L.append(e(f"v_lshl_add_u32 v{self.vTK + 3 + G}, v{self.vT}, 3, s{sT2}"))
            L.append(e(f"s_or_b32 s{sT0}, s{sMT}, s{sW}\ns_cmp_eq_u32 s{sT0}, 0\ns_cselect_b32 s{sT0}, 0xf149f2ca, 0"))
            for k in range(4):
                L.append(e(f"v_mov_b32 v{8 + k}, s{sT0}"))
            L.append(e(f"s_cmp_eq_u32 s{sW}, 0\ns_cselect_b32 s{sEXA}, 0x00010001, 0\ns_cselect_b32 s{sKA}, 0xffff, 0"))
            L.append(e(f"s_mov_b32 s{sEXA + 1}, s{sEXA}\ns_mov_b32 s{sKB}, 0"))
            L.append(e(f"s_lshl_b32 s{sT0}, s{sNT}, 13"))
            L.append(e(f"s_add_u32 s{sT1}, s{sT0}, 4096"))
            L.append(e(f"s_lshl_b32 s{sT2}, s{sNT}, 11\ns_add_u32 s{sT2}, s{sT2}, {16 * 4096}"))
            return [(L, 1, n)]
        return []

    def epilogue(self):
        P, cfg = self.P, self.cfg
        assert sKB == sKA + 1 and sKA % 2 == 0
        BIAS = 8
        al = Alloc(list(range(12, 16)) + list(range(58, 76)))
        P(f"s_mov_b64 exec, s[{sEXA}:{sEXA + 1}]")
        for sec in (1, 0):
            for i in range(5):
                P.ds(f"ds_write_b128 v2, {vq(self.acc(sec, i, 0))} offset:{(sec * 5 + i) * 64}")
        P(f"s_mov_b64 exec, s[{sKA}:{sKA + 1}]")
        for i in range(5):
            P.ds(f"ds_write_b32 v3, v{self.acc(2, i, 0)} offset:{640 + i * 64}")
        P("s_mov_b64 exec, -1")
        P.wait(vm=self.tokM, ds=P.nds)
        P("s_barrier")

        def bc(reg, pos, n):
            lo = [0] * n
            hi = [1] * n
            lo[pos] = hi[pos] = reg & 1
            return vq(reg & ~1, 2), lo, hi

        def fmt(lo, hi):
            return f"op_sel:[{','.join(map(str, lo))}] op_sel_hi:[{','.join(map(str, hi))}]"

        NEG = "neg_lo:[0,1,0] neg_hi:[0,1,0]"
        csV = al.get(6)
        tk = [P.ds(f"ds_read_b32 v{csV + i}, v3 offset:{640 + i * 64}") for i in range(5)]
        csA = al.get(4)
        csB = al.get(4)
        Vb = []
        tkK = {}
        tkK[4] = P.ds(f"ds_read_b128 {vq(csA)}, v2 offset:{(5 + 4) * 64}")
        tkK[0] = P.ds(f"ds_read_b128 {vq(csB)}, v2 offset:{(5 + 0) * 64}")
        for i in range(5):
            vb = al.get(8)
            Vb.append(vb)
            P.wait(ds=tk[i])
            c, lo, hi = bc(csV + i, 1, 3)
            for G in (2, 1, 0):
                a = self.acc(2, i, G)
                m4, r4 = self.vST + 8 * G, self.vST + 8 * G + 4
                for h in (0, 2):
                    P(f"v_pk_fma_f32 {vq(a + h, 2)}, {vq(m4 + h, 2)}, {c}, {vq(a + h, 2)} {fmt(lo, hi)} {NEG}")
                for h in (0, 2):
                    P(f"v_pk_mul_f32 {vq(a + h, 2)}, {vq(a + h, 2)}, {vq(r4 + h, 2)}")
                for h in (0, 2):
                    P(f"v_cvt_pk_bf16_f32 v{vb + 2 * (2 - G) + h // 2}, v{a + h}, v{a + h + 1}")
            al.put(self.acc(2, i, 0), 12)
            P.ds(f"ds_write_b64 v5, {vq(vb, 2)} offset:{3072 + i * 512}")
        al.put(csV, 6)
        al.put(self.vST, 24)
        Kb = [al.get(12) for _ in range(3)]
        kpos = {0: [0], 1: [4], 2: [6], 3: [10], 4: [2, 8]}
        cs = {4: csA, 0: csB}
        for i in (1, 2, 3):
            cs[i] = al.get(4)
            tkK[i] = P.ds(f"ds_read_b128 {vq(cs[i])}, v2 offset:{(5 + i) * 64}")
        for i in (4, 0, 1, 2, 3):
            P.wait(ds=tkK[i])
            for G in (2, 1, 0):
                a = self.acc(1, i, G)
                m, lo, hi = bc(self.vM1 + G, 1, 3)
                r, lo2, hi2 = bc(self.vR1 + G, 1, 2)
                for h in (0, 2):
                    P(f"v_pk_fma_f32 {vq(a + h, 2)}, {vq(cs[i] + h, 2)}, {m}, {vq(a + h, 2)} {fmt(lo, hi)} {NEG}")
                for h in (0, 2):
                    P(f"v_pk_mul_f32 {vq(a + h, 2)}, {vq(a + h, 2)}, {r} {fmt(lo2, hi2)}")
                for pos in kpos[i]:
                    for h in (0, 2):
                        P(f"v_cvt_pk_bf16_f32 v{Kb[G] + pos + h // 2}, v{a + h}, v{a + h + 1}")
            al.put(self.acc(1, i, 0), 12)
            tkK[i] = P.ds(f"ds_read_b128 {vq(cs[i])}, v2 offset:{i * 64}")
        for k in range(3):
            tkH = P.ds(f"ds_write_b128 v4, {vq(Kb[2] + 4 * k)} offset:{k * 1024}")
        Qb = [al.get(16) for _ in range(3)]
        qmain = lambda h: 4 * h + (0 if h % 2 == 0 else 2)
        qext = lambda h: 4 * h + (2 if h % 2 == 0 else 0)
        for G in range(3):
            for h in range(4):
                P(f"v_pk_mov_b32 {vq(Qb[G] + qext(h), 2)}, 0, 0")
        for i in (4, 0, 1, 2, 3):
            P.wait(ds=tkK[i])
            for G in (2, 1, 0):
                a = self.acc(0, i, G)
                m, lo, hi = bc(self.vM1 + G, 1, 3)
                for h in (0, 2):
                    P(f"v_pk_fma_f32 {vq(a + h, 2)}, {vq(cs[i] + h, 2)}, {m}, {vq(a + h, 2)} {fmt(lo, hi)} {NEG}")
                if i < 4:
                    for h in (0, 2):
                        P(f"v_cvt_pk_bf16_f32 v{Qb[G] + qmain(i) + h // 2}, v{a + h}, v{a + h + 1}")
            if i == 4:
                for hd in range(4):
                    m = 0xffff << (16 * hd)
                    P(f"s_mov_b32 exec_lo, 0x{m & 0xffffffff:x}")
                    P(f"s_mov_b32 exec_hi, 0x{m >> 32:x}")
                    for G in range(3):
                        a = self.acc(0, 4, G)
                        for h in (0, 2):
                            P(f"v_cvt_pk_bf16_f32 v{Qb[G] + qext(hd) + h // 2}, v{a + h}, v{a + h + 1}")
                P("s_mov_b64 exec, -1")
            al.put(self.acc(0, i, 0), 12)
            al.put(cs[i], 4)
        Kb.append(al.get(12))
        P.wait(ds=P.nds)
        P("s_barrier")
        for k in range(3):
            P.ds(f"ds_read_b128 {vq(Kb[3] + 4 * k)}, v6 offset:{k * 1024}")
        for i in range(5):
            tkH = P.ds(f"ds_read_b64 {vq(Vb[i] + 6, 2)}, v7 offset:{3072 + i * 512}")
        kq = {0: 0, 1: 2, 2: 6, 3: 8}
        CQ = {}
        for G in range(3):
            CQ[G] = al.get(2)
            P(f"v_mul_f32 v{CQ[G]}, 0x3ea52b5c, v{self.vR1 + G}")
        X = {}
        mk = {0: sMK1, 1: sMK2}
        sm = lambda s: f"s[{s}:{s + 1}]"

        def scores(G):
            Sc = [al.get(4) for _ in range(4)]
            Sp = [al.get(4) for _ in range(4)]
            if G == 0:
                P.wait(ds=tkH)
            for h in range(4):
                q = vq(Qb[G] + 4 * h)
                P(f"v_mfma_f32_16x16x32_bf16 {vq(Sc[h])}, {vq(Kb[G] + kq[h])}, {q}, 0")
                c = vq(BIAS) if G == 1 else "0"
                P(f"v_mfma_f32_16x16x32_bf16 {vq(Sp[h])}, {vq(Kb[(G - 1) % 4] + kq[h])}, {q}, {c}")
            return Sc, Sp

        def select(G, Sc, Sp):
            X[G] = al.get(8)
            for h in range(4):
                for u in range(2):
                    P(f"v_cndmask_b32 v{Sc[h] + 2 * u}, v{Sc[h] + 2 * u}, v{Sc[h] + 2 * u + 1}, {sm(sMK0)}")
                    P(f"v_cndmask_b32 v{Sp[h] + 2 * u}, v{Sp[h] + 2 * u}, v{Sp[h] + 2 * u + 1}, {sm(sMK0)}")
                for u in range(2):
                    P(f"v_cndmask_b32 v{X[G] + 2 * h + u}, v{Sp[h] + 2 * u}, v{Sc[h] + 2 * u}, {sm(mk[u])}")
            for h in range(4):
                al.put(Sc[h], 4)
                al.put(Sp[h], 4)

        S2 = scores(2)
        al.put(Qb[2], 16)
        al.put(Kb[2], 12)
        S1 = scores(1)
        select(2, *S2)
        al.put(Qb[1], 16)
        al.put(Kb[1], 12)
        S0 = scores(0)
        select(1, *S1)
        select(0, *S0)
        al.put(Qb[0], 16)
        al.put(Kb[0], 12)
        al.put(Kb[3], 12)
        GS = (2, 1, 0)
        for G in GS:
            for u in range(2):
                P(f"v_permlane32_swap_b32 v{X[G] + u}, v{X[G] + 4 + u}")
                P(f"v_permlane32_swap_b32 v{X[G] + 2 + u}, v{X[G] + 6 + u}")
        for G in GS:
            for u in range(2):
                P(f"v_permlane16_swap_b32 v{X[G] + u}, v{X[G] + 2 + u}")
                P(f"v_permlane16_swap_b32 v{X[G] + 4 + u}, v{X[G] + 6 + u}")
        for G in GS:
            x, m = X[G], CQ[G] + 1
            P(f"v_max3_f32 v{m}, v{x}, v{x + 1}, v{x + 2}")
            P(f"v_max3_f32 v{m}, v{m}, v{x + 3}, v{x + 4}")
            P(f"v_max3_f32 v{m}, v{m}, v{x + 5}, v{x + 6}")
            P(f"v_max_f32 v{m}, v{m}, v{x + 7}")
            for k in range(0, 8, 2):
                P(f"v_pk_add_f32 {vq(x + k, 2)}, {vq(x + k, 2)}, {vq(CQ[G], 2)} op_sel:[0,1] op_sel_hi:[1,1] neg_lo:[0,1] neg_hi:[0,1]")
            for k in range(0, 8, 2):
                P(f"v_pk_mul_f32 {vq(x + k, 2)}, {vq(x + k, 2)}, {vq(CQ[G], 2)} op_sel:[0,0] op_sel_hi:[1,0]")
            for k in range(8):
                P(f"v_exp_f32 v{x + k}, v{x + k}")
        W = {}
        for G in GS:
            x = X[G]
            W[G] = al.get(4)
            w = W[G]
            P(f"v_pk_add_f32 {vq(w, 2)}, {vq(x, 2)}, {vq(x + 2, 2)}")
            P(f"v_pk_add_f32 {vq(w + 2, 2)}, {vq(x + 4, 2)}, {vq(x + 6, 2)}")
            P(f"v_pk_add_f32 {vq(w, 2)}, {vq(w, 2)}, {vq(w + 2, 2)}")
            P(f"v_add_f32 v{w}, v{w}, v{w + 1}")
            P(f"v_rcp_f32 v{CQ[G]}, v{w}")
        for G in GS:
            x, w = X[G], W[G]
            for k in range(0, 8, 2):
                P(f"v_pk_mul_f32 {vq(x + k, 2)}, {vq(x + k, 2)}, {vq(CQ[G], 2)} op_sel:[0,0] op_sel_hi:[1,0]")
            for k in range(4):
                P(f"v_cvt_pk_bf16_f32 v{w + k}, v{x + 2 * k}, v{x + 2 * k + 1}")
            al.put(x, 8)
        for G in GS:
            w = W[G]
            P(f"v_permlane32_swap_b32 v{w}, v{w + 2}")
            P(f"v_permlane32_swap_b32 v{w + 1}, v{w + 3}")
        for G in GS:
            w = W[G]
            P(f"v_permlane16_swap_b32 v{w}, v{w + 1}")
            P(f"v_permlane16_swap_b32 v{w + 2}, v{w + 3}")
        O, O4 = {}, {}
        for G in GS:
            Pq = [al.get(4) for _ in range(4)]
            O[G] = [al.get(4) for _ in range(4)]
            O4[G] = [al.get(4) for _ in range(4)]
            for h in range(4):
                for k in range(4):
                    P(f"v_perm_b32 v{Pq[h] + k}, v{W[G] + h}, v{W[G] + h}, v{self.vSEL + k}")
            for h in range(4):
                P(f"v_mfma_f32_16x16x32_bf16 {vq(O[G][h])}, {vq(Vb[h] + 2 * (2 - G))}, {vq(Pq[h])}, 0")
                P(f"v_mfma_f32_16x16x32_bf16 {vq(O4[G][h])}, {vq(Vb[4] + 2 * (2 - G))}, {vq(Pq[h])}, 0")
            for h in range(4):
                al.put(Pq[h], 4)
        for G in GS:
            for p in range(2):
                d = al.get(4)
                for hh in range(2):
                    o = O[G][2 * p + hh]
                    P(f"v_cvt_pk_bf16_f32 v{d + 2 * hh}, v{o}, v{o + 1}")
                    P(f"v_cvt_pk_bf16_f32 v{d + 2 * hh + 1}, v{o + 2}, v{o + 3}")
                P.vm(f"buffer_store_dwordx4 {vq(d)}, v{self.vTK + G}, {srd(rA2)}, s{sT0 + p} offen{cfg.sc}")
        d4 = {G: al.get(2) for G in GS}
        for hd in range(4):
            m = 0xffff << (16 * hd)
            P(f"s_mov_b32 exec_lo, 0x{m & 0xffffffff:x}")
            P(f"s_mov_b32 exec_hi, 0x{m >> 32:x}")
            for G in GS:
                o = O4[G][hd]
                P(f"v_cvt_pk_bf16_f32 v{d4[G]}, v{o}, v{o + 1}")
                P(f"v_cvt_pk_bf16_f32 v{d4[G] + 1}, v{o + 2}, v{o + 3}")
        P("s_mov_b64 exec, -1")
        for G in GS:
            P.vm(f"buffer_store_dwordx2 {vq(d4[G], 2)}, v{self.vTK + 3 + G}, {srd(rA2)}, s{sT2} offen{cfg.sc}")


def entry(P, cfg, tag, nwg=256):
    P(f"s_cmp_ge_u32 s2, {nwg}")
    P(f"s_cbranch_scc1 L_end_{tag}")
    stamp(P, cfg, 0, real=True)
    stamp(P, cfg, 1)
    P("s_load_dwordx16 s[4:19], s[0:1], 0")
    P("s_load_dwordx4 s[20:23], s[0:1], 64")
    P(f"s_getpc_b64 s[{sPC}:{sPC + 1}]")
    P(f"L_pc_{tag}:")
    P("v_lshrrev_b32 v1, 6, v0")
    P(f"s_lshr_b32 s{sT0}, s2, 3")
    P(f"v_readfirstlane_b32 s{sW}, v1")
    P("v_and_b32 v2, 3, v0")
    P("v_lshl_add_u32 v2, v1, 2, v2")
    P(f"s_lshl_b32 s{sT1}, s{sT0}, 11")
    P(f"v_lshl_add_u32 v2, v2, 7, s{sT1}")
    P(f"v_min_u32 v2, L_codeend_{tag}-L_pc_{tag}-4, v2")
    P.vm(f"global_load_dword v255, v2, s[{sPC}:{sPC + 1}]")


def gen_k1(cfg):
    P = Prog()
    entry(P, cfg, "k1")
    nvm0 = P.nvm
    P(f"s_and_b32 s{sNT}, s2, 7")
    P(f"s_mov_b32 s{sMT}, s{sT0}")
    P(f"s_cmp_lt_u32 s{sT0}, 12")
    P("s_cbranch_scc1 L_qkv")
    P(f"s_sub_u32 s{sMT}, s{sT0}, 12")
    P(f"s_cmp_lt_u32 s{sT0}, 29")
    P("s_cbranch_scc1 L_glu")
    P(f"s_sub_u32 s{sMT}, s2, 232")
    P(f"s_mov_b32 s{sNT}, 8")
    P(f"s_cmp_lt_u32 s{sMT}, 17")
    P("s_cbranch_scc1 L_glu")
    st = Stats(P, 24)
    st.addr()
    P("s_waitcnt lgkmcnt(0)")
    mk_srd(P, rX, sX, X_BYTES)
    mk_srd(P, rST, sWS, ST_SIZE, ST_OFF)
    mk_srd(P, rDBG, sDBG, 256)
    st.load()
    for f in st.ops():
        f()
    P.wait_all_vm()
    P("s_barrier")
    early_signal(P, 48, 49)
    P("s_endpgm")

    outs = [P]
    for cls, lab in ((QKV, "L_qkv"), (GLU, "L_glu")):
        Q = Prog()
        Q.nvm = nvm0
        Q(f"{lab}:")
        Q.pad(3)
        role = cls(Q, cfg)
        role.prologue()
        phase1_loop(Q, cfg, role)
        role.epilogue()
        stamp(Q, cfg, 4)
        if cfg.stamp:
            Q.wait_all_vm()
            stamp(Q, cfg, 5)
            stamp(Q, cfg, 6, real=True)
            stamp_flush(Q, cfg, 7, 0)
        Q("s_endpgm")
        role.poll.slow()
        outs.append(Q)
    T = Prog()
    T("L_end_k1:")
    T("s_endpgm")
    T("L_codeend_k1:")
    outs.append(T)
    return "\n".join(o.text() for o in outs)


def phase2_path(P, cfg, is_s):
    NS = 20 if is_s else 18
    DEPTH = 3
    NBUF = 5
    ACC = 176
    vA, vB, vAh = 2, 6, 8
    vX, vX2, vXD, vR = 9, 10, 12, 22
    acc = lambda j, i: ACC + (i * 5 + j) * 4
    tok = {}

    def loads(s):
        out = []
        b = (s % NBUF) * 36
        def setk():
            P(f"s_add_u32 s{sT0}, s{sKA}, {s * 4096}")
            P(f"s_add_u32 s{sT1}, s{sKB}, {s * 5120}")
        out.append(setk)
        def ldA(i):
            if is_s and s >= 16:
                P.vm(f"buffer_load_dwordx2 {aq(b + 4 * i, 2)}, v{vAh}, {srd(rA2)}, s{sT0} offen offset:{i * 512}{cfg.sc}")
                tok[s] = P.vm(f"buffer_load_dwordx2 {aq(b + 4 * i + 2, 2)}, v{vAh}, {srd(rA2)}, s{sT0} offen offset:{2048 + i * 512}{cfg.sc}")
            else:
                tok[s] = P.vm(f"buffer_load_dwordx4 {aq(b + 4 * i)}, v{vA + i}, {srd(rA2)}, s{sT0} offen{cfg.sc}")
        def ldB(j):
            off = f" offset:{j * 1024}" if 0 < j < 4 else ""
            tok[s] = P.vm(f"buffer_load_dwordx4 {aq(b + 16 + 4 * j)}, v{vB + (j >> 2)}, {srd(rB2)}, s{sT1} offen{off}{cfg.sc}")
        for k in range(5):
            out.append(lambda k=k: ldB(k))
            if k < 4:
                out.append(lambda k=k: ldA(k))
        return out

    for s in range(DEPTH):
        for f in loads(s):
            f()
    for s in range(NS):
        P.wait(vm=tok[s])
        b = (s % NBUF) * 36
        mains = []
        for j in range(5):
            for ii in range(4):
                i = ii if j % 2 == 0 else 3 - ii
                d = vq(acc(j, i))
                c = d if s else "0"
                mains.append(lambda d=d, c=c, j=j, i=i: P(
                    f"v_mfma_f32_16x16x32_bf16 {d}, {aq(b + 16 + 4 * j)}, {aq(b + 4 * i)}, {c}"))
        fill = []
        if s + DEPTH < NS:
            fill.append((loads(s + DEPTH), 0, 20))
        if s == NS - DEPTH:
            def f():
                P.vm(f"buffer_load_dwordx4 {vq(vXD)}, v{vX}, {srd(rX)}, 0 offen")
                P.vm(f"buffer_load_dwordx4 {vq(vXD + 4)}, v{vX}, {srd(rX)}, 0 offen offset:64")
                P.vm(f"buffer_load_dwordx2 {vq(vXD + 8, 2)}, v{vX2}, {srd(rX)}, 0 offen offset:128")
                tok["x"] = P.vm(f"buffer_load_dword v{vR}, v{vR}, {srd(rST)}, 0 offen{cfg.sc}")
            fill.append(([f], 0, 1))
        interleave(P, mains, fill)
    stamp(P, cfg, 3)
    vW = 24
    vRd = 28
    T = 32
    if is_s:
        for i in (1, 2, 3):
            d = T + 10 * (i - 1)
            for j in range(5):
                P(f"v_cvt_pk_bf16_f32 v{d + 2 * j}, v{acc(j, i)}, v{acc(j, i) + 1}")
                P(f"v_cvt_pk_bf16_f32 v{d + 2 * j + 1}, v{acc(j, i) + 2}, v{acc(j, i) + 3}")
            P.ds(f"ds_write_b128 v{vB}, {vq(d)} offset:{(i - 1) * 2560}")
            P.ds(f"ds_write_b128 v{vB}, {vq(d + 4)} offset:{(i - 1) * 2560 + 1024}")
            P.ds(f"ds_write_b64 v{vAh}, {vq(d + 8, 2)} offset:{(i - 1) * 2560 + 2048}")
    else:
        for i in (1, 2, 3):
            for j in range(5):
                P.ds(f"ds_write_b128 v{vW + i - 1}, {vq(acc(j, i))} offset:{j * 1024}")
    XU = 96
    P.wait(vm=tok["x"])
    for k in range(10):
        P(f"v_lshlrev_b32 v{XU + 2 * k}, 16, v{vXD + k}")
        P(f"v_and_b32 v{XU + 2 * k + 1}, 0xffff0000, v{vXD + k}")
    P(f"v_mul_f32 v{vR}, v{vR}, v{vR}")
    P(f"v_mul_f32 v{vR + 1}, 0xbfb8aa3b, v{vR}")
    P.wait(ds=P.nds)
    P("s_barrier")
    Y = [T, T + 20, T + 40]
    tk = {}
    nsrc = 3 if is_s else 2
    SP = 120
    if not is_s:
        P.ds(f"ds_read_b128 {vq(SP)}, v{vRd + 2}")
        P.ds(f"ds_read_b128 {vq(SP + 4)}, v{vRd + 2} offset:1024")
        tk["s"] = P.ds(f"ds_read_b64 {vq(SP + 8, 2)}, v{vRd + 3} offset:2048")
    for j in range(5):
        for k in range(nsrc):
            if is_s:
                tk[j] = P.ds(f"ds_read_b128 {vq(Y[k] + 4 * j)}, v{vB} offset:{8192 + k * 20480 + j * 1024}")
            else:
                tk[j] = P.ds(f"ds_read_b128 {vq(Y[k] + 4 * j)}, v{vRd + k} offset:{j * 1024}")
    SU = 132
    if not is_s:
        P.wait(ds=tk["s"])
        for k in range(10):
            P(f"v_lshlrev_b32 v{SU + 2 * k}, 16, v{SP + k}")
            P(f"v_and_b32 v{SU + 2 * k + 1}, 0xffff0000, v{SP + k}")
    else:
        for k in range(10):
            P(f"v_cvt_pk_bf16_f32 v{SP + k}, v{ACC + 2 * k}, v{ACC + 2 * k + 1}")
        for k in range(10):
            P(f"v_lshlrev_b32 v{SU + 2 * k}, 16, v{SP + k}")
            P(f"v_and_b32 v{SU + 2 * k + 1}, 0xffff0000, v{SP + k}")
    third = Y[2] if is_s else ACC
    E = 152
    for j in range(5):
        P.wait(ds=tk[j])
        for h in (0, 2):
            y = Y[0] + 4 * j + h
            P(f"v_pk_add_f32 {vq(y, 2)}, {vq(y, 2)}, {vq(Y[1] + 4 * j + h, 2)}")
        for h in (0, 2):
            y = Y[0] + 4 * j + h
            P(f"v_pk_add_f32 {vq(y, 2)}, {vq(y, 2)}, {vq(third + 4 * j + h, 2)}")
        for h in (0, 2):
            y = Y[0] + 4 * j + h
            P(f"v_pk_mul_f32 {vq(E + 4 * j + h, 2)}, {vq(y, 2)}, {vq(vR, 2)} op_sel:[0,1] op_sel_hi:[1,1]")
        for r in range(4):
            P(f"v_exp_f32 v{E + 4 * j + r}, v{E + 4 * j + r}")
        for h in (0, 2):
            y = Y[0] + 4 * j + h
            P(f"v_pk_mul_f32 {vq(y, 2)}, {vq(y, 2)}, {vq(vR, 2)} op_sel:[0,0] op_sel_hi:[1,0]")
        for h in (0, 2):
            P(f"v_pk_add_f32 {vq(E + 4 * j + h, 2)}, {vq(E + 4 * j + h, 2)}, 1.0 op_sel_hi:[1,0]")
        for r in range(4):
            P(f"v_rcp_f32 v{E + 4 * j + r}, v{E + 4 * j + r}")
        for h in (0, 2):
            y = Y[0] + 4 * j + h
            P(f"v_pk_mul_f32 {vq(y, 2)}, {vq(y, 2)}, {vq(SU + 4 * j + h, 2)}")
        for h in (0, 2):
            y = Y[0] + 4 * j + h
            P(f"v_pk_fma_f32 {vq(y, 2)}, {vq(y, 2)}, {vq(E + 4 * j + h, 2)}, {vq(XU + 4 * j + h, 2)}")
        for h in (0, 2):
            y = Y[0] + 4 * j + h
            P(f"v_cvt_pk_bf16_f32 v{vXD + 2 * j + h // 2}, v{y}, v{y + 1}")
        if j == 1:
            P.vm(f"buffer_store_dwordx4 {vq(vXD)}, v{vX}, {srd(rOUT)}, 0 offen")
        if j == 3:
            P.vm(f"buffer_store_dwordx4 {vq(vXD + 4)}, v{vX}, {srd(rOUT)}, 0 offen offset:64")
        if j == 4:
            P.vm(f"buffer_store_dwordx2 {vq(vXD + 8, 2)}, v{vX2}, {srd(rOUT)}, 0 offen offset:128")


def phase2_setup(P, cfg):
    vA, vB, vAh, vX, vX2, vR, vW, vRd = 2, 6, 8, 9, 10, 22, 24, 28
    P(f"s_and_b32 s{sT0}, s2, 7")
    P(f"s_lshr_b32 s{sT1}, s2, 3")
    P(f"s_lshr_b32 s{sMT}, s{sT0}, 1")
    P(f"s_lshl_b32 s{sMT}, s{sMT}, 3")
    P(f"s_lshr_b32 s{sT2}, s{sT1}, 2")
    P(f"s_add_u32 s{sMT}, s{sMT}, s{sT2}")
    P(f"s_and_b32 s{sNT}, s{sT0}, 1")
    P(f"s_lshl_b32 s{sNT}, s{sNT}, 2")
    P(f"s_and_b32 s{sT2}, s{sT1}, 3")
    P(f"s_add_u32 s{sNT}, s{sNT}, s{sT2}")
    P(f"s_mul_i32 s{sT0}, s{sW}, 18")
    P(f"s_add_u32 s{sT0}, s{sT0}, 2")
    P(f"s_cmp_eq_u32 s{sW}, 0")
    P(f"s_cselect_b32 s{sT0}, 0, s{sT0}")
    P(f"s_mul_i32 s{sKA}, s{sMT}, {A2_MT}")
    P(f"s_lshl_b32 s{sT1}, s{sT0}, 12")
    P(f"s_add_u32 s{sKA}, s{sKA}, s{sT1}")
    P(f"s_mul_i32 s{sKB}, s{sNT}, {B2_NT}")
    P(f"s_mul_i32 s{sT1}, s{sT0}, 5120")
    P(f"s_add_u32 s{sKB}, s{sKB}, s{sT1}")
    P("v_and_b32 v1, 63, v0")
    P(f"v_lshlrev_b32 v{vB}, 4, v1")
    P(f"v_add_u32 v{vB + 1}, 4096, v{vB}")
    P(f"v_lshlrev_b32 v{vAh}, 3, v1")
    P(f"s_mul_i32 s{sT2}, s{sW}, 20480")
    P(f"s_sub_u32 s{sT2}, s{sT2}, {20480 - 8192}")
    for i in range(4):
        P(f"s_add_u32 s{sT0}, s{sW}, {i}")
        P(f"s_and_b32 s{sT0}, s{sT0}, 3")
        P(f"s_lshl_b32 s{sT1}, s{sT0}, 10")
        P(f"v_add_u32 v{vA + i}, s{sT1}, v{vB}")
        if i:
            P(f"s_mul_i32 s{sT1}, s{sT0}, 5120")
            P(f"s_add_u32 s{sT1}, s{sT1}, s{sT2}")
            P(f"v_add_u32 v{vW + i - 1}, s{sT1}, v{vB}")
    P(f"s_mul_i32 s{sT2}, s{sW}, 5120")
    P(f"s_add_u32 s{sT2}, s{sT2}, 8192")
    for k in range(2):
        P(f"s_add_u32 s{sT0}, s{sW}, {k}")
        P(f"s_cmp_ge_u32 s{sT0}, 3")
        P(f"s_cselect_b32 s{sT1}, 3, 0")
        P(f"s_sub_u32 s{sT0}, s{sT0}, s{sT1}")
        P(f"s_mul_i32 s{sT0}, s{sT0}, 20480")
        P(f"s_add_u32 s{sT0}, s{sT0}, s{sT2}")
        P(f"v_add_u32 v{vRd + k}, s{sT0}, v{vB}")
    P(f"s_mul_i32 s{sT0}, s{sW}, 2560")
    P(f"s_sub_u32 s{sT0}, s{sT0}, 2560")
    P(f"v_add_u32 v{vRd + 2}, s{sT0}, v{vB}")
    P(f"v_add_u32 v{vRd + 3}, s{sT0}, v{vAh}")
    P(f"s_lshl_b32 s{sT0}, s{sMT}, 6")
    P(f"s_lshl_b32 s{sT1}, s{sW}, 4")
    P(f"s_add_u32 s{sT0}, s{sT0}, s{sT1}")
    P(f"v_and_b32 v{vR}, 15, v0")
    P(f"v_add_u32 v{vR}, s{sT0}, v{vR}")
    P(f"v_mul_u32_u24 v{vX}, 1280, v{vR}")
    P(f"s_mul_i32 s{sT1}, s{sNT}, 160")
    P(f"v_add_u32 v{vX}, s{sT1}, v{vX}")
    P(f"v_lshrrev_b32 v{vX2 + 1}, 4, v1")
    P(f"v_lshl_add_u32 v{vX2}, v{vX2 + 1}, 3, v{vX}")
    P(f"v_lshl_add_u32 v{vX}, v{vX2 + 1}, 4, v{vX}")
    P(f"v_lshlrev_b32 v{vR}, 2, v{vR}")
    P(f"v_add_u32 v{vR}, 8192, v{vR}")


def gen_k2(cfg):
    P = Prog()
    entry(P, cfg, "k2")
    phase2_setup(P, cfg)
    P("s_waitcnt lgkmcnt(0)")
    mk_srd(P, rA2, sWS, A2_SIZE)
    mk_srd(P, rB2, sWS, B2_SIZE, B2_OFF)
    mk_srd(P, rST, sWS, ST_SIZE, ST_OFF)
    mk_srd(P, rX, sX, X_BYTES)
    mk_srd(P, rOUT, sOUT, X_BYTES)
    stamp(P, cfg, 2)
    P(f"s_cmp_eq_u32 s{sW}, 0")
    P("s_cbranch_scc0 L_p2y")
    outs = [P]
    for is_s in (True, False):
        Q = Prog()
        Q.nvm = P.nvm
        if not is_s:
            Q("L_p2y:")
        Q.pad(3)
        phase2_path(Q, cfg, is_s)
        if cfg.stamp and is_s:
            stamp(Q, cfg, 4)
            Q.wait_all_vm()
            stamp(Q, cfg, 5)
            stamp(Q, cfg, 6, real=True)
            stamp_flush(Q, cfg, 7, 1)
        Q("s_endpgm")
        outs.append(Q)
    T = Prog()
    T("L_end_k2:")
    T("s_endpgm")
    T("L_codeend_k2:")
    outs.append(T)
    return "\n".join(o.text() for o in outs)


HEADER = """; Kernarg layout for this problem (80 bytes, ptrs only, base s[0:1]):
"""


def kernel_block(name, body):
    return f""".text
.globl {name}
.p2align 8
.type {name},@function
{name}:
{body}
.section .rodata,"a"
.p2align 6
.amdhsa_kernel {name}
  .amdhsa_next_free_vgpr 512
  .amdhsa_next_free_sgpr 102
  .amdhsa_accum_offset 256
  .amdhsa_group_segment_fixed_size 0
  .amdhsa_kernarg_size 80
  .amdhsa_user_sgpr_count 2
  .amdhsa_user_sgpr_kernarg_segment_ptr 1
  .amdhsa_system_sgpr_workgroup_id_x 1
  .amdhsa_float_denorm_mode_32 3
.end_amdhsa_kernel
"""


def build(cfg):
    s = HEADER
    s += "; @launch kernel=p1_kernel grid=(256,1,1) block=(256,1,1) lds=163840\n"
    s += "; @launch kernel=p2_kernel grid=(256,1,1) block=(256,1,1) lds=69632\n"
    s += '.amdgcn_target "amdgcn-amd-amdhsa--gfx950"\n'
    s += kernel_block("p1_kernel", gen_k1(cfg))
    s += kernel_block("p2_kernel", gen_k2(cfg))
    return s


if __name__ == "__main__":
    cfg = Cfg()
    out = sys.argv[1]
    for a in sys.argv[2:]:
        k, v = a.split("=")
        setattr(cfg, k, eval(v))
    open(out, "w").write(build(cfg))
```

```python
import sys
N="recurrent_scan__sliding_local_dilated__glu_gated_reglu__prompt_kernel"
def amp(src, name, a, b, mult):
    s=open(src).read()
    s=s.replace("; @launch grid=(256,1,1) block=(256,1,1) lds=163840", f"; @launch kernel={N} grid=(256,1,1) block=(256,1,1) lds=163840\n; @launch kernel=e_kernel grid=(1,1,1) block=(64,1,1) lds=0")
    B=["s_cmp_ge_u32 s2, 1","s_cbranch_scc1 L_e_end","s_load_dwordx2 s[22:23], s[0:1], 72","s_waitcnt lgkmcnt(0)",
       "s_add_u32 s24, s22, 0xF00000","s_addc_u32 s25, s23, 0","s_mov_b32 s26, 0x40000","s_mov_b32 s27, 0x20000"]
    for idx,base in ((a,8),(b,12)):
        for k in range(3):
            B+=[f"v_add_u32 v2, {64*k}, v0","v_lshlrev_b32 v2, 10, v2",f"v_add_u32 v2, {idx*4}, v2",f"buffer_load_dword v{base+k}, v2, s[24:27], 0 offen"]
    B+=["s_waitcnt vmcnt(0)","v_sub_u32 v8, v12, v8","v_sub_u32 v9, v13, v9","v_sub_u32 v10, v14, v10","v_add3_u32 v8, v8, v9, v10","s_nop 4","s_mov_b32 s30, 0"]
    for l in range(64):
        B+=[f"v_readlane_b32 s32, v8, {l}","s_nop 1","s_add_u32 s30, s30, s32"]
    B+=["s_lshr_b32 s30, s30, 5","s_min_u32 s30, s30, 60000",f"s_mul_i32 s30, s30, {mult}","s_memrealtime s[34:35]","s_waitcnt lgkmcnt(0)",
        "L_e_w:","s_memrealtime s[36:37]","s_waitcnt lgkmcnt(0)","s_sub_u32 s38, s36, s34","s_cmp_lt_u32 s38, s30","s_cbranch_scc1 L_e_w","L_e_end:"]
    k='''.text
.globl e_kernel
.p2align 8
.type e_kernel,@function
e_kernel:
%s
    s_endpgm
.section .rodata,"a"
.p2align 6
.amdhsa_kernel e_kernel
  .amdhsa_next_free_vgpr 32
  .amdhsa_next_free_sgpr 64
  .amdhsa_accum_offset 32
  .amdhsa_group_segment_fixed_size 0
  .amdhsa_kernarg_size 80
  .amdhsa_user_sgpr_count 2
  .amdhsa_user_sgpr_kernarg_segment_ptr 1
  .amdhsa_system_sgpr_workgroup_id_x 1
.end_amdhsa_kernel
''' % "\n".join(B)
    open(name,"w").write(s+k)
if __name__=="__main__":
    src=sys.argv[1]
    amp(src,"z_0.s",0,55,0)
    for i,b in enumerate([int(x) for x in sys.argv[2:]]):
        amp(src,f"z_{i+1}.s",0,b,1)
```

```python
import re

TRANS = ("v_exp_f32", "v_log_f32", "v_rcp_f32", "v_rsq_f32", "v_sqrt_f32", "v_sin_f32", "v_cos_f32")
REG_RE = re.compile(r"(?<![\w.])(-|abs\()?([vas])(?:\[(\d+):(\d+)\]|(\d+))(?![\w])")


def regs_of(op):
    op = op.strip()
    out = set()
    if op in ("vcc", "vcc_lo", "vcc_hi"):
        return {"vcc"}
    if op in ("exec", "exec_lo", "exec_hi"):
        return {"exec"}
    if op == "m0":
        return {"m0"}
    m = REG_RE.search(op)
    if m:
        k = m.group(2)
        if m.group(3) is not None:
            for r in range(int(m.group(3)), int(m.group(4)) + 1):
                out.add(f"{k}{r}")
        else:
            out.add(f"{k}{m.group(5)}")
    return out


def split_ops(s):
    ops, depth, cur = [], 0, ""
    for ch in s:
        if ch in "[(":
            depth += 1
        if ch in "])":
            depth -= 1
        if ch == "," and depth == 0:
            ops.append(cur.strip())
            cur = ""
        else:
            cur += ch
    if cur.strip():
        ops.append(cur.strip())
    return ops


class Ins:
    def __init__(self, text):
        self.text = text
        t = text.split(";")[0].strip()
        self.is_label = t.endswith(":")
        self.is_dir = t.startswith(".") or t == ""
        self.mn = t.split()[0] if t else ""
        rest = t[len(self.mn):].strip()
        ops = split_ops(rest)
        mods = ""
        if ops:
            parts = ops[-1].split()
            ops[-1] = parts[0]
            mods = " ".join(parts[1:])
        self.ops, self.mods = ops, mods
        mn = self.mn
        self.R, self.W = set(), set()
        self.srcA = self.srcB = self.srcC = set()
        self.store_data = set()
        self.kind = "other"
        if self.is_label or self.is_dir:
            self.kind = "label"
            return
        ro = [regs_of(o) for o in ops]
        allr = lambda l: set().union(*l) if l else set()
        if mn.startswith("v_mfma"):
            self.kind = "mfma"
            self.W = ro[0]
            self.srcA, self.srcB, self.srcC = ro[1], ro[2], ro[3]
            self.R = allr(ro[1:])
            self.passes = 4 if "16x16x32" in mn or "16x16x16" in mn else 8
        elif mn.startswith("v_"):
            self.kind = "valu"
            self.W = set(ro[0])
            self.R = allr(ro[1:])
            if mn.startswith("v_permlane"):
                self.W = ro[0] | ro[1]
                self.R = ro[0] | ro[1]
            if mn.startswith(("v_fmac", "v_pk_fmac", "v_writelane", "v_dot2c")):
                self.R |= ro[0]
            if "_dpp" in mn or "row_" in mods or "quad_perm" in mods:
                self.R |= ro[0]
            if mn.startswith(("v_add_co", "v_sub_co", "v_addc_co", "v_subb_co", "v_mad_u64")):
                self.W = ro[0] | ro[1]
                self.R = allr(ro[2:])
            if mn.startswith("v_cmpx"):
                self.W |= {"exec"}
        elif mn.startswith(("buffer_", "global_")):
            self.kind = "vmem"
            lds = " lds" in (" " + mods)
            if mn.startswith("buffer_load") and lds:
                self.R = allr(ro) | {"m0"}
                self.ldsdma = True
            elif "_load" in mn:
                self.W = ro[0]
                self.R = allr(ro[1:])
            elif mn.startswith("buffer_"):
                self.R = allr(ro)
                if "x3" in mn or "x4" in mn:
                    self.store_data = ro[0]
                if "atomic" in mn and "sc0" in mods:
                    self.W = ro[0]
            else:
                self.R = allr(ro)
                if "x3" in mn or "x4" in mn:
                    self.store_data = ro[1]
        elif mn.startswith("ds_"):
            self.kind = "ds"
            if mn.startswith(("ds_read", "ds_bpermute", "ds_permute", "ds_swizzle")):
                self.W = ro[0]
                self.R = allr(ro[1:])
            else:
                self.R = allr(ro)
        elif mn.startswith("s_"):
            self.kind = "salu"
            if mn.startswith(("s_cmp", "s_cbranch", "s_branch", "s_waitcnt", "s_barrier", "s_nop", "s_sleep",
                              "s_endpgm", "s_setprio", "s_bitcmp")):
                self.R = allr(ro)
            else:
                self.W = ro[0] if ro else set()
                self.R = allr(ro[1:])
                if "saveexec" in mn:
                    self.W = self.W | {"exec"}
        self.is_trans = any(mn.startswith(x) for x in TRANS)
        self.is_dpp = "_dpp" in mn or "row_" in self.mods or "quad_perm" in self.mods
        self.is_perm = mn.startswith("v_permlane")
        self.is_rdlane = mn.startswith(("v_readlane", "v_readfirstlane"))
        self.opsel_dst = False

    def states(self):
        if self.kind == "label":
            return 0
        if self.mn == "s_nop":
            return int(self.ops[0], 0) + 1
        return 1


def need(p, c):
    n = 0
    vreg = lambda s: {r for r in s if r[0] in "va" and r != "vcc"}
    sreg = lambda s: {r for r in s if r[0] == "s" or r == "vcc"}
    if p.kind == "valu":
        pw_v, pw_s = vreg(p.W), sreg(p.W)
        if c.kind == "mfma" and pw_v & c.R:
            n = max(n, 2)
        if c.kind == "valu":
            if (c.is_dpp or c.is_perm) and pw_v & c.R:
                n = max(n, 2)
            if c.is_rdlane and pw_v & c.R:
                n = max(n, 1)
            if p.is_trans and pw_v & c.R:
                n = max(n, 1)
            if pw_s & c.R:
                n = max(n, 4 if c.mn.startswith(("v_readlane", "v_writelane")) else 2)
            if "exec" in p.W:
                n = max(n, 5)
        if c.kind == "vmem" and pw_s & c.R:
            n = max(n, 5)
        if c.kind == "salu" and pw_s & c.R:
            n = max(n, 1)
        if c.kind == "mfma" and "exec" in p.W:
            n = max(n, 4)
    if p.kind == "mfma":
        big = {4: 8, 8: 12}[p.passes]
        if c.kind == "mfma":
            if p.W & (c.srcA | c.srcB):
                n = max(n, big)
            if p.W & c.srcC and not (p.W == c.srcC and p.passes == c.passes):
                n = max(n, {4: 6, 8: 10}[p.passes])
            if p.W & c.W and not (p.W == c.srcC):
                n = max(n, {4: 6, 8: 10}[p.passes])
        elif c.kind in ("valu", "vmem", "ds"):
            if p.W & (c.R | c.W):
                n = max(n, big)
            if c.kind == "valu" and p.srcC & c.W:
                n = max(n, {4: 3, 8: 7}[p.passes])
    if p.kind == "vmem" and p.store_data:
        if c.kind in ("valu", "mfma") and p.store_data & c.W:
            n = max(n, 2)
        elif p.store_data & c.W:
            n = max(n, 1)
    if p.kind == "salu" and "m0" in p.W:
        if (c.kind == "vmem" and "m0" in c.R) or (c.kind == "valu" and "m0" in c.R):
            n = max(n, 1)
    return n


def hazard_pass(lines):
    out = []
    window = []
    total = 0
    n_nops = 0
    for text in lines:
        c = Ins(text)
        if c.kind == "label":
            out.append(text)
            continue
        req = 0
        for (p, end) in window:
            dist = total - end
            nd = need(p, c)
            if nd > dist:
                req = max(req, nd - dist)
        if req:
            out.append(f"s_nop {req - 1}")
            total += req
            n_nops += 1
        out.append(text)
        total += c.states()
        window.append((c, total))
        window = [(p, e) for (p, e) in window if total - e < 14]
    return out, n_nops


class Prog:
    def __init__(self):
        self.lines = []
        self.nvm = 0
        self.nds = 0
        self.vm_done = 0
        self.ds_done = 0

    def __call__(self, text):
        for l in text.strip().split("\n"):
            l = l.strip()
            if not l:
                continue
            mn = l.split()[0]
            assert not mn.startswith(("buffer_", "global_", "ds_")), "use vm()/ds(): " + l
            self.lines.append(l)

    def raw(self, text):
        self.lines.append(text)

    def vm(self, text, counted=True):
        self.lines.append(text)
        if counted:
            self.nvm += 1
        return self.nvm

    def ds(self, text):
        self.lines.append(text)
        self.nds += 1
        return self.nds

    def wait(self, vm=None, ds=None, force=False):
        parts = []
        if vm is not None and (vm > self.vm_done or force):
            n = self.nvm - vm
            assert n >= 0
            if n > 63:
                n = 63
            parts.append(f"vmcnt({n})")
            self.vm_done = max(self.vm_done, self.nvm - n)
        if ds is not None and (ds > self.ds_done or force):
            n = min(self.nds - ds, 15)
            parts.append(f"lgkmcnt({n})")
            self.ds_done = max(self.ds_done, self.nds - n)
        if parts:
            self.lines.append("s_waitcnt " + " ".join(parts))

    def wait_all_ds(self):
        self.wait(ds=self.nds)

    def wait_all_vm(self):
        self.wait(vm=self.nvm)

    def pad(self, n=15):
        self.lines.append(f"s_nop {n}")

    def text(self):
        out, n = hazard_pass(self.lines)
        self.n_nops = n
        return "\n".join(("" if l.endswith(":") else "    ") + l for l in out)


def interleave(P, mains, fillers, start=0, end=None, per=None):
    n = len(mains)
    end = n if end is None else end
    slots = [[] for _ in range(n)]
    for group in fillers:
        items, s, e = group
        if not items:
            continue
        e = min(e, n)
        span = e - s
        for k, it in enumerate(items):
            slots[s + (k * span) // len(items)].append(it)
    for i, m in enumerate(mains):
        m()
        for f in slots[i]:
            f()


class Alloc:
    def __init__(self, free):
        self.free = set(free)

    def get(self, n, align=2, avoid=()):
        if n == 1:
            align = 1
        for r in sorted(self.free):
            if r % align == 0 and all((r + k) in self.free and (r + k) not in avoid for k in range(n)):
                for k in range(n):
                    self.free.remove(r + k)
                return r
        raise RuntimeError(f"no block of {n} free regs; free={sorted(self.free)}")

    def put(self, r, n):
        for k in range(n):
            assert (r + k) not in self.free
            self.free.add(r + k)


class Side:
    def __init__(self, P):
        self.P, self.q = P, []
        self.starve = 0

    def t(self, step, text, cost=None):
        for l in text.strip().split("\n"):
            l = l.strip()
            if l:
                mn = l.split()[0]
                c = 2 if (mn.startswith("v_permlane") or any(mn.startswith(x) for x in TRANS)) else 1
                self.q.append((step, cost or c, (lambda l=l: self.P(l)), mn.startswith("s_")))

    def a(self, step, text):
        n = len([l for l in text.strip().split("\n") if l.strip()])
        self.q.append((step, n, (lambda: self.P(text)), text.strip().startswith("s_")))

    def f(self, step, fn, cost=1):
        self.q.append((step, cost, fn, False))

    def drain(self):
        while self.q:
            self.q.pop(0)[2]()

    def take(self, step, budget, fresh, strict=False):
        if fresh and self.q and self.q[0][0] <= step and self.q[0][3]:
            budget += 1
        while self.q and self.q[0][0] <= step and budget > 0:
            c = self.q[0][1]
            if strict and c > budget:
                break
            if c > budget + 1 and not fresh and self.starve < 6:
                self.starve += 1
                break
            self.starve = 0
            self.q.pop(0)[2]()
            budget -= c
            fresh = False
        while self.q and self.q[0][0] <= step and self.q[0][1] == 0:
            self.q.pop(0)[2]()
        return budget


class Rec:
    def __init__(self):
        self.items = []

    def __call__(self, text):
        lines = [l.strip() for l in text.strip().split("\n") if l.strip()]
        for l in lines:
            mn = l.split()[0]
            if self.items and (mn.startswith(("s_cselect", "s_addc", "s_cmov", "s_subb"))):
                self.items[-1] += "\n" + l
            else:
                self.items.append(l)

    def into(self, side, step):
        for it in self.items:
            side.a(step, it)


def sizes_of(lines):
    import subprocess, tempfile, os
    d = tempfile.mkdtemp()
    open(d + "/t.s", "w").write('.amdgcn_target "amdgcn-amd-amdhsa--gfx950"\n.text\n' + "\n".join(lines) + "\n")
    subprocess.run(["clang", "-x", "assembler", "-target", "amdgcn-amd-amdhsa", "-mcpu=gfx950", "-c", d + "/t.s", "-o", d + "/t.o"], check=True)
    out = subprocess.run(["llvm-objdump", "-d", "--mcpu=gfx950", d + "/t.o"], capture_output=True, text=True).stdout
    sz = [4 * len(l.split("//")[1].split(":")[1].split("<")[0].split()) for l in out.split("\n") if "//" in l]
    it = iter(sz)
    res = [0 if l.strip().endswith(":") else next(it) for l in lines]
    assert next(it, None) is None
    return res


PROMOTE = ("v_add_f32", "v_mul_f32", "v_max_f32", "v_sub_f32", "v_exp_f32", "v_rcp_f32", "v_mov_b32", "v_and_b32", "v_xor_b32",
           "v_lshlrev_b32", "v_lshrrev_b32", "v_add_u32", "v_sub_u32", "v_mul_u32_u24", "v_fmac_f32", "v_cndmask_b32", "v_min_u32")


def align_pass(lines, minrun=5):
    sz = sizes_of(lines)
    out, osz = [], []
    off, i, floor, fixed = 0, 0, 0, 0
    n = len(lines)
    while i < n:
        j = i
        while j < n and sz[j] in (8, 0):
            j += 1
        run = [k for k in range(i, j) if sz[k]]
        plain = [k for k in run if not lines[k].strip().startswith("v_mfma")]
        dense = len(run) >= minrun and 4 * len(plain) >= 3 * len(run)
        if dense and off % 8:
            cand = next((k for k in range(len(out) - 1, max(floor, len(out) - 7) - 1, -1)
                         if osz[k] == 4 and out[k].split()[0] in PROMOTE), None)
            if cand is not None:
                mn = out[cand].split()[0]
                out[cand] = out[cand].replace(mn, mn + "_e64", 1)
                osz[cand] = 8
                off += 4
                fixed += 1
            elif len(run) >= minrun + 3:
                out.append("    s_nop 0")
                osz.append(4)
                off += 4
                fixed += 1
        for k in range(i, min(j + 1, n)):
            out.append(lines[k])
            osz.append(sz[k])
            off += sz[k]
        if dense:
            floor = len(out) - 1
        i = j + 1
    return out, fixed
```

```python
import sys
from asmlib import Prog, Alloc, Side, Rec, align_pass

NAME = "recurrent_scan__sliding_local_dilated__glu_gated_reglu__prompt"

A2_MT = 74 * 4096
A2_SIZE = 32 * A2_MT
B2_OFF = 0xA00000
B2_NT = 74 * 5120
B2_SIZE = 8 * B2_NT
ST_OFF = 0xE00000
ST_SIZE = 0x10000
FLAG_OFF = 0x8000
EF_OFF = 0x5000
RESET_WG = 254
TRACE_OFF = 0xF00000
OOB = 0x7FFF0000
X_BYTES = 2048 * 1280

sX, sWQKV, sWO, sWG, sWU, sWD, sOUT, sDBG, sWS = 4, 6, 8, 12, 14, 16, 18, 20, 22
rX, rW0, rW1, rA2, rB2, rST, rWR, rDBG, rOUT = 24, 28, 32, 36, 40, 44, 48, 52, 56
sW, sMT, sNT = 60, 61, 62
sT0, sT1, sT2, sT3 = 63, 64, 65, 66
sM0A, sM0B, sM0R = 67, 68, 69
sKA, sKB = 70, 71
sEXA = 72
sMK0, sMK1, sMK2 = 74, 76, 78
sRP, sSPIN = 80, 81
sPC = 82
sEXP = 83
sMT2, sNT2, sB2K = 84, 85, 86
sB2Y, sB2W, sA2Y, sA2S = 87, 88, 89, 3
sA2Y1, sA2Y2 = 12, 13
sTR = 90
sFLAG, sRC1 = 100, 101
sHM = 4
vTR = 2
vB2 = 3


def srd(r):
    return f"s[{r}:{r + 3}]"


def vq(r, n=4):
    return f"v[{r}:{r + n - 1}]"


def aq(r, n=4):
    return f"a[{r}:{r + n - 1}]"


class Cfg:
    trace = False
    tevery = 1
    quota_glu = (9, 9, 8)
    quota_qkv = (10, 10, 10, 9, 8)
    tot_glu = 11
    tot_qkv = 10
    pfnq = 6
    pfn = 6
    pf = ((-0.4, 2), (1.9, 8))
    pfq = ((-0.4, 2),)
    st = (1.4, 1.42, -0.4, -0.4, 1.45, 1.5, 1.55, 1.6, 1.65, 1.7)
    npre = (10, 6)
    rpd = (3, 3, 3, 3, 3)
    rpr = 4.5
    rps = (5, 5, 5, 6, 6)
    sig_glu = 7
    spf2 = 14
    spf = 8
    sig_qkv = 10
    fine_qkv = 12
    fine_glu = 20
    poll_glu = 11
    poll_qkv = 12
    map2 = 1
    n1_glu = 3
    nepi_glu = 0
    n1_qkv = 5
    ld_every = 10
    ntail = 10
    spoll = 14
    osc = ""
    rot = False
    nfirst = 1
    wpos = 10
    tail_every = 4
    defer = (0, 3)
    deferq = (0, 3)
    ochk = 190
    vsp = 4
    vspq = 3
    vsp2 = 4
    ssp = 4
    qpub = 0
    qst = 0
    gather = False
    enap = 8
    nsix = 99
    gnap = 16
    pchk = 1.2
    atouch = 0
    burst0 = 0
    xearly = False
    align = 8
    n2 = None
    n2q = None
    nvo = 0
    vbar = 26
    ntailq = -5
    ghead = 0
    gover = 1
    gmul = 0
    share = True
    kdiag = False
    oswap = 20
    fastq = 0
    psc = "sc1"
    fsc = "sc1"
    wlast = (17.9, 17.8)
    early_setup = False
    tpr = 1.5
    stw = 1.3
    bq = 10
    rdelay = 1
    rpg = 1
    wafter = 99
    touch = None
    snap = 16
    tail_rate = 3
    nov = 5
    tot19 = 8
    xpos = 1
    fine2_glu = 9
    boost = 6
    rstride = 2
    vmx = True
    wq = 0
    look = 8
    merge = True
    sbar = 5
    sgate = 4


def mk_srd(P, r, ptr, size, off=0):
    if off:
        P(f"s_add_u32 s{r}, s{ptr}, {off}")
        P(f"s_addc_u32 s{r + 1}, s{ptr + 1}, 0")
    else:
        P(f"s_mov_b32 s{r}, s{ptr}")
        P(f"s_mov_b32 s{r + 1}, s{ptr + 1}")
    P(f"s_mov_b32 s{r + 2}, {size}")
    P(f"s_mov_b32 s{r + 3}, 0x20000")


def smask(P, s, m):
    P(f"s_mov_b32 s{s}, 0x{m & 0xffffffff:x}")
    P(f"s_mov_b32 s{s + 1}, 0x{m >> 32:x}")


class Trace:
    def __init__(self, cfg):
        self.on = cfg.trace
        self.pend = []
        self.n = 0

    def pt(self, P, lane, real=False):
        if not self.on:
            return
        if len(self.pend) == 5:
            self.flush(P)
        s = sTR + 2 * (self.n % 5)
        self.n += 1
        P(f"{'s_memrealtime' if real else 's_memtime'} s[{s}:{s + 1}]")
        self.pend.append((s, lane))
        both = {4: 55, 13: 56, 18: 57, 23: 58, 28: 59, 33: 60, 37: 61, 44: 62, 50: 63, 35: 5, 36: 6, 40: 7}
        if lane in both:
            self.pt(P, both[lane], real=True)

    def flush(self, P, lazy=False):
        if not self.on or not self.pend:
            return
        if not lazy:
            P("s_waitcnt lgkmcnt(0)")
        for s, lane in self.pend:
            P(f"v_writelane_b32 v{vTR}, s{s}, {lane}")
        self.pend = []

    def store(self, P):
        if not self.on:
            return
        self.flush(P)
        mk_srd(P, rWR, sWS, 0x40000, TRACE_OFF)
        P(f"s_lshl_b32 s{sT0}, s2, 10")
        P(f"v_lshl_add_u32 v5, v0, 2, s{sT0}")
        P.vm(f"buffer_store_dword v{vTR}, v5, {srd(rWR)}, 0 offen")


def divc(P, dst, src, c):
    m = (65536 + c - 1) // c
    for x in range(1024):
        assert (x * m) >> 16 == x // c
    P(f"v_mul_u32_u24 v{dst}, {m}, v{src}")
    P(f"v_lshrrev_b32 v{dst}, 16, v{dst}")


class Stats:
    def __init__(self, P, base):
        self.P, self.b = P, base

    def addr(self, P):
        b = self.b
        P(f"s_and_b32 s{sT0}, s2, 4")
        P(f"s_lshl_b32 s{sT0}, s{sT0}, 8")
        P(f"s_and_b32 s{sT1}, s2, 0xf8")
        P(f"s_lshl2_add_u32 s{sT0}, s{sT1}, s{sT0}")
        P(f"s_and_b32 s{sT1}, s2, 3")
        P(f"s_lshl3_add_u32 s{sT0}, s{sT1}, s{sT0}")
        P(f"v_lshrrev_b32 v{b + 20}, 5, v0")
        P(f"v_add_u32 v{b + 20}, s{sT0}, v{b + 20}")
        P(f"v_mul_u32_u24 v{b + 22}, 1280, v{b + 20}")
        P(f"v_and_b32 v{b + 23}, 31, v0")
        P(f"v_lshl_add_u32 v{b + 21}, v{b + 23}, 2, v{b + 22}")

    def load(self, k):
        P, b = self.P, self.b
        self.tok = P.vm(f"buffer_load_dword v{b + k}, v{b + 21}, {srd(rX)}, 0 offen offset:{128 * k}")
        self.nld = getattr(self, "nld", 0) + 1

    def queue(self, sd, step):
        P, b = self.P, self.b
        e = lambda t: sd.t(step, t)
        def w():
            assert self.nld == 10
            P.wait(vm=self.tok)
        sd.f(step, w)
        for i in range(10):
            e(f"v_lshlrev_b32 v{b + 10 + i}, 16, v{b + i}")
            e(f"v_and_b32 v{b + i}, 0xffff0000, v{b + i}")
        s0, s1 = b + 21, b + 22

        def reduce32():
            e(f"v_add_f32 v{s0}, v{s0}, v{s1}")
            for sh in (8, 4, 2, 1):
                sd.t(step, f"v_add_f32_dpp v{s0}, v{s0}, v{s0} row_ror:{sh} row_mask:0xf bank_mask:0xf", 2)
            e(f"v_mov_b32 v{s1}, v{s0}")
            e(f"v_permlane16_swap_b32 v{s0}, v{s1}")
            e(f"v_add_f32 v{s0}, v{s0}, v{s1}")
            e(f"v_mul_f32 v{s0}, 0x3acccccd, v{s0}")

        e(f"v_add_f32 v{s0}, v{b}, v{b + 1}")
        e(f"v_add_f32 v{s1}, v{b + 10}, v{b + 11}")
        for i in range(2, 10):
            e(f"v_add_f32 v{s0}, v{s0}, v{b + i}")
            e(f"v_add_f32 v{s1}, v{s1}, v{b + 10 + i}")
        reduce32()
        for i in range(20):
            e(f"v_sub_f32 v{b + i}, v{b + i}, v{s0}")
        e(f"v_cvt_pk_bf16_f32 v{b + 23}, v{s0}, v{s0}")
        e(f"v_mul_f32 v{s0}, v{b}, v{b}")
        e(f"v_mul_f32 v{s1}, v{b + 1}, v{b + 1}")
        for i in range(2, 20):
            e(f"v_fmac_f32 v{s0 if i % 2 == 0 else s1}, v{b + i}, v{b + i}")
        e(f"v_lshlrev_b32 v{b + 23}, 16, v{b + 23}")
        reduce32()

        def rnd():
            e(f"v_cvt_pk_bf16_f32 v{s0}, v{s0}, v{s0}")
            e(f"v_lshlrev_b32 v{s0}, 16, v{s0}")
        rnd()
        e(f"v_add_f32 v{s0}, 0x3727c5ac, v{s0}")
        rnd()
        e(f"v_sqrt_f32 v{s0}, v{s0}")
        rnd()
        e(f"v_rcp_f32 v{s0}, v{s0}")
        e(f"v_lshlrev_b32 v{b + 20}, 2, v{b + 20}")
        e(f"v_and_b32 v{b}, 31, v0")
        e(f"v_mov_b32 v{b + 1}, {OOB}")
        e(f"v_cmp_eq_u32 vcc, 0, v{b}")
        e(f"v_lshl_add_u32 v{b + 20}, v{b}, 13, v{b + 20}")
        e(f"v_cndmask_b32 v{s0}, v{s0}, v{b + 23}, vcc")
        e(f"v_cmp_gt_u32 vcc, 2, v{b}")
        e(f"s_nop 0")
        e(f"v_cndmask_b32 v{b + 20}, v{b + 1}, v{b + 20}, vcc")

        def last():
            self.done = P.vm(f"buffer_store_dword v{s0}, v{b + 20}, {srd(rST)}, 0 offen sc1")
        sd.f(step, last, 2)


def early_signal(sd, step, P, t0, t1):
    sd.t(step, f"""
        s_lshr_b32 s{sT0}, s2, 3
        s_lshl_b32 s{sT0}, s{sT0}, 5
        s_and_b32 s{sT1}, s2, 7
        s_add_u32 s{sT0}, s{sT0}, s{sT1}
        s_lshl2_add_u32 s{sT0}, s{sT0}, {EF_OFF}
        v_cmp_eq_u32 vcc, 0, v0
        v_mov_b32 v{t0}, s{sT0}
        v_mov_b32 v{t1}, {OOB}
        v_cndmask_b32 v{t0}, v{t1}, v{t0}, vcc
        v_mov_b32 v{t1}, 1""")
    sd.f(step, lambda: P.vm(f"buffer_store_dword v{t1}, v{t0}, {srd(rST)}, 0 offen sc1"), 2)


class Poll:
    def __init__(self, P, va, vd, tag, kind):
        self.P, self.va, self.vd, self.tag, self.kind = P, va, vd, tag + kind, kind

    def ld(self):
        if self.kind != "e":
            return f"buffer_load_dword v{self.vd}, off, {srd(rDBG)}, 0{' offset:128' if self.kind == 'g' else ''} sc1"
        return f"buffer_load_dwordx4 {vq(self.vd)}, v{self.va}, {srd(rST)}, 0 offen sc1"

    def cmp(self):
        d = self.vd
        t = "" if self.kind != "e" else f"v_and_b32 v{d}, v{d}, v{d + 1}\nv_and_b32 v{d + 2}, v{d + 2}, v{d + 3}\nv_and_b32 v{d}, v{d}, v{d + 2}\n"
        return t + f"v_cmp_ne_u32 vcc, {1 if self.kind != 'e' else f's{sEXP}'}, v{d}"

    def issue(self, sd, step):
        P, a = self.P, self.va
        if self.kind == "e":
            sd.t(step, f"""v_lshrrev_b32 v{a}, 1, v1
                v_lshlrev_b32 v{a}, 3, v{a}
                v_and_or_b32 v{a}, v1, 1, v{a}
                s_lshl_b32 s{sT0}, s{sW}, 16
                s_add_u32 s{sT0}, s{sT0}, {EF_OFF}
                v_lshl_add_u32 v{a}, v{a}, 4, s{sT0}""")
            sd.a(step, f"s_cmp_eq_u32 s{sW}, 0\ns_cselect_b32 s{sEXP}, 1, 0")

        def f():
            self.tok = P.vm(self.ld())
        sd.f(step, f, 2)

    def check(self, sd, step):
        P = self.P
        sd.f(step, lambda: P.wait(vm=self.tok))
        sd.t(step, self.cmp())
        sd.a(step, f"s_nop 0\ns_cbranch_vccnz L_spin_{self.tag}\nL_back_{self.tag}:")

    def slow(self, nap=8):
        P = self.P
        P(f"L_spin_{self.tag}:")
        P(f"s_mov_b32 s{sSPIN}, 0")
        P(f"L_spin2_{self.tag}:")
        P(f"s_sleep {nap}")
        P.vm(self.ld(), counted=False)
        P(f"s_add_u32 s{sSPIN}, s{sSPIN}, 1")
        if Poll.trace:
            P(f"v_writelane_b32 v{vTR}, s{sSPIN}, {45 if self.kind == 'r' else 47}")
        P("s_waitcnt vmcnt(0)")
        P(self.cmp())
        P(f"s_cmp_lt_u32 s{sSPIN}, 0x40000")
        P("s_nop 1")
        P(f"s_cbranch_vccz L_back_{self.tag}")
        P(f"s_cbranch_scc1 L_spin2_{self.tag}")
        P(f"s_branch L_back_{self.tag}")


sB13, sA13 = 28, 29
LWO = 61440


def b2_reg(s, j):
    if s < 8:
        return aq(88 + 20 * s + 4 * j)
    if s < 12:
        return aq(20 * (s - 8) + 4 * j)
    return vq(96 + 20 * (s - 12) + 4 * j)


class Late:
    def __init__(self, P, plan, rot=False, n=95, cut=(0, 0)):
        plan = [u for u in plan if (u[2] < 14 - cut[0] if u[1] == "R" else u[2] >= cut[1])]
        n -= 5 * cut[0] + cut[1]
        self.P = P
        self.rot = rot
        self.q = []
        for step, kind, idx in plan:
            self.q += [(step, "R", idx, j) for j in range(5)] if kind == "R" else [(step, "W", idx, 0)]
        assert len(self.q) == n and len({u[1:] for u in self.q}) == n
        self.cur = None
        self.zsrd = False

    def arrange(self, step, lds_ok):
        rw = [u for u in self.q if u[0] <= step and u[1] == "W" and lds_ok]
        rr = [u for u in self.q if u[0] <= step and u[1] == "R"]
        self.q = rw + rr + [u for u in self.q if u not in rw and u not in rr]
        return len(rw) + len(rr)

    def ready(self, step):
        return self.q and self.q[0][0] <= step

    def unit(self):
        P = self.P
        step, kind, s, j = self.q.pop(0)
        preps = []
        if kind == "R":
            if self.cur != s:
                k = s if (not self.rot or s >= 12) else (s + 8) % 12
                preps.append(lambda: P(f"s_add_u32 s{sB2K}, s{sB2Y}, {k * 5120}" if s < 13 else f"s_mov_b32 s{sB2K}, s{sB13}"))
            self.cur = s
            off = f" offset:{j * 1024}" if 0 < j < 4 else ""
            assert s != 13 or self.zsrd
            r = rB2
            return step, False, preps, lambda: P.vm(f"buffer_load_dwordx4 {b2_reg(s, j)}, v{vB2 + (j >> 2)}, {srd(r)}, s{sB2K} offen{off} sc1")
        self.cur = None
        preps = [lambda: P(f"s_add_u32 m0, s{sM0A}, {LWO + s * 4096}"), lambda: P(f"s_add_u32 s{sB2K}, s{sB2W}, {s * 4096}")]
        return step, True, preps, lambda: P.vm(f"buffer_load_dwordx4 v{vB2}, {srd(rB2)}, s{sB2K} offen sc1 lds")

    def emit(self, count, step):
        while count > 0 and self.ready(step):
            _, _, preps, f = self.unit()
            for p in preps:
                p()
            f()
            count -= 1


def tile2_setup(P, cfg):
    P(f"s_and_b32 s{sT0}, s2, 7")
    P(f"s_lshr_b32 s{sT1}, s2, 3")
    if cfg.map2 == 1:
        P(f"s_lshr_b32 s{sMT2}, s{sT0}, 1")
        P(f"s_lshl_b32 s{sMT2}, s{sMT2}, 3")
        P(f"s_lshr_b32 s{sT2}, s{sT1}, 2")
        P(f"s_add_u32 s{sMT2}, s{sMT2}, s{sT2}")
        P(f"s_and_b32 s{sNT2}, s{sT0}, 1")
        P(f"s_lshl_b32 s{sNT2}, s{sNT2}, 2")
        P(f"s_and_b32 s{sT2}, s{sT1}, 3")
        P(f"s_add_u32 s{sNT2}, s{sNT2}, s{sT2}")
    elif cfg.map2 == 2:
        P(f"s_lshr_b32 s{sMT2}, s{sT0}, 1")
        P(f"s_and_b32 s{sT2}, s{sT1}, 7")
        P(f"s_lshl3_add_u32 s{sMT2}, s{sMT2}, s{sT2}")
        P(f"s_lshr_b32 s{sT2}, s{sT1}, 3")
        P(f"s_add_u32 s{sT2}, s{sT2}, s{sT1}")
        P(f"s_and_b32 s{sT2}, s{sT2}, 3")
        P(f"s_and_b32 s{sNT2}, s{sT0}, 1")
        P(f"s_lshl2_add_u32 s{sNT2}, s{sNT2}, s{sT2}")
    else:
        P(f"s_lshl_b32 s{sMT2}, s{sT0}, 2")
        P(f"s_lshr_b32 s{sT2}, s{sT1}, 3")
        P(f"s_add_u32 s{sMT2}, s{sMT2}, s{sT2}")
        P(f"s_and_b32 s{sNT2}, s{sT1}, 7")
    P(f"s_mul_i32 s{sT0}, s{sW}, 13")
    P(f"s_add_u32 s{sT0}, s{sT0}, 20")
    P(f"s_mul_i32 s{sT1}, s{sNT2}, {B2_NT}")
    P(f"s_mul_i32 s{sT2}, s{sT0}, 5120")
    P(f"s_add_u32 s{sB2Y}, s{sT1}, s{sT2}")
    P(f"s_add_u32 s{sB2W}, s{sT1}, s{sM0A}")
    P(f"s_mul_i32 s{sA2S}, s{sMT2}, {A2_MT}")
    P(f"s_lshl_b32 s{sT0}, s{sT0}, 12")
    P(f"s_add_u32 s{sA2Y}, s{sA2S}, s{sT0}")
    P(f"v_lshlrev_b32 v{vB2}, 4, v1")
    P(f"v_add_u32 v{vB2 + 1}, 4096, v{vB2}")


def b2_touch(role, sd, t0, t1):
    P, cfg = role.P, role.cfg
    if not cfg.touch:
        return
    R = Rec()
    R(f"s_sub_u32 s{sT0}, s{sB2W}, s{sM0A}")
    R(f"s_and_b32 s{sT1}, s{sW}, 1")
    R(f"s_add_u32 s{sT1}, s{sT1}, 71")
    R(f"s_mul_i32 s{sT1}, s{sT1}, 5120")
    R(f"s_add_u32 s{sT1}, s{sT1}, s{sT0}")
    R(f"s_mul_i32 s{sT2}, s{sW}, 5120")
    R(f"s_add_u32 s{sT0}, s{sT0}, s{sT2}")
    R(f"s_sub_u32 s{sT0}, s{sT0}, 10240")
    R(f"s_add_u32 s{sT2}, s{sB2Y}, {12 * 5120}")
    R(f"v_mov_b32 v{t0}, {OOB}")
    for lim, sr in ((15, sT0), (10, sT1), (5, sT2)):
        R(f"v_cmp_gt_u32 vcc, {lim}, v1")
        R(f"v_lshl_add_u32 v{t1}, v1, 10, s{sr}")
        R(f"s_nop 0")
        R(f"v_cndmask_b32 v{t0}, v{t0}, v{t1}, vcc")
    R(f"s_and_b32 s{sT0}, s{sMT2}, 7")
    R(f"s_lshl_b32 s{sT0}, s{sT0}, 7")
    R(f"v_add_u32 v{t0}, s{sT0}, v{t0}")
    R.into(sd, cfg.touch - 0.8)

    def f():
        assert role.nbar > role.early_ok
        P.vm(f"buffer_load_dword a255, v{t0}, {srd(rB2)}, 0 offen sc1")
    sd.f(cfg.touch, f, 2)


def xg_addr(P, d, t, u0, u1):
    P(f"s_lshl_b32 s{u0}, s{sMT2}, 6")
    P(f"s_lshl4_add_u32 s{u0}, s{sW}, s{u0}")
    P(f"s_lshl3_add_u32 s{u0}, s{u0}, s{sNT2}")
    P(f"s_mul_i32 s{u0}, s{u0}, 160")
    P(f"v_cmp_gt_u32 vcc, 32, v1")
    for q in range(3):
        if q:
            P(f"v_add_u32 v{t}, {64 * q}, v1")
        divc(P, t, t if q else 1, 10)
        P(f"v_mul_u32_u24 v{t}, 1120, v{t}")
        P(f"v_add3_u32 v{d + q}, v{t}, v{vB2}, s{u0}")
    P(f"v_mov_b32 v{t}, {OOB}")
    P(f"v_cndmask_b32 v{d + 2}, v{t}, v{d + 2}, vcc")
    P(f"s_mul_i32 s{u1}, s{sW}, 3072")
    P(f"s_add_u32 s{u1}, s{u1}, {LWO}")


def common_srds(P):
    mk_srd(P, rST, sWS, ST_SIZE, ST_OFF)
    mk_srd(P, rDBG, sDBG, 256)
    mk_srd(P, rA2, sWS, A2_SIZE)
    mk_srd(P, rB2, sWS, B2_SIZE, B2_OFF)


def phase1_loop(P, cfg, role, tr):
    mf, frags, bars = role.mf, role.frags, role.bars
    N = len(mf)
    per = N // 20
    tok, left = {}, {}
    state = {"m0": None, "ka": None, "kb": None}
    barpos = lambda b: -1 if b < 0 else bars[b]
    role.t, role.nbar = -1, 0

    def unit(kind, idx, q, _a, need):
        m0, (kreg, kval), load = role.dma(kind, idx, q)
        preps = []
        if state["m0"] != m0:
            preps.append(lambda m0=m0: P(f"s_add_u32 m0, s{m0[0]}, {m0[1]}"))
            state["m0"] = m0
        key = "ka" if kreg == sKA else "kb"
        if state[key] != kval:
            preps.append(lambda: P(f"s_mov_b32 s{kreg}, {kval}"))
            state[key] = kval

        def f():
            tok[need] = load()
            left[need] -= 1
        return preps, f

    def now(u):
        preps, f = unit(*u)
        for p in preps:
            p()
        f()

    order = list(role.units)
    for u in order:
        left[u[4]] = left.get(u[4], 0) + 1
    timed = role.timed()

    def timed_now(lo, hi):
        for when, items in timed:
            if lo < when <= hi:
                for _, f in items:
                    f()
    timed_now(-9, -1)
    while order[0][4] < 0:
        now(order.pop(0))
    role.pre_barrier()
    timed_now(-1, -0.5)
    for _ in range(role.npre):
        assert order[0][3] < 0
        now(order.pop(0))
    timed_now(-0.5, -1e-9)
    tr.pt(P, 3)
    P.wait(vm=tok[-1], ds=P.nds)
    P("s_barrier")
    tr.pt(P, 4)

    slots = [[] for _ in range(N)]
    cap = [2] * N
    for p in bars:
        cap[p - 1] -= 2
    for s in range(20):
        quota = role.quota[min(s, len(role.quota) - 1)]
        extra = list(role.extra.get(s, []))
        T = quota + len(extra)
        if role.late.arrange(s + 0.5, True):
            T = role.tot if s < 19 else role.tot19
        nring, nx = 0, len(extra)
        for k in range(T):
            p = s * per + 1 + (k * (per - 1)) // T
            if s == 0 and cfg.burst0:
                nb = min(cfg.burst0, T)
                p = 2 + 3 * k if k < nb else 3 * nb + 1 + ((k - nb + 1) * (per - 2 - 3 * nb)) // (T - nb)
            if cfg.vmx and (p + 1 in bars or p + 2 in bars):
                p -= 2 if p + 1 in bars else 1
            t = p / per
            nxt = next((x for x, u in enumerate(order) if barpos(u[3]) < p), None)
            if nxt is not None and (not extra or (T - k > len(extra) and nring < -(-(T - nx) * (k + 1) // T))):
                preps, f = unit(*order.pop(nxt))
                nring += 1
            elif extra and (len(extra[0]) < 3 or extra[0][2] < p):
                m0, f = extra.pop(0)[:2]
                preps = []
                if m0:
                    preps = [lambda m0=m0: P(f"s_add_u32 m0, s{m0[0]}, {m0[1]}")]
                    state["m0"] = m0
            elif role.late.arrange((p - 1) / per, t < role.wlast):
                _, um0, preps, g = role.late.unit()
                if um0:
                    state["m0"] = None

                def f(g=g):
                    assert role.nbar > role.early_ok
                    g()
            else:
                continue
            for k_, pp in enumerate(preps):
                g = p - len(preps) + k_
                if g < 0 or slots[g]:
                    g = p - 1
                if slots[g]:
                    cap[g] -= 1
                slots[g].append(pp)
            slots[p].append(f)
            cap[p] -= 2 if cfg.vmx else 1
        assert not extra
    assert not order
    fixed = role.fixed()
    for when, items in timed:
        if when >= 0:
            g = max(1, int(when * per))
            fixed = merge(fixed, {g - 1: items[:-1], g: items[-1:]})
    for g, items in fixed.items():
        for c, f in items:
            slots[g].append(f)
            cap[g] -= c
    first, last, seq = {}, {}, []
    for n, (_, ids) in enumerate(mf):
        for i in ids:
            if i not in first:
                first[i] = n
                seq.append(i)
            last[i] = n
    for n in set(first.values()):
        if n:
            cap[n - 1] -= 1
    prev, rtok, head = {}, {}, []
    todo = []
    for i in seq:
        texts, key, vis, _ = frags[i]
        e = 0 if vis < 0 else bars[vis]
        if key in prev:
            e = max(e, last[prev[key]] + cfg.rdelay)
        prev[key] = i
        todo.append((e, first[i], i))
    cnt = [0] * N
    for e, fu, i in sorted(todo):
        for k, text in enumerate(frags[i][0]):
            def f(i=i, text=text):
                rtok[i] = P.ds(text)
            if fu < role.nhead:
                head.append(f)
                continue
            lim = fu - 7
            rel = frags[i][3]
            if rel is not None and rel < len(bars):
                lim = min(lim, bars[rel] - 6)
            assert e <= lim, (i, e, lim)
            rest = len(frags[i][0]) - 1 - k
            if k and cfg.rstride > 1 and e + cfg.rstride * (rest + 1) <= lim and i[0] == "w" and len(frags[i][0]) > 4:
                e += cfg.rstride
            g = next((g for g in range(e, lim + 1 - rest) if cap[g] > 0 and cnt[g] < cfg.rpg), None)
            if g is None:
                g = next((g for g in range(e, lim + 1) if cap[g] > 0 and cnt[g] < 2), None)
            if g is None:
                g = min(range(e, lim + 1), key=lambda g: (-cap[g], g))
            e = g
            slots[g].append(f)
            cap[g] -= 1
            cnt[g] += 1
    for f in head:
        f()
    sd = role.side
    for n, (text, ids) in enumerate(mf):
        role.t = n / per
        if n % (per * cfg.tevery) == 0:
            tr.pt(P, 8 + n // per)
        if n in bars:
            b = bars.index(n)
            assert left.get(b, 0) == 0, b
            need = max(tok.get(b, 0), role.barrier_needs(b) or 0)
            dsn = max([rtok[i] for i in frags if frags[i][3] == b] + [role.barrier_ds(b) or 0])
            P.wait(vm=need or None, ds=dsn or None)
            P("s_barrier")
            role.nbar += 1
            tr.flush(P, lazy=True)
        P.wait(ds=max(rtok[i] for i in ids))
        P(text)
        for f in slots[n]:
            f()
        b1 = role.side2.take(role.t, cap[n], not slots[n] and cap[n] == 2)
        had = hasattr(role.stats, "done")
        sd.take(role.t, b1 + (role.t < cfg.boost), not slots[n] and b1 == 2)
        if not had and hasattr(role.stats, "done"):
            print(type(role).__name__, "statistics stored at t =", round(role.t, 2), file=sys.stderr)
    assert not sd.q and not role.side2.q, len(sd.q)
    print(type(role).__name__, "weight loads left after the loop:", len(role.late.q), "W:", sum(u[1] == "W" for u in role.late.q), file=sys.stderr)
    tr.pt(P, 28)


def spread(items, lo, hi):
    nv = sum(1 for c, _ in items if c > 1)
    out, k = {}, 0
    for c, f in items:
        g = lo + 1 + (k * (hi - lo - 1)) // max(nv, 1)
        if c > 1:
            k += 1
        else:
            g -= 1
        out.setdefault(g, []).append((c, f))
    return out


def merge(*ds):
    out = {}
    for d in ds:
        for g, it in d.items():
            out.setdefault(g, []).extend(it)
    return out


class GLU:
    LB = 40960
    LA = [106496, 0]
    LR = 143360
    ACC = 64
    vAa, vBa, vRB, vRP, vST, vH, vRA, vRB2 = 5, 11, 15, 19, 24, 28, 54, 60
    vM = (24, 25, 26, 27, 34, 35)
    aRP = 160
    nhead = 8

    def __init__(self, P, cfg):
        self.P, self.cfg = P, cfg
        self.quota, self.tot, self.npre, self.wlast = cfg.quota_glu, cfg.tot_glu, cfg.npre[0], cfg.wlast[0]
        self.tot19 = cfg.tot19
        self.stats = Stats(P, self.vST)
        self.poll = Poll(P, 48, 24, "glu", "g" if cfg.gather else "e")
        self.pollr = Poll(P, 58, 53, "glu", "r")
        self.side = Side(P)
        self.side2 = Side(P)
        self.plan()
        e = cfg.poll_glu + cfg.pchk + 0.15
        if not cfg.gather:
            e = min(p for p in self.bars if p > (e + 0.05) * 48) / 48
        bt = lambda h: max(e, self.bars[self.ge(h)] / 48)
        self.late = Late(P, [(e, "W", k) for k in range(17, 25)] + [(e, "R", k) for k in range(8)]
                         + [(bt(15), "W", k) for k in range(7, 11)] + [(bt(16), "W", k) for k in (3, 4, 5, 6, 11, 12, 13, 14, 15, 16)]
                         + [(bt(17), "W", k) for k in range(3)]
                         + [(19.6, "R", 10)] + [(20, "R", k) for k in (8, 9, 11)] + [(21, "R", 12), (22, "R", 13)], cut=cfg.defer)
        self.extra = {}
        self.early_ok = 999
        self.build_side()

    def cs(self, j):
        return (36, 40, 44, 48, 8, 12, 16, 20)[j]

    def plan(self):
        self.mf, self.frags, self.units = [], {}, []
        have = [h for h in range(19) if h % 2 or h < self.cfg.fine_glu or h > self.cfg.fine2_glu]
        self.bars = [48 * h + 24 for h in have] + [908, 957]
        le = lambda t: max([k for k, u in enumerate(have) if u <= t], default=-1)
        ge = lambda t: -1 if t < 0 else min(k for k, u in enumerate(have) if u >= t)
        self.le, self.ge = le, ge
        for h in range(20):
            S = h // 2
            if h % 2 == 0:
                self.units += [("A", S, q, ge(h - 4), le(h - 1)) for q in range(6)]
                for i in range(6):
                    self.frags["x", S, i] = ([f"ds_read_b128 {aq(8 * i + 4 * ks)}, v{self.vRA + 2 * (S % 2) + ks} offset:{i * 2048}"
                                              for ks in range(2)], ("x", i), le(h - 1), ge(h))
            self.units += [("B", h, q, ge(h - 5), le(min(h, 18) - 1)) for q in range(4)]
            for u in range(2):
                slot, pair = (h, 1 - u) if h < 18 else (18 + u, 19 - h)
                mat = slot % 2
                wr = lambda t, ks: 48 + 16 * u + 8 * t + 4 * ks
                reg, off = (self.vRB, (3 - slot % 5) * 16384) if slot % 5 < 4 else (self.vRB2, 0)
                self.frags["w", h, u] = ([f"ds_read_b64_tr_b16 {aq(wr(t, ks) + 2 * half, 2)}, v{reg + 2 * pair + t} "
                                          f"offset:{off + ks * 8192 + half * 1024}"
                                          for t in range(2) for ks in range(2) for half in range(2)], ("w", u),
                                         le(min(h, 18) - 1), ge(h) if h < 18 else None)
                for n, i in enumerate((5, 4, 3, 2, 1, 0)):
                    for t, ks in ((0, 0), (0, 1), (1, 1), (1, 0)):
                        fresh = S == 0 and ks == t
                        t ^= n & 1
                        d = vq(self.acc(4 * mat + 2 * pair + t, i))
                        self.mf.append((f"v_mfma_f32_16x16x32_bf16 {d}, {aq(wr(t, ks))}, {aq(8 * i + 4 * ks)}, {'0' if fresh else d}",
                                        [("w", h, u), ("x", S, i)]))

    def acc(self, j, i):
        return self.ACC + (j * 6 + i) * 4

    def prologue(self):
        P = self.P
        t0, t1, t2, t3 = 48, 49, 50, 51
        P(f"s_mul_i32 s{sT0}, s{sMT}, 188")
        P(f"v_lshrrev_b32 v{t0}, 3, v0")
        P(f"v_lshrrev_b32 v{t1}, 4, v0")
        P(f"v_xor_b32 v{t2}, v{t1}, v0")
        P(f"v_and_b32 v{t2}, 7, v{t2}")
        P(f"v_cmp_gt_u32 vcc, 28, v{t0}")
        P(f"v_add_u32 v{t0}, s{sT0}, v{t0}")
        P(f"v_mul_u32_u24 v{t0}, 1280, v{t0}")
        P(f"v_lshl_add_u32 v{self.vAa}, v{t2}, 4, v{t0}")
        for q in range(1, 6):
            P(f"v_add_u32 v{self.vAa + q}, {q * 32 * 1280}, v{self.vAa}")
        P(f"v_mov_b32 v{t3}, {OOB}")
        P(f"v_cndmask_b32 v{self.vAa + 5}, v{t3}, v{self.vAa + 5}, vcc")
        P(f"v_lshrrev_b32 v{t0}, 4, v1")
        P(f"v_lshlrev_b32 v{t1}, 1, v{t0}")
        P(f"v_xor_b32 v{t1}, v{t1}, v0")
        P(f"v_and_b32 v{t1}, 15, v{t1}")
        P(f"s_cmp_eq_u32 s{sNT}, 13")
        P(f"s_cselect_b32 s{sT2}, 8, 16")
        P(f"v_mul_u32_u24 v{t0}, 3456, v{t0}")
        P(f"s_mul_i32 s{sT1}, s{sW}, {16 * 3456}")
        P(f"s_lshl_b32 s{sT0}, s{sNT}, 8")
        P(f"s_add_u32 s{sT1}, s{sT1}, s{sT0}")
        for q in (0, 2):
            if q:
                P(f"v_xor_b32 v{t1}, 8, v{t1}")
                P(f"s_add_u32 s{sT1}, s{sT1}, {8 * 3456 - 2048}")
            P(f"v_cmp_gt_u32 vcc, s{sT2}, v{t1}")
            P(f"v_lshlrev_b32 v{t2}, 4, v{t1}")
            P(f"v_add3_u32 v{t2}, v{t2}, v{t0}, s{sT1}")
            P(f"v_cndmask_b32 v{self.vBa + q}, v{t3}, v{t2}, vcc")
            P(f"v_add_u32 v{self.vBa + q + 1}, {4 * 3456 - 1024}, v{self.vBa + q}")
        P(f"s_lshl_b32 s{sM0B}, s{sW}, 12")
        P(f"s_cmp_eq_u32 s{sW}, 3")
        P(f"s_cselect_b32 s{sEXA + 1}, 0x00ffffff, -1")
        P(f"s_mov_b32 s{sEXA}, -1")
        self.stats.addr(P)
        for r, n in ((rX, X_BYTES), (rW0, 640 * 3456), (rW1, 640 * 3456), (rOUT, 640 * 3456)):
            P(f"s_mov_b32 s{r + 2}, {n}")
            P(f"s_mov_b32 s{r + 3}, 0x20000")
        if any(w <= -1 for w, _ in self.cfg.pf):
            self.pf_setup(P)
        P(f"s_cmp_lt_u32 s{sW}, 2")
        P("s_waitcnt lgkmcnt(0)")
        P(f"s_mov_b64 s[{rX}:{rX + 1}], s[{sX}:{sX + 1}]")
        P(f"s_cselect_b64 s[{rOUT}:{rOUT + 1}], s[{sWG}:{sWG + 1}], s[{sWU}:{sWU + 1}]")
        P(f"s_mov_b64 s[{rW0}:{rW0 + 1}], s[{sWG}:{sWG + 1}]")
        P(f"s_mov_b64 s[{rW1}:{rW1 + 1}], s[{sWU}:{sWU + 1}]")

    def pre_barrier(self):
        P = self.P
        t0, t1, t2, t3 = 48, 49, 50, 51
        if not any(w <= -1 for w, _ in self.cfg.pf):
            self.pf_setup(P)
        for k in range(4):
            P(f"v_mov_b32 v{60 + k}, 0x3f803f80")
        P(f"v_and_b32 v{t0}, 7, v0")
        P(f"s_and_b32 s{sT0}, s{sW}, 1")
        P(f"s_mul_i32 s{sT0}, s{sT0}, {self.LA[0]}")
        P(f"s_add_u32 s{sT0}, s{sT0}, {191 * 128}")
        P(f"v_lshl_add_u32 v{t0}, v{t0}, 4, s{sT0}")
        P.ds(f"ds_write_b128 v{t0}, {vq(60)}")
        P(f"v_and_b32 v{t0}, 15, v0")
        P(f"v_bfe_u32 v{t1}, v0, 4, 2")
        P(f"v_lshrrev_b32 v{t2}, 1, v{t0}")
        P(f"v_xor_b32 v{t2}, v{t2}, v{t1}")
        P(f"v_lshlrev_b32 v{t2}, 4, v{t2}")
        P(f"v_lshl_add_u32 v{t2}, v{t0}, 7, v{t2}")
        P(f"s_lshr_b32 s{sT0}, s{sW}, 1")
        P(f"s_mul_i32 s{sT0}, s{sT0}, 12288")
        P(f"v_add_u32 v{self.vRA + 2}, s{sT0}, v{t2}")
        P(f"v_xor_b32 v{self.vRA + 3}, 64, v{self.vRA + 2}")
        P(f"v_add_u32 v{self.vRA}, {self.LA[0]}, v{self.vRA + 2}")
        P(f"v_add_u32 v{self.vRA + 1}, {self.LA[0]}, v{self.vRA + 3}")
        P(f"v_bfe_u32 v{t0}, v0, 2, 2")
        P(f"v_lshl_add_u32 v{t2}, v{t1}, 3, v{t0}")
        P(f"v_and_b32 v{t3}, 3, v0")
        P(f"v_lshlrev_b32 v{t3}, 3, v{t3}")
        P(f"v_lshl_add_u32 v{t2}, v{t2}, 8, v{t3}")
        P(f"v_add_u32 v{t2}, {self.LB}, v{t2}")
        P(f"v_bfe_u32 v{t3}, v0, 2, 3")
        P(f"s_and_b32 s{sT0}, s{sW}, 1")
        P(f"s_lshl_b32 s{sT0}, s{sT0}, 2")
        P(f"v_xor_b32 v{t3}, s{sT0}, v{t3}")
        P(f"v_lshl_add_u32 v{self.vRB}, v{t3}, 5, v{t2}")
        for k in range(1, 4):
            P(f"v_xor_b32 v{self.vRB + k}, {32 * k}, v{self.vRB}")
        for k in range(4):
            P(f"v_subrev_u32 v{self.vRB2 + k}, 16384, v{self.vRB + k}")
        for it in getattr(self, "setup", []):
            P(it)

    def pf_setup(self, P):
        t0, t1, t3 = 48, 49, 51
        divc(P, t0, 1, 3)
        P(f"v_mul_u32_u24 v{t0}, 29, v{t0}")
        P(f"s_mul_i32 s{sT0}, s{sMT}, 3")
        P(f"s_min_u32 s{sT0}, s{sT0}, 29")
        P(f"v_add3_u32 v{t0}, v{t0}, v1, s{sT0}")
        P(f"v_mul_u32_u24 v{t0}, 3456, v{t0}")
        P(f"v_cmp_gt_u32 vcc, {3 * self.cfg.pfn}, v1")
        P(f"s_and_b32 s{sT0}, s{sW}, 1")
        P(f"s_lshl1_add_u32 s{sT0}, s{sNT}, s{sT0}")
        P(f"s_min_u32 s{sT0}, s{sT0}, 26")
        P(f"s_lshl_b32 s{sT0}, s{sT0}, 7")
        P(f"v_add_u32 v{t0}, s{sT0}, v{t0}")
        P(f"v_cndmask_b32 v52, v{t3}, v{t0}, vcc")

    def timed(self):
        P, cfg = self.P, self.cfg
        out = [(w, [(1, lambda f=f: P(f"s_mov_b32 s{sT3}, {f * 32 * 3456}")),
                    (1, lambda: P.vm(f"buffer_load_dword a255, v52, {srd(rOUT)}, s{sT3} offen"))]) for w, f in cfg.pf]
        out += [(w, [(1, lambda k=k: self.stats.load(k))]) for k, w in enumerate(cfg.st)]
        return out

    def build_side(self):
        P, sd, s2, cfg = self.P, self.side, self.side2, self.cfg
        t0, t1, t2, t3 = 48, 49, 50, 51
        R = Rec()
        R(f"s_mul_i32 s{sM0R}, s{sW}, 5120")
        R(f"s_add_u32 s{sM0R}, s{sM0R}, {self.LR}")
        R(f"s_mul_i32 s{sT0}, s{sMT}, 14")
        R(f"s_add_u32 s{sT0}, s{sT0}, s{sNT}")
        R(f"s_lshl_b32 s{sFLAG}, s{sT0}, 7")
        R(f"s_add_u32 s{sFLAG}, s{sFLAG}, {FLAG_OFF}")
        R(f"s_min_u32 s{sT0}, s{sT0}, 147")
        R(f"s_and_b32 s{sT1}, s{sT0}, 1")
        R(f"s_lshl2_add_u32 s{sT1}, s{sT1}, s{sW}")
        R(f"s_lshr_b32 s{sT0}, s{sT0}, 1")
        R(f"s_mul_i32 s{sRP}, s{sT1}, {B2_NT}")
        R(f"s_mul_i32 s{sT2}, s{sT0}, 5120")
        R(f"s_add_u32 s{sRP}, s{sRP}, s{sT2}")
        R(f"s_mul_i32 s{sT1}, s{sT1}, 160")
        sB, sC2, sU = sT2, sMK1, sMK1 + 1
        R(f"s_lshl_b32 s{sB}, s{sT0}, 5")
        R(f"s_sub_u32 s{sB}, s{sB}, 640")
        R(f"s_mul_i32 s{sU}, s{sT0}, 160")
        R(f"s_sub_u32 s{sU}, s{sU}, {160 * 16 - 16}")
        R(f"s_mov_b32 s{rWR + 2}, {1728 * 1280}")
        R(f"s_mov_b32 s{rWR + 3}, 0x20000")
        R(f"s_cmp_lt_u32 s{sT0}, 20")
        R(f"s_cselect_b32 s{sB}, s{sU}, s{sB}")
        R(f"s_cselect_b32 s{sC2}, 20, 4")
        R(f"s_cmp_lt_u32 s{sT0}, 20")
        R(f"s_cselect_b64 s[{rWR}:{rWR + 1}], s[{sWO}:{sWO + 1}], s[{sWD}:{sWD + 1}]")
        R(f"s_cmov_b32 s{rWR + 2}, {640 * 1280}")
        R(f"s_lshl_b32 s{sRC1}, s{sC2}, 2")
        R(f"s_mul_i32 s{sU}, s{sT0}, 40")
        R(f"s_cmp_lt_u32 s{sT0}, 16")
        R(f"s_cselect_b32 s{sB}, s{sU}, s{sB}")
        R(f"s_cmov_b32 s{sC2}, 4")
        R(f"s_cmov_b32 s{sRC1}, 20")
        for q in range(5):
            R(f"v_add_u32 v{t0}, {64 * q}, v1")
            divc(R, t1, t0, 10)
            R(f"v_mul_u32_u24 v{t2}, 10, v{t1}")
            R(f"v_sub_u32 v{t0}, v{t0}, v{t2}")
            R(f"v_lshrrev_b32 v{t2}, 4, v{t1}")
            R(f"v_mul_u32_u24 v{t2}, s{sRC1}, v{t2}")
            R(f"v_bfe_u32 v{t3}, v{t1}, 2, 2")
            R(f"v_mad_u32_u24 v{t2}, v{t3}, s{sC2}, v{t2}")
            R(f"v_and_b32 v{t1}, 3, v{t1}")
            R(f"v_add3_u32 v{t2}, v{t2}, v{t1}, s{sB}")
            R(f"v_mul_u32_u24 v{t2}, 1280, v{t2}")
            R(f"v_lshlrev_b32 v{t0}, 4, v{t0}")
            R(f"v_add3_u32 v{self.vRP + q}, v{t0}, v{t2}, s{sT1}")
        if cfg.early_setup:
            self.setup, self.rp_ready = R.items, True
        else:
            R.into(sd, 0)
        sd.f(0, lambda: setattr(self, "rp_ready", True), 0)
        R = Rec()
        R(f"v_lshrrev_b32 v{t0}, 2, v1")
        R(f"v_mul_u32_u24 v{t0}, 160, v{t0}")
        R(f"v_add_u32 v{t0}, s{sM0R}, v{t0}")
        R(f"v_and_b32 v{t1}, 3, v1")
        R(f"v_lshl_add_u32 v58, v{t1}, 4, v{t0}")
        R(f"v_lshl_add_u32 v59, v{t1}, 3, v{t0}")
        common_srds(R)
        tile2_setup(R, cfg)
        R.into(sd, 0)
        sd.f(0, lambda: setattr(self, "srd_ready", True), 0)
        self.stats.queue(sd, max(cfg.st) + cfg.stw)
        self.pollr.issue(sd, 0)
        for q in range(5):
            def f(q=q):
                assert self.rp_ready
                self.tokR = P.vm(f"buffer_load_dwordx4 v{self.vRP + q}, {srd(rWR)}, 0 offen lds")
            self.extra.setdefault(cfg.rpd[q], []).append(((sM0R, q * 1024), f))

        def w():
            assert self.srd_ready and self.t > max(cfg.rpd) + 1
            P.wait(vm=self.tokR)
        s2.f(cfg.rpr, w)
        for j in range(5):
            for half in range(2):
                def f(j=j, half=half):
                    off = half * 2560 + ((j >> 1) * 64 + (j & 1) * 8 if j < 4 else 128)
                    self.tkR = (P.ds(f"ds_read_b64_tr_b16 {aq(self.aRP + 4 * j + 2 * half, 2)}, v{58 if j < 4 else 59} offset:{off}"), j, half)
                s2.f(cfg.rpr, f)
        for j in range(5):
            def f(j=j):
                assert self.tkR[1:] == (4, 1)
                P.wait(ds=self.tkR[0])
                off = f" offset:{j * 1024}" if 0 < j < 4 else ""
                self.tokRS = P.vm(f"buffer_store_dwordx4 {aq(self.aRP + 4 * j)}, v{vB2 + (j >> 2)}, {srd(rB2)}, s{sRP} offen{off} sc1")
            self.extra.setdefault(cfg.rps[j], []).append((None, f))
        self.SIG = self.ge(cfg.sig_glu)
        assert cfg.sig_glu > max(cfg.rps)
        self.pollr.check(sd, self.bars[self.SIG] / 48 - 0.4)
        early_signal(sd, self.bars[self.SIG] / 48, P, t0, t1)
        assert cfg.poll_glu + 1 > max([w for w, _ in cfg.pf] + [0])
        self.poll.issue(sd, cfg.poll_glu)
        self.poll.check(sd, cfg.poll_glu + cfg.pchk)
        sd.f(0, lambda: setattr(self, "early_ok", -1 if self.cfg.gather else self.nbar), 0)
        R = Rec()
        R(f"s_mul_i32 s{sT0}, s{sMT}, 188")
        R(f"s_lshr_b32 s{sT1}, s{sW}, 1")
        R(f"s_mul_i32 s{sT1}, s{sT1}, 96")
        R(f"s_add_u32 s{sT2}, s{sT0}, 188")
        R(f"s_min_u32 s{sT2}, s{sT2}, 2048")
        R(f"s_add_u32 s{sT0}, s{sT0}, s{sT1}")
        R(f"s_and_b32 s{sT1}, s{sW}, 1")
        R(f"s_add_u32 s{sT1}, s{sT1}, s{sNT}")
        R(f"s_cmp_eq_u32 s{sT1}, 14")
        R(f"s_cselect_b32 s{sT2}, 0, s{sT2}")
        R(f"s_mov_b32 s{sT1}, {A2_MT}")
        u0, u1 = 52, 53
        R(f"v_and_b32 v{u0}, 48, v0")
        R(f"v_mov_b32 v{u1}, {OOB}")
        R(f"v_and_b32 v{t0}, 15, v0")
        R(f"v_add_u32 v{t0}, s{sT0}, v{t0}")
        for i in range(6):
            if i:
                R(f"v_add_u32 v{t0}, 16, v{t0}")
            R(f"v_cmp_gt_u32 vcc, s{sT2}, v{t0}")
            R(f"v_lshrrev_b32 v{t1}, 6, v{t0}")
            R(f"v_mul_lo_u32 v{t1}, v{t1}, s{sT1}")
            R(f"v_bfe_u32 v{t2}, v{t0}, 4, 2")
            R(f"v_lshl_add_u32 v{t1}, v{t2}, 10, v{t1}")
            R(f"v_and_or_b32 v{t2}, v{t0}, 15, v{u0}")
            R(f"v_lshl_add_u32 v{t1}, v{t2}, 4, v{t1}")
            R(f"v_cndmask_b32 v{self.vH + i}, v{u1}, v{t1}, vcc")
            R(f"v_min_u32 v{t1}, 2047, v{t0}")
            R(f"v_lshlrev_b32 v{self.vM[i]}, 2, v{t1}")
        R.into(sd, 0)
        sd.f(0, lambda: setattr(self, "m_ok", True), 0)
        b2_touch(self, sd, t0, t1)
        if cfg.xearly:
            R = Rec()
            xg_addr(R, self.vRP, t0, sT0, sM0R)
            R.into(sd, 0)
            sd.f(0, lambda: setattr(self, "x_ok", True), 0)
            for q, (_, g) in enumerate(resid_units(P, {}, reg=self.vRP)):
                def f(g=g):
                    assert self.x_ok and self.nbar > self.ge(17)
                    g()
                self.extra.setdefault(17, []).append(((sM0R, 0), f, self.bars[self.ge(17)] + 1))
        for i in range(6):
            def f(i=i):
                assert self.early_ok < self.nbar and self.m_ok
                self.tokM = P.vm(f"buffer_load_dword v{self.vM[i]}, v{self.vM[i]}, {srd(rST)}, 0 offen sc1")
            self.extra.setdefault(15 + i // 2, []).append((None, f))
        R = Rec()
        R(f"s_and_b32 s{sT0}, s{sW}, 1")
        R(f"s_lshl_b32 s{sT1}, s{sT0}, 9")
        R(f"v_and_b32 v6, 48, v0")
        R(f"v_add_u32 v6, s{sT1}, v6")
        R(f"s_lshl1_add_u32 s{sT0}, s{sNT}, s{sT0}")
        R(f"s_lshl_b32 s{sT0}, s{sT0}, 13")
        R(f"s_add_u32 s{sT0}, s{sT0}, {20 * 4096}")
        R(f"s_add_u32 s{sT1}, s{sT0}, 4096")
        R(f"s_cmp_ge_u32 s{sW}, 2")
        R(f"s_cselect_b32 s{sMK0}, 0x80008000, 0")
        R(f"s_mov_b32 s{sMK0 + 1}, s{sMK0}")
        R(f"v_lshlrev_b32 v5, 4, v0")
        R(f"v_add_u32 v5, 4096, v5")
        R(f"v_cndmask_b32 v5, v5, v6, s[{sMK0}:{sMK0 + 1}]")
        R.into(sd, 17)
        sd.f(17, lambda: setattr(self, "epi_ok", True), 0)

    def dma(self, kind, idx, q):
        P = self.P
        if kind == "A":
            def load():
                if q == 5:
                    P(f"s_mov_b64 exec, s[{sEXA}:{sEXA + 1}]")
                t = P.vm(f"buffer_load_dwordx4 v{self.vAa + q}, {srd(rX)}, s{sKA} offen lds")
                if q == 5:
                    P("s_mov_b64 exec, -1")
                assert self.t < 17
                return t
            return (sM0A, self.LA[idx % 2] + q * 4096), (sKA, idx * 128), load
        off = f" offset:{q * 1024}" if q else ""
        return ((sM0B, self.LB + (3 - idx % 5) * 16384), (sKB, (idx // 2) * 64 * 3456),
                lambda: P.vm(f"buffer_load_dwordx4 v{self.vBa + q}, {srd(rW1 if idx % 2 else rW0)}, s{sKB} offen{off} lds"))

    def barrier_needs(self, b):
        return max(self.stats.done, self.tokRS) if b == self.SIG else None

    def barrier_ds(self, b):
        return self.tkw if b >= len(self.bars) - 2 else None

    def fixed(self):
        P = self.P
        fx = {}
        for g, j in ((889, 2), (893, 3), (898, 6), (901, 7), (925, 0), (929, 1), (946, 4), (949, 5)):
            def wr(j=j):
                assert self.epi_ok
                self.tkw = P.ds(f"ds_write_b128 v5, {vq(self.acc(j, 5))} offset:{j * 64}")
            fx[g] = [(2, wr)]
        self.tkc = {}
        for g, j in ((908, 2), (909, 6), (910, 3), (911, 7), (957, 0), (957, 4), (958, 1), (958, 5)):
            def f(j=j):
                self.tkc[j] = P.ds(f"ds_read_b128 {vq(self.cs(j))}, v6 offset:{j * 64}")
            fx.setdefault(g, []).append((1, f))
        fx[903] = [(1, lambda: P.wait(vm=self.tokM))]
        for i in range(6):
            fx.setdefault(903 + i // 2, []).append((1, lambda i=i: P(f"v_xor_b32 v{self.vM[i]}, 0x80000000, v{self.vM[i]}")))
        ops = []
        for i in (5, 4, 3, 2, 1, 0)[:self.cfg.nov]:
            ops += self.block(1, i, False)
        lo, hi = 916, 960
        for k, f in enumerate(ops):
            fx.setdefault(lo + (k * (hi - lo)) // len(ops), []).append((1, f))
        return fx

    def block(self, p, i, packed):
        P = self.P
        out = []
        e = lambda t: out.append(lambda: P(t))
        mp, sel = self.vM[i & ~1], i & 1
        mods = f"op_sel:[0,{sel},0] op_sel_hi:[1,{sel},1]"
        dst = self.acc(2 * p, i)
        for jj in (2 * p, 2 * p + 1):
            g, u = self.acc(jj, i), self.acc(jj + 4, i)
            out.append(lambda jj=jj: P.wait(ds=self.tkc[jj + 4]))
            for a, c in ((g, self.cs(jj)), (u, self.cs(jj + 4))):
                if packed:
                    for h in (0, 2):
                        e(f"v_pk_fma_f32 {vq(a + h, 2)}, {vq(c + h, 2)}, {vq(mp, 2)}, {vq(a + h, 2)} {mods}")
                else:
                    for r in range(4):
                        e(f"v_fmac_f32 v{a + r}, v{c + r}, v{self.vM[i]}")
            for r in range(4):
                e(f"v_max_f32 v{g + r}, 0, v{g + r}")
            if packed:
                for h in (0, 2):
                    e(f"v_pk_mul_f32 {vq(u + h, 2)}, {vq(u + h, 2)}, {vq(g + h, 2)}")
            else:
                for r in range(4):
                    e(f"v_mul_f32 v{u + r}, v{u + r}, v{g + r}")
            for h in (0, 2):
                e(f"v_cvt_pk_bf16_f32 v{dst + 2 * (jj & 1) + h // 2}, v{u + h}, v{u + h + 1}")

        def st():
            self.tokS = P.vm(f"buffer_store_dwordx4 {vq(dst)}, v{self.vH + i}, {srd(rA2)}, s{sT0 + p} offen sc1")
        return out + [st]

    def epilogue(self, tr):
        P, cfg = self.P, self.cfg
        todo = [(p, i) for p in (1, 0) for i in (5, 4, 3, 2, 1, 0)][cfg.nov:]
        for k, (p, i) in enumerate(todo):
            for f in self.block(p, i, True):
                f()
            self.late.emit(((k + 1) * cfg.nepi_glu) // len(todo) - (k * cfg.nepi_glu) // len(todo), 20)
        return cfg.n1_glu


class QKV:
    LB = 49152
    LA = [0, 24576]
    LS = 159744
    vRB2 = 13
    ACC = 76
    vAa, vBa, vRA, vRB, vSEL, vST, vM1, vR1, vTK, vT = 5, 70, 11, 15, 17, 22, 46, 50, 54, 60
    BIAS = 12
    nhead = 8

    def __init__(self, P, cfg):
        self.P, self.cfg = P, cfg
        self.quota, self.tot, self.npre, self.wlast = cfg.quota_qkv, cfg.tot_qkv, cfg.npre[1], cfg.wlast[1]
        self.tot19 = cfg.tot_qkv
        self.pfs = cfg.pf if cfg.pfq is None else cfg.pfq
        self.stats = Stats(P, self.vST)
        self.poll = Poll(P, 60, 22, "qkv", "g" if cfg.gather else "e")
        self.pollr = Poll(P, 73, 75, "qkv", "r")
        self.side = Side(P)
        self.side2 = Side(P)
        self.plan()
        e = cfg.poll_qkv + cfg.pchk + 0.25
        if not cfg.gather:
            e = min(p for p in self.bars if p > e * 45) / 45
        wt = max(e, self.bars[self.le(23)] / 45)
        assert cfg.wq <= 9
        self.late = Late(P, [(e, "R", k) for k in range(8)] + [(wt if k < 6 + cfg.wq else 20, "W", k) for k in range(6, 25)]
                         + [(20, "R", k) for k in (8, 9, 10, 11)] + [(20, "W", k) for k in range(6)]
                         + [(21, "R", 12), (22, "R", 13)], rot=cfg.rot, cut=cfg.deferq)
        self.extra = {}
        self.early_ok = 999
        self.build_side()

    def plan(self):
        self.mf, self.frags, self.units = [], {}, []
        bq = self.cfg.bq
        have = [t for t in range(30) if t % 3 == 2 or t < self.cfg.fine_qkv or t == 28]
        self.bars = [30 * t + bq + (3 if t == 28 else 0) for t in have]
        le = lambda t: max([k for k, u in enumerate(have) if u <= t], default=-1)
        ge = lambda t: -1 if t < 0 else min(k for k, u in enumerate(have) if u >= t)
        self.le = le
        n = 0
        for t in range(30):
            S, sec = t // 3, 2 - t % 3
            xr = lambda G, ks: 24 * (S % 2) + 8 * G + 4 * ks
            vis = le(t - 1)
            if t % 3 == 0:
                self.units += [("A", S, q, ge(t - 6), vis) for q in range(6)]
                for G in range(3):
                    self.frags["x", S, G] = ([f"ds_read_b128 {aq(xr(G, ks))}, v{self.vRA + ks} offset:{self.LA[S % 2] + G * 2048}"
                                              for ks in range(2)], ("x", S % 2, G), vis, ge(t))
            self.units += [("B", t, q, ge(t - 9), vis) for q in range(3)]
            for i in range(5):
                wr = lambda ks: 48 + 8 * i + 4 * ks
                reg = (self.vRB2 if t % 9 >= 5 else self.vRB) + (i == 4)
                self.frags["w", t, i] = ([f"ds_read_b64_tr_b16 {aq(wr(ks) + 2 * half, 2)}, v{reg} "
                                          f"offset:{(t % 9 % 5) * 12288 + ks * 5632 + half * 640 + (i * 40 if i < 4 else 0)}"
                                          for ks in range(2) for half in range(2)], ("w", i), vis, ge(t))
                for G in ((0, 1, 2) if (5 * t + i) % 2 == 0 else (2, 1, 0)):
                    for kk in range(2):
                        ks = kk ^ (n & 1)
                        d = vq(self.acc(sec, i, G))
                        w, x = aq(wr(ks)), aq(xr(G, ks))
                        a, b = (w, x) if sec < 2 else (x, w)
                        self.mf.append((f"v_mfma_f32_16x16x32_bf16 {d}, {a}, {b}, {d if (S or kk) else '0'}",
                                        [("w", t, i), ("x", S, G)]))
                    n += 1

    def acc(self, sec, i, G):
        return self.ACC + ((sec * 5 + i) * 3 + G) * 4

    def prologue(self):
        P = self.P
        t0, t1, t2, t3 = 60, 61, 62, 63
        P(f"s_mul_i32 s{sT0}, s{sMT}, 176")
        P(f"s_sub_u32 s{sT0}, s{sT0}, 16")
        P(f"v_lshrrev_b32 v{t0}, 3, v0")
        P(f"v_lshrrev_b32 v{t1}, 4, v0")
        P(f"v_xor_b32 v{t1}, v{t1}, v0")
        P(f"v_and_b32 v{t1}, 7, v{t1}")
        P(f"v_add_u32 v{t2}, s{sT0}, v{t0}")
        P(f"v_cmp_le_i32 vcc, 0, v{t2}")
        P(f"v_mul_i32_i24 v{t0}, 1280, v{t2}")
        P(f"v_lshl_add_u32 v{self.vAa}, v{t1}, 4, v{t0}")
        for q in range(1, 6):
            P(f"v_add_u32 v{self.vAa + q}, {q * 32 * 1280}, v{self.vAa}")
        P(f"v_mov_b32 v{t3}, {OOB}")
        P(f"v_cndmask_b32 v{self.vAa}, v{t3}, v{self.vAa}, vcc")
        P(f"s_mul_i32 s{sT0}, s{sNT}, 160")
        P(f"s_mul_i32 s{sT1}, s{sW}, 192")
        for q in range(3):
            if q:
                P(f"s_add_u32 s{sT1}, s{sT1}, 64")
                P(f"s_sub_u32 s{sT0}, s{sT0}, 1024")
            P(f"v_add_u32 v{t0}, s{sT1}, v1")
            divc(P, t1, t0, 88)
            P(f"v_mul_u32_u24 v{t2}, 88, v{t1}")
            if q == 2:
                P(f"v_cmp_gt_u32 s[{sMK0}:{sMK0 + 1}], 8, v{t1}")
            P(f"v_sub_u32 v{t0}, v{t0}, v{t2}")
            P(f"v_cmp_gt_u32 vcc, 80, v{t0}")
            divc(P, t2, t0, 10)
            P(f"v_mul_u32_u24 v{t1}, {8 * 3840}, v{t1}")
            P(f"v_mul_u32_u24 v{t2}, {3840 - 160}, v{t2}")
            P(f"v_lshl_add_u32 v{t1}, v{t0}, 4, v{t1}")
            P(f"v_add3_u32 v{t1}, v{t1}, v{t2}, s{sT0}")
            P(f"v_cndmask_b32 v{self.vBa + q}, v{t3}, v{t1}, vcc")
        P(f"v_cndmask_b32 v{self.vBa + 2}, v{t3}, v{self.vBa + 2}, s[{sMK0}:{sMK0 + 1}]")
        P(f"s_mul_i32 s{sM0B}, s{sW}, 3072")
        P(f"s_cmp_eq_u32 s{sW}, 0")
        P(f"s_cselect_b32 s{sEXA}, 0xffffff00, -1")
        P(f"s_mov_b32 s{sEXA + 1}, -1")
        if any(w <= -1 for w, _ in self.pfs):
            self.pf_setup(P)
        self.stats.addr(P)
        for r, n in ((rX, X_BYTES), (rW0, 640 * 3840)):
            P(f"s_mov_b32 s{r + 2}, {n}")
            P(f"s_mov_b32 s{r + 3}, 0x20000")
        P("s_waitcnt lgkmcnt(0)")
        P(f"s_mov_b64 s[{rW0}:{rW0 + 1}], s[{sWQKV}:{sWQKV + 1}]")
        P(f"s_mov_b64 s[{rX}:{rX + 1}], s[{sX}:{sX + 1}]")

    @staticmethod
    def masks():
        par = cur0 = cur1 = 0
        for l in range(64):
            q, g = l & 15, l >> 4
            if q & 1:
                par |= 1 << l
            if 4 * g + (q & 1) <= q:
                cur0 |= 1 << l
            if 4 * g + 2 + (q & 1) <= q:
                cur1 |= 1 << l
        return par, cur0, cur1

    def pre_barrier(self):
        P = self.P
        t0, t1, t2, t3 = 60, 61, 62, 63
        if not any(w <= -1 for w, _ in self.pfs):
            self.pf_setup(P)
        for k in range(4):
            P(f"v_mov_b32 v{64 + k}, 0x3f803f80")
        P(f"v_and_b32 v{t0}, 7, v0")
        P(f"s_and_b32 s{sT0}, s{sW}, 1")
        P(f"s_mul_i32 s{sT0}, s{sT0}, {self.LA[1]}")
        P(f"v_lshl_add_u32 v{t0}, v{t0}, 4, s{sT0}")
        P.ds(f"ds_write_b128 v{t0}, {vq(64)}")
        P(f"v_and_b32 v{t0}, 15, v0")
        P(f"v_bfe_u32 v{t1}, v0, 4, 2")
        P(f"v_lshrrev_b32 v{t2}, 1, v{t0}")
        P(f"v_xor_b32 v{t2}, v{t2}, v{t1}")
        P(f"v_lshlrev_b32 v{t2}, 4, v{t2}")
        P(f"v_lshl_add_u32 v{t2}, v{t0}, 7, v{t2}")
        P(f"s_mul_i32 s{sT0}, s{sW}, 6144")
        P(f"v_add_u32 v{self.vRA}, s{sT0}, v{t2}")
        P(f"v_xor_b32 v{self.vRA + 1}, 64, v{self.vRA}")
        P(f"v_mul_u32_u24 v{t2}, 1408, v{t1}")
        P(f"v_bfe_u32 v{t3}, v0, 2, 2")
        P(f"v_mul_u32_u24 v{t3}, 160, v{t3}")
        P(f"v_add_u32 v{t2}, v{t2}, v{t3}")
        P(f"v_add_u32 v{t2}, {self.LB}, v{t2}")
        P(f"v_and_b32 v{t3}, 3, v0")
        P(f"v_lshl_add_u32 v{self.vRB}, v{t3}, 3, v{t2}")
        P(f"v_mul_u32_u24 v{t3}, 40, v{t3}")
        P(f"v_add3_u32 v{self.vRB + 1}, v{t2}, v{t3}, 32")
        for k in range(2):
            P(f"v_add_u32 v{self.vRB2 + k}, {5 * 12288}, v{self.vRB + k}")

    def pf_setup(self, P):
        t0, t1, t2 = 60, 61, 62
        P(f"s_lshl_b32 s{sT0}, s{sMT}, 2")
        P(f"s_add_u32 s{sT0}, s{sT0}, s{sW}")
        P(f"s_lshl_b32 s{sT0}, s{sT0}, 4")
        P(f"s_add_u32 s{sT0}, s{sT0}, s{sNT}")
        P(f"s_mul_i32 s{sT0}, s{sT0}, 160")
        P(f"v_cmp_gt_u32 vcc, {4 * self.cfg.pfnq}, v1")
        P(f"v_lshrrev_b32 v{t0}, 2, v1")
        P(f"v_mul_u32_u24 v{t0}, {32 * 3840}, v{t0}")
        P(f"v_and_b32 v{t1}, 2, v1")
        P(f"v_mul_u32_u24 v{t1}, 640, v{t1}")
        P(f"v_and_b32 v{t2}, 1, v1")
        P(f"v_mul_u32_u24 v{t2}, 156, v{t2}")
        P(f"v_add3_u32 v{t0}, v{t0}, v{t1}, v{t2}")
        P(f"v_add_u32 v{t0}, s{sT0}, v{t0}")
        P(f"v_cndmask_b32 v74, v63, v{t0}, vcc")

    def timed(self):
        P, cfg = self.P, self.cfg
        out = [(w, [(1, lambda f=f: P(f"s_mov_b32 s{sT3}, {f * 32 * 3840}")),
                    (1, lambda: P.vm(f"buffer_load_dword a255, v74, {srd(rW0)}, s{sT3} offen"))]) for w, f in self.pfs]
        out += [(w, [(1, lambda k=k: self.stats.load(k))]) for k, w in enumerate(cfg.st)]
        return out

    def build_side(self):
        P, sd = self.P, self.side
        t0, t1, t2, t3 = 60, 61, 62, 63
        R = Rec()
        common_srds(R)
        R(f"s_lshl3_add_u32 s{sFLAG}, s{sMT}, s{sNT}")
        R(f"s_lshl_b32 s{sFLAG}, s{sFLAG}, 7")
        R(f"s_add_u32 s{sFLAG}, s{sFLAG}, {FLAG_OFF + 160 * 128}")
        R.into(sd, 0)
        self.stats.queue(sd, max(self.cfg.st) + self.cfg.stw)
        self.pollr.issue(sd, 0)
        self.SIG = self.le(self.cfg.sig_qkv)
        R = Rec()
        R(f"v_and_b32 v{t0}, 15, v0")
        R(f"v_bfe_u32 v{t1}, v0, 4, 2")
        R(f"s_mul_i32 s{sT0}, s{sMT}, 176")
        R(f"s_mul_i32 s{sT1}, s{sW}, 48")
        R(f"s_add_u32 s{sT0}, s{sT0}, s{sT1}")
        R(f"s_sub_u32 s{sT0}, s{sT0}, 16")
        R(f"v_add_u32 v64, s{sT0}, v1")
        R(f"v_max_i32 v64, 0, v64")
        R(f"v_min_i32 v64, 2047, v64")
        R(f"v_lshlrev_b32 v64, 2, v64")
        R(f"s_lshl_b32 s{sM0R}, s{sW}, 9")
        R(f"s_add_u32 s{sM0R}, s{sM0R}, {self.LS}")
        R(f"v_lshl_add_u32 v65, v{t0}, 2, s{sM0R}")
        R(f"v_lshl_add_u32 v66, v{t1}, 4, s{sM0R}")
        par, cur0, cur1 = self.masks()
        smask(R, sMK0, par)
        smask(R, sMK1, cur0)
        smask(R, sMK2, cur1)
        for h in range(4):
            smask(R, sHM + 2 * h, 0xffff << (16 * h))
        R(f"v_mov_b32 v{t3}, 0x0c0c0c0c")
        for u in range(2):
            lo = 0x0c0c0000 | ((2 * u + 1) << 8) | (2 * u)
            hi = 0x00000c0c | ((2 * u + 1) << 24) | ((2 * u) << 16)
            mk = sMK1 if u == 0 else sMK2
            R(f"v_mov_b32 v{t0}, 0x{lo:x}")
            R(f"v_mov_b32 v{t1}, 0x{hi:x}")
            R(f"v_cndmask_b32 v{t0}, v{t0}, v{t1}, s[{sMK0}:{sMK0 + 1}]")
            R(f"v_cndmask_b32 v{self.vSEL + u}, v{t3}, v{t0}, s[{mk}:{mk + 1}]")
            R(f"v_cndmask_b32 v{self.vSEL + 2 + u}, v{t0}, v{t3}, s[{mk}:{mk + 1}]")
        self.pollr.check(sd, self.bars[self.SIG] / 45 - 0.4)
        early_signal(sd, self.bars[self.SIG] / 45, P, t0, t1)
        R.into(sd, 1)
        R = Rec()
        tile2_setup(R, self.cfg)
        R(f"s_mul_i32 s{sT0}, s{sMT}, 11")
        R(f"s_mul_i32 s{sT1}, s{sW}, 3")
        R(f"s_add_u32 s{sT0}, s{sT0}, s{sT1}")
        for G in range(3):
            R(f"s_add_u32 s{sT1}, s{sT0}, {G - 1}")
            R(f"s_lshr_b32 s{sT2}, s{sT1}, 2")
            R(f"s_mul_i32 s{sT2}, s{sT2}, {A2_MT}")
            R(f"s_cmp_ge_u32 s{sT1}, 128")
            R(f"s_cselect_b32 s{sT2}, {OOB}, s{sT2}")
            if G == 0:
                R(f"s_cmp_eq_u32 s{sW}, 0")
                R(f"s_cselect_b32 s{sT2}, {OOB}, s{sT2}")
            R(f"s_and_b32 s{sT1}, s{sT1}, 3")
            R(f"s_lshl_b32 s{sT1}, s{sT1}, 6")
            R(f"v_add_u32 v{t0}, s{sT1}, v1")
            R(f"v_lshl_add_u32 v{self.vTK + G}, v{t0}, 4, s{sT2}")
            if self.cfg.oswap:
                R(f"v_and_b32 v{t0}, 31, v1")
                R(f"v_lshrrev_b32 v{t1}, 5, v1")
                R(f"v_lshl_add_u32 v{t0}, v{t0}, 1, v{t1}")
                R(f"v_add_u32 v{t0}, s{sT1}, v{t0}")
            R(f"v_lshl_add_u32 v{self.vTK + 3 + G}, v{t0}, 3, s{sT2}")
        R.into(sd, 0)
        self.poll.issue(sd, self.cfg.poll_qkv)
        self.poll.check(sd, self.cfg.poll_qkv + self.cfg.pchk)
        sd.f(0, lambda: setattr(self, "early_ok", -1 if self.cfg.gather else self.nbar), 0)
        sd.t(0, f"s_movk_i32 s{sRC1}, 0x2000")
        b2_touch(self, sd, t0, t1)
        for k in range(2):
            def f(k=k):
                assert self.early_ok < self.nbar
                self.tokM = P.vm(f"buffer_load_dword v64, {srd(rST)}, {f's{sRC1}' if k else '0'} offen sc1 lds")
            self.extra.setdefault(16, []).append(((sM0R, 256 * k), f))
        s2 = self.side2
        s2.f(17.9, lambda: P.wait(vm=self.tokM))
        for G in range(3):
            for k in range(2):
                s2.f(17.9, lambda G=G, k=k: P.ds(f"ds_read_b128 {vq(self.vST + 8 * G + 4 * k)}, v66 offset:{256 * k + 64 * G}"))
                s2.f(17.9, lambda G=G, k=k: P.ds(f"ds_read_b32 v{(self.vR1 if k else self.vM1) + G}, v65 offset:{256 * k + 64 * G}"))
        s2.f(17.9, lambda: setattr(self, "st_ok", True), 0)
        R = Rec()
        R("v_and_b32 v5, 48, v0")
        R("v_and_b32 v6, 15, v0")
        R("v_lshlrev_b32 v6, 2, v6")
        R(f"s_mul_i32 s{sT0}, s{sW}, 5632")
        R(f"s_add_u32 s{sT0}, s{sT0}, 16384")
        R(f"v_lshl_add_u32 v7, v1, 4, s{sT0}")
        R(f"v_lshl_add_u32 v8, v1, 3, s{sT0}")
        R(f"s_add_u32 s{sT0}, s{sW}, 3")
        R(f"s_and_b32 s{sT0}, s{sT0}, 3")
        R(f"s_mul_i32 s{sT0}, s{sT0}, 5632")
        R(f"s_add_u32 s{sT0}, s{sT0}, 16384")
        R(f"v_lshl_add_u32 v9, v1, 4, s{sT0}")
        R(f"v_lshl_add_u32 v10, v1, 3, s{sT0}")
        R(f"s_cmp_eq_u32 s{sW}, 0")
        R(f"s_cselect_b32 s14, 0x00010001, 0")
        R(f"s_cselect_b32 s16, 0xffff, 0")
        R(f"s_mov_b32 s15, s14")
        R(f"s_mov_b32 s17, 0")
        R(f"v_lshlrev_b32 v49, 4, v0")
        R(f"v_add_u32 v49, 4096, v49")
        R(f"v_cndmask_b32 v21, v49, v6, s[16:17]")
        R(f"v_cndmask_b32 v49, v49, v5, s[14:15]")
        R(f"s_or_b32 s{sT3}, s{sMT}, s{sW}")
        R(f"s_cmp_eq_u32 s{sT3}, 0")
        R(f"s_cselect_b32 s{sT3}, 0xf149f2ca, 0")
        R(f"s_lshl_b32 s{sT0}, s{sNT}, 13")
        R(f"s_add_u32 s{sT1}, s{sT0}, 4096")
        R(f"s_lshl_b32 s{sT2}, s{sNT}, 11")
        R(f"s_add_u32 s{sT2}, s{sT2}, {16 * 4096}")
        R.into(sd, 16.6)
        sd.f(16.6, lambda: setattr(self, "epi_ok", True), 0)

    def dma(self, kind, idx, q):
        P = self.P
        if kind == "A":
            def load():
                if q == 0:
                    P(f"s_mov_b64 exec, s[{sEXA}:{sEXA + 1}]")
                t = P.vm(f"buffer_load_dwordx4 v{self.vAa + q}, {srd(rX)}, s{sKA} offen lds")
                if q == 0:
                    P("s_mov_b64 exec, -1")
                assert self.t < 16.6
                return t
            return (sM0A, self.LA[idx % 2] + q * 4096), (sKA, idx * 128), load
        off = f" offset:{q * 1024}" if q else ""
        return ((sM0B, self.LB + (idx % 9) * 12288), (sKB, (idx // 3) * 64 * 3840 + (2 - idx % 3) * 1280),
                lambda: P.vm(f"buffer_load_dwordx4 v{self.vBa + q}, {srd(rW0)}, s{sKB} offen{off} lds") if self.t < 18.5 else None)

    def barrier_needs(self, b):
        return self.stats.done if b == self.SIG else None

    def barrier_ds(self, b):
        return self.tkw if b == len(self.bars) - 2 else None

    def cswrite(self, sec, i):
        self.tkw2 = self.P.ds(f"ds_write_b128 v49, {vq(self.acc(sec, i, 0))} offset:{(sec * 5 + i) * 64}")

    def fixed(self):
        P = self.P
        fx = {}
        for i in range(5):
            def wr(i=i):
                assert self.epi_ok and self.nbar >= len(self.bars) - 2
                self.tkw = P.ds(f"ds_write_b32 v21, v{self.acc(2, i, 0)} offset:{640 + i * 64}")
            fx[839 + 2 * i] = [(1, wr)]
        for g, sec, i in ((862, 1, 0), (866, 1, 1), (874, 1, 2), (886, 1, 3), (889, 1, 4), (892, 0, 0), (895, 0, 1), (898, 0, 2)):
            fx[g] = [(2, lambda sec=sec, i=i: self.cswrite(sec, i))]
        self.al = al = Alloc(list(range(60, 76)))
        self.csV = al.get(6)
        self.tkV, self.Vb, self.cs = {}, {}, {}
        for k, i in enumerate((4, 3, 2, 1, 0)):
            def f(i=i):
                assert self.nbar == len(self.bars) - 1 and self.st_ok
                self.tkV[i] = P.ds(f"ds_read_b32 v{self.csV + i}, v6 offset:{640 + i * 64}")
            fx.setdefault(self.bars[-2] + k, []).append((1, f))
        ops = []
        for i in (4, 3, 2, 1, 0)[:self.cfg.nvo]:
            ops += self.vfix(i, P, False)
        lo, hi = self.bars[-2] + 9, 900
        for k, f in enumerate(ops):
            fx.setdefault(lo + (k * (hi - lo)) // len(ops), []).append((1, f))
        return fx

    @staticmethod
    def bc(reg, pos, n):
        lo, hi = [0] * n, [1] * n
        lo[pos] = hi[pos] = reg & 1
        return vq(reg & ~1, 2), f"op_sel:[{','.join(map(str, lo))}] op_sel_hi:[{','.join(map(str, hi))}]"

    def vfix(self, i, V, packed):
        P, al = self.P, self.al
        out = [lambda: P.wait(ds=self.tkV[i])]
        e = lambda t: out.append(lambda: V(t))
        vb = self.Vb[i] = al.get(8)
        c, m1 = self.bc(self.csV + i, 1, 3)
        if not packed:
            e(f"v_xor_b32 v{self.csV + i}, 0x80000000, v{self.csV + i}")
        for G in (2, 0, 1):
            a = self.acc(2, i, G)
            m4, r4 = self.vST + 8 * G, self.vST + 8 * G + 4
            if packed:
                for h in (0, 2):
                    e(f"v_pk_fma_f32 {vq(a + h, 2)}, {vq(m4 + h, 2)}, {c}, {vq(a + h, 2)} {m1} neg_lo:[0,1,0] neg_hi:[0,1,0]")
                for h in (0, 2):
                    e(f"v_pk_mul_f32 {vq(a + h, 2)}, {vq(a + h, 2)}, {vq(r4 + h, 2)}")
            else:
                for r in range(4):
                    e(f"v_fmac_f32 v{a + r}, v{m4 + r}, v{self.csV + i}")
                for r in range(4):
                    e(f"v_mul_f32 v{a + r}, v{a + r}, v{r4 + r}")
            for h in (0, 2):
                e(f"v_cvt_pk_bf16_f32 v{vb + 2 * (2 - G) + h // 2}, v{a + h}, v{a + h + 1}")
            if G == 2:
                out.append(lambda: P.ds(f"ds_write_b64 v8, {vq(vb, 2)} offset:{3072 + i * 512}"))
        al.put(self.acc(2, i, 0), 12)
        self.cs[i] = al.get(4)
        return out

    def epilogue(self, tr):
        P, cfg, al = self.P, self.cfg, self.al
        BIAS = self.BIAS
        cnt = [0]
        halo_done = []

        def V(text):
            P(text)
            cnt[0] += 1
            if cnt[0] % cfg.ld_every == 0:
                if self.late.arrange(20, False) or halo_done:
                    self.late.emit(1, 20)

        bc = self.bc
        NEG = "neg_lo:[0,1,0] neg_hi:[0,1,0]"
        csV, Vb, cs, tkK = self.csV, self.Vb, self.cs, {}
        al.put(16, 1)
        for k in range(4):
            V(f"v_mov_b32 v{BIAS + k}, s{sT3}")
        rest = [f for i in (4, 3, 2, 1, 0)[cfg.nvo:] for f in self.vfix(i, V, True) + [i]]
        ready = list((4, 3, 2, 1, 0)[:cfg.nvo])
        bar_at = min(len(rest), cfg.vbar)
        for k, f in enumerate(rest + [None]):
            if k == min(bar_at, 4):
                self.cswrite(0, 3)
            if k == min(bar_at, 10):
                self.cswrite(0, 4)
            if k == bar_at:
                P.wait(ds=self.tkw2)
                P("s_barrier")
            if isinstance(f, int):
                ready.append(f)
            elif f:
                f()
            while k >= bar_at and ready:
                ik = ready.pop(0)
                tkK[ik] = P.ds(f"ds_read_b128 {vq(cs[ik])}, v5 offset:{(5 + ik) * 64}")
        al.put(csV, 6)
        al.put(self.vST, 24)
        tr.pt(P, 29)
        k2 = al.get(12)
        Kb = [(al.get(6), al.get(6)), (al.get(6), al.get(6)), (k2, k2 + 6)]
        kr = lambda G, pos: Kb[G][pos // 6] + pos % 6

        def kput(G):
            al.put(Kb[G][0], 6)
            al.put(Kb[G][1], 6)
        kpos = {0: [0], 1: [4], 2: [6], 3: [10], 4: [2, 8]}
        kdone = {3: 2, 1: 1, 0: 0}
        for i in (4, 3, 2, 1, 0):
            P.wait(ds=tkK[i])
            for G in (2, 1, 0):
                a = self.acc(1, i, G)
                m, mm = bc(self.vM1 + G, 1, 3)
                r, rm = bc(self.vR1 + G, 1, 2)
                for h in (0, 2):
                    V(f"v_pk_fma_f32 {vq(a + h, 2)}, {vq(cs[i] + h, 2)}, {m}, {vq(a + h, 2)} {mm} {NEG}")
                for h in (0, 2):
                    V(f"v_pk_mul_f32 {vq(a + h, 2)}, {vq(a + h, 2)}, {r} {rm}")
                for pos in kpos[i]:
                    for h in (0, 2):
                        V(f"v_cvt_pk_bf16_f32 v{kr(G, pos) + h // 2}, v{a + h}, v{a + h + 1}")
                if G == 2 and i in kdone:
                    k = kdone[i]
                    P.ds(f"ds_write_b128 v7, {vq(k2 + 4 * k)} offset:{k * 1024}")
            al.put(self.acc(1, i, 0), 12)
            tkK[i] = P.ds(f"ds_read_b128 {vq(cs[i])}, v5 offset:{i * 64}")
        tr.pt(P, 30)
        k3 = al.get(12)
        Kb.append((k3, k3 + 6))
        for n_, i in enumerate((4, 3, 2, 1, 0)):
            P.wait(ds=tkK[i])
            for G in (2, 1, 0):
                a = self.acc(0, i, G)
                m, mm = bc(self.vM1 + G, 1, 3)
                for h in (0, 2):
                    V(f"v_pk_fma_f32 {vq(a + h, 2)}, {vq(cs[i] + h, 2)}, {m}, {vq(a + h, 2)} {mm} {NEG}")
            al.put(cs[i], 4)
        P("s_barrier")
        assert P.ds_done == P.nds
        halo_done.append(1)
        if cfg.xearly:
            xr = al.get(4)
            xg_addr(P, xr, xr + 3, sKA, sKB)
            run(resid_units(P, {}, reg=xr, sm=sKB))
            al.put(xr, 4)
        for k in range(3):
            P.ds(f"ds_read_b128 {vq(k3 + 4 * k)}, v9 offset:{k * 1024}")
        for i in range(5):
            tkH = P.ds(f"ds_read_b64 {vq(Vb[i] + 6, 2)}, v10 offset:{3072 + i * 512}")
        qmain = lambda h: 4 * h + (0 if h % 2 == 0 else 2)
        qext = lambda h: 4 * h + (2 if h % 2 == 0 else 0)
        kq = {0: 0, 1: 2, 2: 6, 3: 8}
        sm = lambda s: f"s[{s}:{s + 1}]"
        mk = {0: sMK1, 1: sMK2}
        S, X, CQ, Qb = {}, {}, {}, {}
        pend = []

        def VM(text):
            assert "v_pk_" not in text
            V(text)
            VM.c += 1
            if pend and VM.c % 2 == 0:
                pend.pop(0)()
        VM.c = 0

        def qpack(G):
            Qb[G] = al.get(16)
            a = self.acc(0, 4, G)
            for h in (0, 2):
                VM(f"v_cvt_pk_bf16_f32 v{a + h // 2}, v{a + h}, v{a + h + 1}")
            for i in range(4):
                for h in range(2):
                    VM(f"v_cndmask_b32 v{Qb[G] + qext(i) + h}, 0, v{a + h}, {sm(sHM + 2 * i)}")
                b = self.acc(0, i, G)
                for h in (0, 2):
                    VM(f"v_cvt_pk_bf16_f32 v{Qb[G] + qmain(i) + h // 2}, v{b + h}, v{b + h + 1}")
                al.put(b, 4)
            al.put(a, 4)

        def scores(G):
            S[G] = [(al.get(4), al.get(4)) for _ in range(4)]
            for h in range(4):
                q = vq(Qb[G] + 4 * h)
                sc_, sp_ = S[G][h]
                pend.append(lambda h=h, q=q, d=sc_: P(f"v_mfma_f32_16x16x32_bf16 {vq(d)}, {vq(kr(G, kq[h]))}, {q}, 0"))

                def f(h=h, q=q, d=sp_):
                    if G == 0:
                        P.wait(ds=tkH)
                    c = vq(BIAS) if G == 1 else "0"
                    P(f"v_mfma_f32_16x16x32_bf16 {vq(d)}, {vq(kr((G - 1) % 4, kq[h]))}, {q}, {c}")
                pend.append(f)

        def flush():
            while pend:
                pend.pop(0)()

        def select(G):
            X[G] = al.get(8)
            for h in range(4):
                sc_, sp_ = S[G][h]
                for u in range(2):
                    VM(f"v_cndmask_b32 v{sc_ + 2 * u}, v{sc_ + 2 * u}, v{sc_ + 2 * u + 1}, vcc")
                    VM(f"v_cndmask_b32 v{sp_ + 2 * u}, v{sp_ + 2 * u}, v{sp_ + 2 * u + 1}, vcc")
                for u in range(2):
                    VM(f"v_cndmask_b32 v{X[G] + 2 * h + u}, v{sp_ + 2 * u}, v{sc_ + 2 * u}, {sm(mk[u])}")
            for sc_, sp_ in S[G]:
                al.put(sc_, 4)
                al.put(sp_, 4)

        P(f"s_mov_b64 vcc, {sm(sMK0)}")
        qpack(2)
        scores(2)
        qpack(1)
        flush()
        al.put(Qb[2], 16)
        kput(2)
        scores(1)
        qpack(0)
        flush()
        al.put(Qb[1], 16)
        kput(1)
        scores(0)
        select(2)
        flush()
        select(1)
        select(0)
        al.put(Qb[0], 16)
        kput(0)
        kput(3)
        tr.pt(P, 31)
        GS = (2, 1, 0)
        for G in GS:
            CQ[G] = al.get(2)
            V(f"v_mul_f32 v{CQ[G]}, 0x3ea52b5c, v{self.vR1 + G}")
            for u in range(2):
                V(f"v_permlane32_swap_b32 v{X[G] + u}, v{X[G] + 4 + u}")
                V(f"v_permlane32_swap_b32 v{X[G] + 2 + u}, v{X[G] + 6 + u}")
            for u in range(2):
                V(f"v_permlane16_swap_b32 v{X[G] + u}, v{X[G] + 2 + u}")
                V(f"v_permlane16_swap_b32 v{X[G] + 4 + u}, v{X[G] + 6 + u}")
        W, O, O4 = {}, {}, {}
        for G in GS:
            x, m = X[G], CQ[G] + 1
            V(f"v_max3_f32 v{m}, v{x}, v{x + 1}, v{x + 2}")
            V(f"v_max3_f32 v{m}, v{m}, v{x + 3}, v{x + 4}")
            V(f"v_max3_f32 v{m}, v{m}, v{x + 5}, v{x + 6}")
            V(f"v_max_f32 v{m}, v{m}, v{x + 7}")
            V(f"v_mul_f32 v{m}, v{m}, v{CQ[G]}")
            for k in range(0, 8, 2):
                V(f"v_pk_fma_f32 {vq(x + k, 2)}, {vq(x + k, 2)}, {vq(CQ[G], 2)}, {vq(CQ[G], 2)} op_sel:[0,0,1] op_sel_hi:[1,0,1] neg_lo:[0,0,1] neg_hi:[0,0,1]")
            for k in range(8):
                V(f"v_exp_f32 v{x + k}, v{x + k}")
            w = W[G] = al.get(4)
            V(f"v_pk_add_f32 {vq(w, 2)}, {vq(x, 2)}, {vq(x + 2, 2)}")
            V(f"v_pk_add_f32 {vq(w + 2, 2)}, {vq(x + 4, 2)}, {vq(x + 6, 2)}")
            V(f"v_pk_add_f32 {vq(w, 2)}, {vq(w, 2)}, {vq(w + 2, 2)}")
            V(f"v_add_f32 v{w}, v{w}, v{w + 1}")
            V(f"v_rcp_f32 v{CQ[G]}, v{w}")
        for G in GS:
            x, w = X[G], W[G]
            for k in range(0, 8, 2):
                V(f"v_pk_mul_f32 {vq(x + k, 2)}, {vq(x + k, 2)}, {vq(CQ[G], 2)} op_sel:[0,0] op_sel_hi:[1,0]")
            for k in (0, 2, 1, 3):
                V(f"v_cvt_pk_bf16_f32 v{w + k}, v{x + 2 * k}, v{x + 2 * k + 1}")
            al.put(x, 8)
        for G in GS:
            V(f"v_permlane32_swap_b32 v{W[G]}, v{W[G] + 2}")
            V(f"v_permlane32_swap_b32 v{W[G] + 1}, v{W[G] + 3}")
        for G in GS:
            V(f"v_permlane16_swap_b32 v{W[G]}, v{W[G] + 1}")
            V(f"v_permlane16_swap_b32 v{W[G] + 2}, v{W[G] + 3}")
        tr.pt(P, 32)
        if cfg.fastq:
            phase2_setup1(P, self.late.rot)
            self.hpoll = FlagPoll(P, 0, "qkv")
            if cfg.fastq == 1:
                self.hpoll.issue()

        def pv(G):
            Pq = [al.get(4) for _ in range(4)]
            O[G] = [al.get(4) for _ in range(4)]
            O4[G] = [al.get(4) for _ in range(4)]
            for h in range(4):
                for k in range(4):
                    VM(f"v_perm_b32 v{Pq[h] + k}, v{W[G] + h}, v{W[G] + h}, v{self.vSEL + k}")
                assert not pend
                VM.c = 0
                pend.append(lambda h=h: P(f"v_mfma_f32_16x16x32_bf16 {vq(O[G][h])}, {vq(Vb[h] + 2 * (2 - G))}, {vq(Pq[h])}, 0"))
                pend.append(lambda h=h: P(f"v_mfma_f32_16x16x32_bf16 {vq(O4[G][h])}, {vq(Vb[4] + 2 * (2 - G))}, {vq(Pq[h])}, 0"))
            return Pq

        def out(G):
            for p in range(2):
                d = al.get(4, avoid=range(64, 96))
                for hh in range(2):
                    o = O[G][2 * p + hh]
                    VM(f"v_cvt_pk_bf16_f32 v{d + 2 * hh}, v{o}, v{o + 1}")
                    VM(f"v_cvt_pk_bf16_f32 v{d + 2 * hh + 1}, v{o + 2}, v{o + 3}")
                self.stores.append(lambda d=d, p=p: P.vm(f"buffer_store_dwordx4 {vq(d)}, v{self.vTK + G}, {srd(rA2)}, s{sT0 + p} offen sc1"))
                if cfg.qst == 0:
                    self.stores.pop()()

        self.stores = []
        p2 = pv(2)
        pv(1)
        for r in p2:
            al.put(r, 4)
        out(2)
        if cfg.fastq == 2:
            self.hpoll.issue()
        pv(0)
        out(1)
        if cfg.fastq == 3:
            self.hpoll.issue()
        flush()
        out(0)
        d4 = {G: al.get(2, avoid=range(64, 96)) for G in GS}
        for hd in range(4):
            P(f"s_mov_b64 exec, {sm(sHM + 2 * hd)}")
            for G in GS:
                o = O4[G][hd]
                P(f"v_cvt_pk_bf16_f32 v{d4[G]}, v{o}, v{o + 1}")
                P(f"v_cvt_pk_bf16_f32 v{d4[G] + 1}, v{o + 2}, v{o + 3}")
        P("s_mov_b64 exec, -1")
        if not cfg.fastq:
            self.late.emit(99, 20)
        for G in GS:
            def st(G=G):
                self.tokS = P.vm(f"buffer_store_dwordx2 {vq(d4[G], 2)}, v{self.vTK + 3 + G}, {srd(rA2)}, s{sT2} offen sc1")
            self.stores.append(st)
            if cfg.qst == 0:
                self.stores.pop()()
        return cfg.n1_qkv


vA2, vAh, vXL, vFL, vFD, vR, vW, vRd = 5, 9, 10, 12, 14, 22, 24, 27
vXG = 136
vXD = 142
vXS = 28
GO = (1, 2, 3, 0)
sU0, sU1, sU2, sU3 = sKA, sKB, sRP, sRC1


def phase2_setup1(P, rot):
    P(f"s_add_u32 s{sA2Y1}, s{sA2Y}, {8 * 4096 if rot else 0}")
    P(f"s_sub_u32 s{sA2Y2}, s{sA2Y}, {4 * 4096 if rot else 0}")
    P(f"v_lshlrev_b32 v{vA2}, 4, v0")
    for i in range(1, 4):
        P(f"v_add_u32 v{vA2 + i}, {1024 * i}, v{vA2}")
        P(f"v_and_b32 v{vA2 + i}, 4095, v{vA2 + i}")
    for x in range(2048):
        assert (x * 2979) >> 19 == x // 176 and (x * 2789) >> 19 == x // 188
    P(f"s_mul_i32 s{sU0}, s{sMT2}, {64 * 2789}")
    P(f"v_bfe_u32 v{vFD}, v0, 3, 1")
    P(f"v_mul_u32_u24 v{vFD}, {63 * 2789}, v{vFD}")
    P(f"v_add_u32 v{vFD}, s{sU0}, v{vFD}")
    P(f"v_lshrrev_b32 v{vFL}, 19, v{vFD}")
    P(f"v_and_b32 v{vFD}, 7, v0")
    P(f"v_cmp_gt_u32 vcc, 4, v{vFD}")
    P(f"s_mul_i32 s{sU0}, s{sW}, 3")
    P(f"v_add_u32 v{vFD}, s{sU0}, v{vFD}")
    P(f"v_cndmask_b32 v{vFD}, 13, v{vFD}, vcc")
    P(f"v_mad_u32_u24 v{vFL}, v{vFL}, 14, v{vFD}")
    P(f"v_lshlrev_b32 v{vFL}, 7, v{vFL}")
    P(f"v_add_u32 v{vFL}, {FLAG_OFF}, v{vFL}")


def phase2_setup2(P):
    mk_srd(P, rOUT, sOUT, X_BYTES)
    P(f"s_and_b32 s{sU0}, s{sW}, 1")
    P(f"s_add_u32 s{sU0}, s{sU0}, 72")
    P(f"s_mul_i32 s{sB13}, s{sU0}, 5120")
    P(f"s_add_u32 s{sB13}, s{sB13}, s{sB2W}")
    P(f"s_sub_u32 s{sB13}, s{sB13}, s{sM0A}")
    P(f"s_lshl_b32 s{sA13}, s{sU0}, 12")
    P(f"s_add_u32 s{sA13}, s{sA13}, s{sA2S}")
    for i in range(4):
        P(f"s_add_u32 s{sU0}, s{sW}, {i}")
        P(f"s_and_b32 s{sU0}, s{sU0}, 3")
        P(f"s_mul_i32 s{sU1}, s{sU0}, 15360")
        if i > 1:
            P(f"s_add_u32 s{sU1}, s{sU1}, {(i - 1) * 5120}")
        P(f"v_add_u32 v{vW + i - 1 if i else vRd}, s{sU1}, v{vB2}")
    P(f"s_lshl_b32 s{sU0}, s{sMT2}, 6")
    P(f"s_lshl4_add_u32 s{sU1}, s{sW}, s{sU0}")
    xg_addr(P, vXG, vR, sU2, sU3)
    P(f"s_mul_i32 s{sM0R}, s{sW}, 15360")
    P(f"v_and_b32 v{vR}, 15, v0")
    P(f"v_mul_u32_u24 v{vXL}, 160, v{vR}")
    P(f"v_lshrrev_b32 v{vR + 1}, 4, v1")
    P(f"v_lshlrev_b32 v{vR + 1}, 3, v{vR + 1}")
    P(f"v_add3_u32 v{vXL + 1}, v{vXL}, v{vR + 1}, s{sM0R}")
    P(f"v_add_u32 v{vXL}, v{vXL + 1}, v{vR + 1}")
    P(f"s_mul_i32 s{sU2}, s{sW}, {15360 - 3072}")
    P(f"s_sub_u32 s{sU2}, {LWO}, s{sU2}")
    P(f"s_add_u32 s{sM0R}, s{sM0R}, s{sU2}")
    P(f"v_add_u32 v{vXS}, s{sU2}, v{vXL}")
    P(f"v_add_u32 v{vXS + 1}, s{sU2}, v{vXL + 1}")
    P(f"s_lshl2_add_u32 s{sU2}, s{sU1}, 8192")
    P(f"v_lshl_add_u32 v{vR}, v{vR}, 2, s{sU2}")
    P(f"s_mul_i32 s{sU0}, s{sU1}, 2979")
    P(f"s_lshr_b32 s{sU0}, s{sU0}, 19")
    P(f"s_lshl_b32 s{sU0}, s{sU0}, 10")
    P(f"s_add_u32 s{sU0}, s{sU0}, {FLAG_OFF + 160 * 128}")
    P(f"v_and_b32 v{vR + 1}, 7, v0")
    P(f"v_lshl_add_u32 v{vFL + 1}, v{vR + 1}, 7, s{sU0}")
    if Cfg.oswap:
        P(f"v_lshrrev_b32 v{vAh}, 5, v1")
        P(f"v_mul_u32_u24 v{vAh}, 1536, v{vAh}")
        P(f"s_lshl_b32 s{sU0}, s{sW}, 9")
        P(f"v_add3_u32 v{vAh}, v{vAh}, v{vB2}, s{sU0}")
    else:
        P(f"v_lshrrev_b32 v{vAh}, 1, v{vA2}")


class FlagPoll:
    def __init__(self, P, k, tag):
        self.P, self.k, self.tag = P, k, tag

    def ld(self):
        return f"buffer_load_dword v{vFD}, v{vFL + self.k}, {srd(rST)}, 0 offen {FlagPoll.sc}"

    def issue(self):
        self.tok = self.P.vm(self.ld())

    def check(self):
        P = self.P
        P.wait(vm=self.tok)
        P(f"v_cmp_ne_u32 vcc, 1, v{vFD}")
        P("s_nop 0")
        P(f"s_cbranch_vccnz L_fspin_{self.tag}")
        P(f"L_fback_{self.tag}:")

    def slow(self, tr, lane, nap=2):
        P = self.P
        P(f"L_fspin_{self.tag}:")
        P(f"s_mov_b32 s{sSPIN}, 0")
        P(f"L_fspin2_{self.tag}:")
        P.vm(self.ld(), counted=False)
        P(f"s_add_u32 s{sSPIN}, s{sSPIN}, 1")
        if tr.on:
            P(f"v_writelane_b32 v{vTR}, s{sSPIN}, {lane}")
        P("s_waitcnt vmcnt(0)")
        P(f"v_cmp_ne_u32 vcc, 1, v{vFD}")
        P(f"s_cmp_lt_u32 s{sSPIN}, 0x40000")
        P("s_nop 0")
        P(f"s_cbranch_vccz L_fback_{self.tag}")
        P(f"s_sleep {nap}")
        P(f"s_cbranch_scc1 L_fspin2_{self.tag}")
        P(f"s_branch L_fback_{self.tag}")


def abuf(m, i, k):
    if m == 6 and Cfg.merge:
        return (aq(88 + 4 * i) if k == 0 else (aq(248), vq(152))[i])
    return vq(64 - (m % 2) * 32 + i * 8 + 4 * k)


def loadsA(P, tok, m, i, first):
    sA = lambda k: 14 + (m % 2) * 2 + k
    base = lambda s: sA2Y1 if s < 4 else sA2Y2 if s < 12 else sA2Y
    out = []
    for k in range(1 if (m == 6 and i > 1) else 2):
        last = 2 * m + k == 13

        def f(k=k, last=last):
            tok[m, i] = P.vm(f"buffer_load_dwordx4 {abuf(m, i, k)}, v{vA2 + i}, {srd(rA2)}, s{sA13 if last else sA(k)} offen sc1")
        out.append(([lambda k=k: P(f"s_add_u32 s{sA(k)}, s{base(2 * m + k)}, {(2 * m + k) * 4096}")] if first and not last else [], f))
    return out


def run(units):
    for preps, f in units:
        for p in preps:
            p()
        f()


def resid_units(P, tok, early=False, reg=None, sm=None):
    def ldx(q):
        tok["x"] = P.vm(f"buffer_load_dwordx4 v{(reg or vXG) + q}, {srd(rX)}, 0 offen offset:{q * 1024} lds")
    xs = [([lambda: P(f"s_mov_b32 m0, s{sm or sM0R}")] if q == 0 else [], lambda q=q: ldx(q)) for q in range(3)]
    if reg:
        return xs
    return [([], lambda: P.vm(f"buffer_load_dword v{vR}, v{vR}, {srd(rST)}, 0 offen sc1"))] + ([] if early else xs)


def flag_regs(P):
    P(f"v_mov_b32 v{vXD}, s{sFLAG}")
    P(f"v_mov_b32 v{vXD + 1}, {OOB}")
    P("v_cmp_eq_u32 vcc, 0, v0")
    P(f"v_cndmask_b32 v{vXD}, v{vXD + 1}, v{vXD}, vcc")
    P(f"v_mov_b32 v{vXD + 1}, 1")


def raise_flag(P, role, tr):
    P.wait(vm=role.tokS)
    tr.pt(P, 35)
    P("s_barrier")
    P.vm(f"buffer_store_dword v{vXD + 1}, v{vXD}, {srd(rST)}, 0 offen sc1")


def enter_phase2(P, cfg, late, ntail, tr, tag):
    poll = FlagPoll(P, 0, tag)
    late.zsrd = True
    late.emit(len(late.q) - abs(ntail), 99)
    if ntail >= 0:
        run(resid_units(P, {}, early=cfg.xearly and tag != "spare"))
    poll.issue()
    if cfg.atouch and tag != "spare":
        P(f"s_and_b32 s{sU0}, s{sNT2}, 3")
        P(f"s_lshl_b32 s{sU0}, s{sU0}, 7")
        P(f"s_add_u32 s{sU0}, s{sU0}, s{sA2Y1}")
        P(f"v_cmp_gt_u32 vcc, {cfg.atouch}, v1")
        P(f"v_lshl_add_u32 v30, v1, 9, s{sU0}")
        P(f"v_mov_b32 v31, {OOB}")
        P(f"v_cndmask_b32 v30, v31, v30, vcc")
        P.vm(f"buffer_load_dword a255, v30, {srd(rA2)}, 0 offen sc1")
    if ntail < 0:
        run(resid_units(P, {}, early=cfg.xearly and tag != "spare"))
    late.emit(99, 99)
    tr.pt(P, 36)
    poll.check()
    tr.pt(P, 37)
    tr.flush(P)
    return poll


def finish(P, role, n1, tr, tag):
    cfg = role.cfg
    tr.pt(P, 33)
    tok = {}
    if tag == "glu" or not cfg.fastq:
        assert not any(u[1] == "W" for u in role.late.q)
        P.pad(1)
        role.late.emit(n1, 21)
        n2 = cfg.n2 if tag == "glu" else cfg.n2q
        if n2 is None:
            phase2_setup1(P, role.late.rot)
            phase2_setup2(P)
        flag_regs(P)
        tr.pt(P, 34)
        raise_flag(P, role, tr)
        if n2 is not None:
            role.late.emit(n2, 21)
            phase2_setup1(P, role.late.rot)
            phase2_setup2(P)
        poll = enter_phase2(P, cfg, role.late, cfg.ntail if tag == "glu" else cfg.ntailq, tr, tag)
        if tag == "glu":
            P("L_p2:")
        elif cfg.defer == cfg.deferq and cfg.share:
            P("s_branch L_p2")
            poll.slow(tr, 38)
            return
        tok["x"] = P.nvm
        for n, i in enumerate(GO):
            run(loadsA(P, tok, 0, i, n == 0))
        spoll = phase2(P, cfg, tr, tag, tok, cfg.defer if tag == "glu" else cfg.deferq)
    else:
        poll = role.hpoll
        if not role.stores:
            P.pad(1)
        role.late.emit(99, 20 if role.stores else 21)
        assert not role.late.q
        tr.pt(P, 36)
        poll.check()
        tr.pt(P, 37)
        for n, i in enumerate(GO):
            run(loadsA(P, tok, 0, i, n == 0))
        for f in role.stores:
            f()
        P.pad(1)
        phase2_setup2(P)
        flag_regs(P)
        tr.pt(P, 34)
        spoll = phase2(P, cfg, tr, tag, tok, cfg.deferq, role)
    poll.slow(tr, 38)
    spoll.slow(tr, 39)


def phase2(P, cfg, tr, tag, tok, defer, role=None):
    ACC, ACS, XU, E = (176, 64, 156, 32) if cfg.merge else (176, 32, 156, 64)
    vWO = 140
    accY = lambda j, i: vq(ACC + (i * 5 + j) * 4)
    oreg = lambda f: 88 + 4 * f
    OSW = 96
    oprd = lambda f: vq(OSW + 4 * (f - 16)) if (cfg.oswap and f >= 16) else aq(oreg(f))
    YP = [ACC + 20, ACC + 40, ACC + 60]
    P(f"v_add_u32 v{vWO}, {LWO}, v{vB2}")
    P(f"v_add_u32 v{vWO + 1}, {LWO + 51200}, v{vB2}")
    poll = FlagPoll(P, 1, "s" + tag)
    dr, dw = defer
    assert dw >= 3
    late = Late(P, [(0, "R", k) for k in range(14 - dr, 14)] + [(0, "W", k) for k in range(dw)], n=5 * dr + dw)
    late.zsrd = True
    tk = {}

    mf = []
    flip = 0
    done = {}
    mg = cfg.merge
    for m in range(6 if mg else 7):
        tailp = m == (5 if mg else 6)
        for i in ((2, 3, 1, 0) if tailp else GO):
            st = list(range(2 * m, 13 if (tailp and i > 1) else 14 if tailp else 2 * m + 2))
            for q, j in enumerate(range(5) if (flip % 2 == 0 or tailp) else range(4, -1, -1)):
                for kk, s in enumerate(st if (q + (0 if tailp else flip)) % 2 == 0 else st[::-1]):
                    d = accY(j, i)
                    done[i, j] = len(mf)
                    mf.append((f"v_mfma_f32_16x16x32_bf16 {d}, {b2_reg(s, j)}, {abuf(s // 2, i, s % 2)}, {d if (m or kk) else '0'}",
                               (s // 2, i), None))
            flip += 1
    S0 = len(mf)
    nf = 4 * (-(-4 * dw // 20))
    FO = list(range(nf, 20)) + list(range(nf))
    seq = []
    for p in range(5):
        for q, j in enumerate(range(4, -1, -1) if p % 2 == 0 else range(5)):
            for kk in range(4):
                seq.append((FO[4 * p + (kk if q % 2 == 0 else 3 - kk)], j))
    wreg = lambda n: aq(168 + 4 * (n % 40) if n % 40 < 20 else 4 * (n % 40 - 20))
    for n, (f, j) in enumerate(seq):
        d = vq(ACS + 4 * j)
        mf.append((f"v_mfma_f32_16x16x32_bf16 {d}, {wreg(n)}, {oprd(f)}, {d if (n >= 20 or n % 4) else '0'}", ("o", f), ("w", n | 1)))
    N = len(mf)
    WBAR = S0 + (20 - nf) * 5 - cfg.look
    lead = [[] for _ in range(N)]
    body = [[] for _ in range(N)]
    cap = [2] * N
    event = {}

    def place(lo, fn, cost=1, step=1, maxn=2):
        g = lo
        while cap[g] < cost or len(body[g]) >= maxn:
            g += step
        body[g].append(fn)
        cap[g] -= cost
        return g

    g = 0
    for i in (2, 3, 1):
        for j in range(5):
            def snd(i=i, j=j):
                tk["sent"] = P.ds(f"ds_write_b128 v{vW + i - 1}, {accY(j, i)} offset:{j * 1024}")
            g = place(max(int(g), done[i, j] + 8), snd, cost=2) + cfg.ssp + (g - int(g))
    BAR = int(g - cfg.ssp) + cfg.sbar

    def lateu(key):
        _, _, preps, f = late.unit()

        def g():
            tok[key] = f()
        return preps, g

    def ldo(f):
        pre = [lambda: P(f"s_add_u32 s{sKA}, s{sA2S}, {f * 4096}")]
        if f < 16:
            def g():
                tok["o", f] = P.vm(f"buffer_load_dwordx4 {aq(oreg(f))}, v{vA2}, {srd(rA2)}, s{sKA} offen sc1")
            return [(pre, g)]

        if cfg.oswap:
            def g():
                tok["o", f] = P.vm(f"buffer_load_dwordx4 {oprd(f)}, v{vAh}, {srd(rA2)}, s{sKA} offen sc1")
            return [(pre, g)]

        def g():
            tok["o", f] = P.vm(f"buffer_load_dwordx2 {aq(oreg(f) + 2, 2)}, v{vAh}, {srd(rA2)}, s{sKA} offen offset:2048 sc1")
        return [(pre, lambda: P.vm(f"buffer_load_dwordx2 {aq(oreg(f), 2)}, v{vAh}, {srd(rA2)}, s{sKA} offen sc1")), ([], g)]
    qa = [(0 if m == 1 else 40 * (m - 2) + 10 * (n + 1), u) for m in range(1, 7) for n, i in enumerate(GO) for u in loadsA(P, tok, m, i, n == 0)]
    if mg:
        u5 = {i: [x for x in qa[32 + 2 * n:34 + 2 * n]] for n, i in enumerate(GO)}
        u6 = {i: [(120, u) for u in loadsA(P, tok, 6, i, i == 2)] for i in GO}
        qa = qa[:32] + u5[1] + u5[2] + u6[2] + u5[3] + u6[3] + u6[1] + u5[0] + u6[0]
    run([u for _, u in qa[:2 * cfg.nfirst]])
    qa = qa[2 * cfg.nfirst:]
    mid = (resid_units(P, tok) if role else []) + [lateu("b") for _ in range(5 * dr)]
    qb = [(20 + (k * (110 if mg else 140)) // len(mid), u) for k, u in enumerate(mid)]
    OCHK = cfg.ochk
    qb.append((OCHK - 60, ([], poll.issue)))
    qb.sort(key=lambda x: x[0])
    qo = [(max(OCHK, S0 if ((mg and f < 4) or (cfg.oswap and f >= 16)) else 0), u) for f in FO for u in ldo(f)]
    assert not mg or nf == 4
    qw = [(BAR, lateu("w")) for _ in range(dw)]
    p = 2
    while qa or qb or qo or qw:
        assert p < N
        q = next((q for q in (qb, qa, qw, qo) if q and q[0][0] <= p - 2), None)
        if q is None or p + 1 in (BAR, WBAR) or cap[p] < 2:
            p += 1
            continue
        preps, f = q.pop(0)[1]
        for k, pp in enumerate(preps):
            lead[p - len(preps) + k].append(pp)
        body[p].append(f)
        cap[p] = 0
        p += (cfg.vspq if role else cfg.vsp) if (qa or qb) else cfg.vsp2
    event[OCHK] = poll.check

    def rdw(n):
        f, j = seq[n]
        off = f * 5120 + j * 1024
        tk["w", n] = P.ds(f"ds_read_b128 {wreg(n)}, v{vWO + (off >= 51200)} offset:{off % 51200}")
    g = 0
    NPRE = 30 if mg else 40
    for n in range(NPRE):
        g = place(max(g, 161 if n < 20 else 201 if n < 30 else 241), lambda n=n: rdw(n), maxn=1 if n < 30 else 2) + (n < 30)

    def barA():
        assert P.ds_done >= tk["x"]
        P.wait(ds=tk["sent"])
        P("s_barrier")
    event[BAR] = barA
    g = BAR
    for jj in range(5):
        for k in range(3):
            def fet(jj=jj, k=k):
                tk[jj] = P.ds(f"ds_read_b128 {vq(YP[k] + 4 * jj)}, v{vRd} offset:{k * 5120 + jj * 1024}")
            g = place(g, fet)
    GATE = g + cfg.sgate
    for n in range(NPRE, 100, 2):
        g = max(g, S0 + n - cfg.look)
        g = place(g, lambda n=n: (rdw(n), rdw(n + 1)), cost=2)
        assert g <= S0 + n - 5 or g < GATE <= S0 + n, (n, g)

    def barW():
        P.wait(vm=tok["w"])
        P("s_barrier")
    event[WBAR] = barW
    if role:
        event[cfg.qpub] = lambda: raise_flag(P, role, tr)

    if cfg.oswap:
        n0 = S0 + min(n for n, (f, j) in enumerate(seq) if f >= 16)
        g = n0 - cfg.oswap
        for f in range(16, 20):
            for k in range(2):
                def sw(f=f, k=k):
                    P.wait(vm=tok["o", f])
                    P(f"v_permlane32_swap_b32 v{OSW + 4 * (f - 16) + k}, v{OSW + 4 * (f - 16) + 2 + k}")
                g = place(g, sw, cost=2)
        assert g < n0

    fill = Side(P)

    def rdx():
        assert P.vm_done >= tok["x"]
        P.ds(f"ds_read_b128 {vq(vXD)}, v{vXS}")
        P.ds(f"ds_read_b128 {vq(vXD + 4)}, v{vXS} offset:64")
    fill.f(140, rdx, 2)

    def rdx2():
        tk["x"] = P.ds(f"ds_read_b64 {vq(vXD + 8, 2)}, v{vXS + 1} offset:128")
    fill.f(140, rdx2)
    fill.t(140, f"v_mul_f32 v{vR}, v{vR}, v{vR}\nv_mul_f32 v{vR + 1}, 0xbfb8aa3b, v{vR}\nv_rcp_f32 v{vR}, v{vR}")
    fill.f(150, lambda: P.wait(ds=tk["x"]))
    for k in range(10):
        fill.t(150, f"v_lshlrev_b32 v{XU + 2 * k}, 16, v{vXD + k}\nv_and_b32 v{XU + 2 * k + 1}, 0xffff0000, v{vXD + k}")

    def gate_head():
        tr.pt(P, 49)
        for j in range(5):
            P.wait(ds=tk[j])
            y, e = ACC + 4 * j, E + 4 * j
            for k in range(3):
                for h in (0, 2):
                    P(f"v_pk_add_f32 {vq(y + h, 2)}, {vq(y + h, 2)}, {vq(YP[k] + 4 * j + h, 2)}")
            for h in (0, 2):
                P(f"v_pk_mul_f32 {vq(e + h, 2)}, {vq(y + h, 2)}, {vq(vR, 2)} op_sel:[0,1] op_sel_hi:[1,1]")
        for r in range(cfg.ghead):
            P(f"v_exp_f32 v{E + 19 - r}, v{E + 19 - r}")
        tr.pt(P, 51)
    event[GATE] = gate_head
    for r in range(19 - cfg.ghead, -1, -1):
        fill.t(GATE, f"v_exp_f32 v{E + r}, v{E + r}")
    for r in range(18, -1, -2):
        fill.t(GATE, f"v_fma_f32 v{E + r + 1}, v{E + r + 1}, v{vR}, v{vR}\nv_fma_f32 v{E + r}, v{E + r}, v{vR}, v{vR}")
        fill.t(GATE, f"v_rcp_f32 v{E + r + 1}, v{E + r + 1}\nv_rcp_f32 v{E + r}, v{E + r}")

    for r in range(19, 19 - cfg.gmul, -1):
        fill.t(GATE, f"v_mul_f32 v{ACC + r}, v{ACC + r}, v{E + r}")

    for n, (text, vk, dk) in enumerate(mf):
        if n in event:
            event[n]()
        P.wait(vm=tok[vk], ds=tk[dk] if dk else None)
        if n == (200 if mg else 240):
            assert P.vm_done >= tok.get("b", 0)
        if n in (0, 80, 160, 240):
            tr.pt(P, 40 + n // 40)
        if n == 20:
            tr.pt(P, 41)
        if n == S0:
            tr.pt(P, 48)
        P(text)
        if n + 1 < N and n + 1 not in event and not lead[n]:
            _, vk1, dk1 = mf[n + 1]
            if vk1 in tok and (dk1 is None or dk1 in tk):
                P.wait(vm=tok[vk1], ds=tk[dk1] if dk1 else None)
        for f in lead[n] + body[n]:
            f()
        if cap[n] > 0:
            fill.take(n, cap[n] + (cfg.gover if n >= GATE else 0), False, strict=True)
    tr.pt(P, 50)
    fill.drain()
    for r in range(18 - cfg.gmul, -1, -2):
        P(f"v_pk_mul_f32 {vq(ACC + r, 2)}, {vq(ACC + r, 2)}, {vq(E + r, 2)}")
    for j in (4, 3, 2, 1, 0):
        s = ACS + 4 * j
        for h in (0, 2):
            P(f"v_pk_fma_f32 {vq(s + h, 2)}, {vq(s + h, 2)}, {vq(ACC + 4 * j + h, 2)}, {vq(XU + 4 * j + h, 2)}")
        for h in (0, 2):
            P(f"v_cvt_pk_bf16_f32 v{vXD + 2 * j + h // 2}, v{s + h}, v{s + h + 1}")
        if j == 0:
            P.ds(f"ds_write_b128 v{vXL}, {vq(vXD)}")
        if j == 2:
            P.ds(f"ds_write_b128 v{vXL}, {vq(vXD + 4)} offset:64")
        if j == 4:
            P.ds(f"ds_write_b64 v{vXL + 1}, {vq(vXD + 8, 2)} offset:128")
    tq = [P.ds(f"ds_read_b128 {vq(E + 4 * q)}, v{vRd} offset:{q * 1024}") for q in range(3)]
    for q in range(3):
        P.wait(ds=tq[q])
        P.vm(f"buffer_store_dwordx4 {vq(E + 4 * q)}, v{vXG + q}, {srd(rOUT)}, 0 offen offset:{q * 1024}{cfg.osc}")
    if tr.on:
        tr.pt(P, 52)
        P.wait_all_vm()
        tr.pt(P, 53)
        tr.pt(P, 54, real=True)
        tr.store(P)
    P("s_endpgm")
    return poll


def gen(cfg):
    FlagPoll.sc = cfg.psc
    Poll.trace = cfg.trace
    Cfg.merge, Cfg.oswap = cfg.merge, cfg.oswap
    outs = []
    P = Prog()
    tr = Trace(cfg)
    P("s_cmp_ge_u32 s2, 256")
    P("s_cbranch_scc1 L_end")
    tr.pt(P, 0, real=True)
    tr.pt(P, 1)
    P("s_load_dwordx16 s[4:19], s[0:1], 0")
    P("s_load_dwordx4 s[20:23], s[0:1], 64")
    P(f"s_getpc_b64 s[{sPC}:{sPC + 1}]")
    P("L_pc:")
    P("v_lshrrev_b32 v1, 6, v0")
    P(f"s_lshr_b32 s{sT0}, s2, 3")
    P(f"v_readfirstlane_b32 s{sW}, v1")
    P("v_and_b32 v5, 3, v0")
    P("v_lshl_add_u32 v5, v1, 2, v5")
    P(f"s_lshl_b32 s{sT1}, s{sT0}, 11")
    P(f"v_lshl_add_u32 v5, v5, 7, s{sT1}")
    P("v_min_u32 v5, L_codeend-L_pc-4, v5")
    P.vm(f"global_load_dword a255, v5, s[{sPC}:{sPC + 1}]")
    P("v_and_b32 v1, 63, v0")
    if tr.on:
        P(f"v_mov_b32 v{vTR}, 0")
    nvm0 = P.nvm
    P(f"s_lshl_b32 s{sM0A}, s{sW}, 10")
    P(f"s_bfe_u32 s{sT1}, s2, 0x10002")
    P(f"s_and_b32 s{sT2}, s2, 3")
    P(f"s_lshr_b32 s{sMT}, s{sT0}, 1")
    P(f"s_mul_i32 s{sT3}, s{sT1}, 6")
    P(f"s_add_u32 s{sMT}, s{sMT}, s{sT3}")
    P(f"s_and_b32 s{sNT}, s{sT0}, 1")
    P(f"s_lshl1_add_u32 s{sNT}, s{sT2}, s{sNT}")
    P(f"s_cmp_lt_u32 s{sT0}, 12")
    P("s_cbranch_scc1 L_qkv")
    P(f"s_and_b32 s{sT3}, s2, 0xfb")
    P(f"s_sub_u32 s{sT3}, s{sT3}, 248")
    P(f"s_cmp_lt_u32 s{sT3}, 3")
    P("s_cbranch_scc1 L_spare")
    P(f"s_mul_i32 s{sT2}, s{sT2}, 19")
    P(f"s_add_u32 s{sT2}, s{sT2}, s{sT0}")
    P(f"s_sub_u32 s{sT2}, s{sT2}, 12")
    for x in range(77):
        assert (x * 94) >> 10 == x // 11
    P(f"s_mul_i32 s{sNT}, s{sT2}, 94")
    P(f"s_lshr_b32 s{sNT}, s{sNT}, 10")
    P(f"s_mul_i32 s{sT3}, s{sNT}, 11")
    P(f"s_sub_u32 s{sT2}, s{sT2}, s{sT3}")
    P(f"s_mul_i32 s{sMT}, s{sT1}, 5")
    P(f"s_add_u32 s{sMT}, s{sMT}, s{sT2}")
    P(f"s_add_u32 s{sT1}, s{sT1}, 5")
    P(f"s_cmp_ge_u32 s{sT2}, s{sT1}")
    P(f"s_cselect_b32 s{sT3}, 5, 0")
    P(f"s_addc_u32 s{sNT}, s{sNT}, s{sNT}")
    P(f"s_sub_u32 s{sMT}, s{sMT}, s{sT3}")
    outs.append(P)
    pend0, n0 = list(tr.pend), tr.n

    for cls, lab in ((GLU, "L_glu"), (QKV, "L_qkv")):
        Q = Prog()
        Q.nvm = nvm0
        tr.pend, tr.n = list(pend0), n0
        Q(f"{lab}:")
        role = cls(Q, cfg)
        if cfg.kdiag:
            Q("s_waitcnt lgkmcnt(0)")
            tr.pt(Q, 9)
        role.prologue()
        tr.pt(Q, 2)
        phase1_loop(Q, cfg, role, tr)
        n1 = role.epilogue(tr)
        finish(Q, role, n1, tr, lab[2:])
        role.poll.slow(2 if cfg.gather else cfg.enap)
        role.pollr.slow()
        outs.append(Q)

    Q = Prog()
    Q.nvm = nvm0
    tr.pend, tr.n = list(pend0), n0
    Q("L_spare:")
    st = Stats(Q, 24)
    st.addr(Q)
    Q("s_waitcnt lgkmcnt(0)")
    mk_srd(Q, rX, sX, X_BYTES)
    common_srds(Q)
    Q(f"s_cmp_eq_u32 s2, {RESET_WG}")
    Q("s_cbranch_scc0 L_noreset")
    for k in range(4):
        Q(f"v_mov_b32 v{52 + k}, 0")
    Q("v_lshlrev_b32 v48, 4, v0")
    Q(f"v_add_u32 v48, {EF_OFF}, v48")
    Q("v_lshlrev_b32 v49, 7, v0")
    Q(f"v_add_u32 v49, {FLAG_OFF}, v49")
    Q.vm(f"buffer_store_dwordx4 {vq(52)}, v48, {srd(rST)}, 0 offen sc1", counted=False)
    Q.vm(f"buffer_store_dwordx4 {vq(52)}, v49, {srd(rST)}, 0 offen sc1", counted=False)
    Q("v_lshlrev_b32 v48, 8, v0")
    Q("v_mov_b32 v49, 1")
    Q("s_waitcnt vmcnt(0)")
    Q("s_barrier")
    Q.vm(f"buffer_store_dword v49, v48, {srd(rDBG)}, 0 offen sc1", counted=False)
    Q("L_noreset:")
    mk_srd(Q, rW0, sWQKV, 640 * 3840)
    mk_srd(Q, rW1, sWG, 640 * 3456)
    mk_srd(Q, rWR, sWU, 640 * 3456)
    Q(f"s_bfe_u32 s{sT0}, s2, 0x10002")
    Q(f"s_mul_i32 s{sT0}, s{sT0}, 3")
    Q(f"s_and_b32 s{sT1}, s2, 3")
    Q(f"s_add_u32 s{sT0}, s{sT0}, s{sT1}")
    Q(f"s_lshl_b32 s{sT0}, s{sT0}, 15")
    Q(f"v_lshl_add_u32 v56, v0, 7, s{sT0}")
    segs = {rW0: [cfg.spf * 32 * 3840, 640 * 3840], rW1: [cfg.spf2 * 32 * 3456, 640 * 3456], rWR: [cfg.spf2 * 32 * 3456, 640 * 3456]}
    rounds = []
    while any(a < b for a, b in segs.values()):
        r = rW0 if segs[rW0][0] < segs[rW0][1] else min((rW1, rWR), key=lambda r: segs[r][0])
        rounds.append((r, segs[r][0]))
        segs[r][0] += (6 if len(rounds) <= cfg.nsix else 5) * 256 * 128

    def spf(n):
        for _ in range(min(n, len(rounds))):
            r, o = rounds.pop(0)
            Q(f"v_add_u32 v57, {o}, v56")
            Q.vm(f"buffer_load_dword a255, v57, {srd(r)}, 0 offen")
    spf(1)
    for k in range(10):
        st.load(k)
    spf(2)
    sd = Side(Q)
    st.queue(sd, 0)
    pollr = Poll(Q, 48, 52, "spare", "r")
    pollr.issue(sd, 0)
    sd.drain()
    spf(2)
    pollr.check(sd, 0)
    sd.drain()
    Q("s_barrier")
    early_signal(sd, 0, Q, 48, 49)
    sd.drain()
    spf(cfg.nsix - 5)
    Q(f"s_cmp_eq_u32 s2, {RESET_WG}")
    Q("s_cbranch_scc1 L_gather")
    spf(99)
    Q("s_branch L_gathered")
    Q("L_gather:")
    polle = Poll(Q, 48, 52, "spare", "e")
    polle.issue(sd, 0)
    polle.check(sd, 0)
    sd.drain()
    Q("v_lshlrev_b32 v48, 8, v0")
    Q("v_mov_b32 v49, 1")
    Q.vm(f"buffer_store_dword v49, v48, {srd(rDBG)}, 0 offen offset:128 sc1")
    Q("L_gathered:")
    poll = Poll(Q, 48, 52, "spare", "g")
    poll.issue(sd, 0)
    poll.check(sd, 0)
    sd.drain()
    tr.pt(Q, 33)
    tile2_setup(Q, cfg)
    phase2_setup1(Q, False)
    phase2_setup2(Q)
    hpoll = enter_phase2(Q, cfg, Late(Q, [(0, "R", k) for k in range(14)] + [(0, "W", k) for k in range(25)], cut=cfg.defer), 0, tr, "spare")
    Q("s_barrier")
    Q("s_branch L_p2")
    hpoll.slow(tr, 38, cfg.snap)
    poll.slow(8)
    polle.slow(cfg.gnap)
    pollr.slow()
    outs.append(Q)
    T = Prog()
    T("L_end:")
    T("s_endpgm")
    T("L_codeend:")
    outs.append(T)
    lines = "\n".join(o.text() for o in outs).split("\n")
    if cfg.align:
        lines, n = align_pass(lines, cfg.align)
        print("alignment fixes:", n, file=sys.stderr)
    return "\n".join(lines)


HEADER = """; Kernarg layout for this problem (80 bytes, ptrs only, base s[0:1]):
;
"""


def build(cfg):
    name = NAME + "_kernel"
    return HEADER + f"""; @launch grid=(256,1,1) block=(256,1,1) lds=163840
.amdgcn_target "amdgcn-amd-amdhsa--gfx950"
.text
.globl {name}
.p2align 8
.type {name},@function
{name}:
{gen(cfg)}
.section .rodata,"a"
.p2align 6
.amdhsa_kernel {name}
  .amdhsa_next_free_vgpr 512
  .amdhsa_next_free_sgpr 102
  .amdhsa_accum_offset 256
  .amdhsa_group_segment_fixed_size 0
  .amdhsa_kernarg_size 80
  .amdhsa_user_sgpr_count 2
  .amdhsa_user_sgpr_kernarg_segment_ptr 1
  .amdhsa_system_sgpr_workgroup_id_x 1
  .amdhsa_float_denorm_mode_32 3
.end_amdhsa_kernel
"""


if __name__ == "__main__":
    cfg = Cfg()
    out = sys.argv[1]
    for a in sys.argv[2:]:
        k, v = a.split("=")
        assert hasattr(cfg, k), k
        setattr(cfg, k, eval(v))
    open(out, "w").write(build(cfg))
```

```python
import re

TRANS = ("v_exp_f32", "v_log_f32", "v_rcp_f32", "v_rsq_f32", "v_sqrt_f32", "v_sin_f32", "v_cos_f32")
REG_RE = re.compile(r"(?<![\w.])(-|abs\()?([vas])(?:\[(\d+):(\d+)\]|(\d+))(?![\w])")


def regs_of(op):
    op = op.strip()
    out = set()
    if op in ("vcc", "vcc_lo", "vcc_hi"):
        return {"vcc"}
    if op in ("exec", "exec_lo", "exec_hi"):
        return {"exec"}
    if op == "m0":
        return {"m0"}
    m = REG_RE.search(op)
    if m:
        k = m.group(2)
        if m.group(3) is not None:
            for r in range(int(m.group(3)), int(m.group(4)) + 1):
                out.add(f"{k}{r}")
        else:
            out.add(f"{k}{m.group(5)}")
    return out


def split_ops(s):
    ops, depth, cur = [], 0, ""
    for ch in s:
        if ch in "[(":
            depth += 1
        if ch in "])":
            depth -= 1
        if ch == "," and depth == 0:
            ops.append(cur.strip())
            cur = ""
        else:
            cur += ch
    if cur.strip():
        ops.append(cur.strip())
    return ops


class Ins:
    def __init__(self, text):
        self.text = text
        t = text.split(";")[0].strip()
        self.is_label = t.endswith(":")
        self.is_dir = t.startswith(".") or t == ""
        self.mn = t.split()[0] if t else ""
        rest = t[len(self.mn):].strip()
        ops = split_ops(rest)
        mods = ""
        if ops:
            parts = ops[-1].split()
            ops[-1] = parts[0]
            mods = " ".join(parts[1:])
        self.ops, self.mods = ops, mods
        mn = self.mn
        self.R, self.W = set(), set()
        self.srcA = self.srcB = self.srcC = set()
        self.store_data = set()
        self.kind = "other"
        if self.is_label or self.is_dir:
            self.kind = "label"
            return
        ro = [regs_of(o) for o in ops]
        allr = lambda l: set().union(*l) if l else set()
        if mn.startswith("v_mfma"):
            self.kind = "mfma"
            self.W = ro[0]
            self.srcA, self.srcB, self.srcC = ro[1], ro[2], ro[3]
            self.R = allr(ro[1:])
            self.passes = 4 if "16x16x32" in mn or "16x16x16" in mn else 8
        elif mn.startswith("v_"):
            self.kind = "valu"
            self.W = set(ro[0])
            self.R = allr(ro[1:])
            if mn.startswith("v_permlane"):
                self.W = ro[0] | ro[1]
                self.R = ro[0] | ro[1]
            if mn.startswith(("v_fmac", "v_pk_fmac", "v_writelane", "v_dot2c")):
                self.R |= ro[0]
            if "_dpp" in mn or "row_" in mods or "quad_perm" in mods:
                self.R |= ro[0]
            if mn.startswith(("v_add_co", "v_sub_co", "v_addc_co", "v_subb_co", "v_mad_u64")):
                self.W = ro[0] | ro[1]
                self.R = allr(ro[2:])
            if mn.startswith("v_cmpx"):
                self.W |= {"exec"}
        elif mn.startswith(("buffer_", "global_")):
            self.kind = "vmem"
            lds = " lds" in (" " + mods)
            if mn.startswith("buffer_load") and lds:
                self.R = allr(ro) | {"m0"}
                self.ldsdma = True
            elif "_load" in mn:
                self.W = ro[0]
                self.R = allr(ro[1:])
            elif mn.startswith("buffer_"):
                self.R = allr(ro)
                if "x3" in mn or "x4" in mn:
                    self.store_data = ro[0]
                if "atomic" in mn and "sc0" in mods:
                    self.W = ro[0]
            else:
                self.R = allr(ro)
                if "x3" in mn or "x4" in mn:
                    self.store_data = ro[1]
        elif mn.startswith("ds_"):
            self.kind = "ds"
            if mn.startswith(("ds_read", "ds_bpermute", "ds_permute", "ds_swizzle")):
                self.W = ro[0]
                self.R = allr(ro[1:])
            else:
                self.R = allr(ro)
        elif mn.startswith("s_"):
            self.kind = "salu"
            if mn.startswith(("s_cmp", "s_cbranch", "s_branch", "s_waitcnt", "s_barrier", "s_nop", "s_sleep",
                              "s_endpgm", "s_setprio", "s_bitcmp")):
                self.R = allr(ro)
            else:
                self.W = ro[0] if ro else set()
                self.R = allr(ro[1:])
                if "saveexec" in mn:
                    self.W = self.W | {"exec"}
        self.is_trans = any(mn.startswith(x) for x in TRANS)
        self.is_dpp = "_dpp" in mn or "row_" in self.mods or "quad_perm" in self.mods
        self.is_perm = mn.startswith("v_permlane")
        self.is_rdlane = mn.startswith(("v_readlane", "v_readfirstlane"))
        self.opsel_dst = False

    def states(self):
        if self.kind == "label":
            return 0
        if self.mn == "s_nop":
            return int(self.ops[0], 0) + 1
        return 1


def need(p, c):
    n = 0
    vreg = lambda s: {r for r in s if r[0] in "va" and r != "vcc"}
    sreg = lambda s: {r for r in s if r[0] == "s" or r == "vcc"}
    if p.kind == "valu":
        pw_v, pw_s = vreg(p.W), sreg(p.W)
        if c.kind == "mfma" and pw_v & c.R:
            n = max(n, 2)
        if c.kind == "valu":
            if (c.is_dpp or c.is_perm) and pw_v & c.R:
                n = max(n, 2)
            if c.is_rdlane and pw_v & c.R:
                n = max(n, 1)
            if p.is_trans and pw_v & c.R:
                n = max(n, 1)
            if pw_s & c.R:
                n = max(n, 4 if c.mn.startswith(("v_readlane", "v_writelane")) else 2)
            if "exec" in p.W:
                n = max(n, 5)
        if c.kind == "vmem" and pw_s & c.R:
            n = max(n, 5)
        if c.kind == "salu" and pw_s & c.R:
            n = max(n, 1)
        if c.kind == "mfma" and "exec" in p.W:
            n = max(n, 4)
    if p.kind == "mfma":
        big = {4: 8, 8: 12}[p.passes]
        if c.kind == "mfma":
            if p.W & (c.srcA | c.srcB):
                n = max(n, big)
            if p.W & c.srcC and not (p.W == c.srcC and p.passes == c.passes):
                n = max(n, {4: 6, 8: 10}[p.passes])
            if p.W & c.W and not (p.W == c.srcC):
                n = max(n, {4: 6, 8: 10}[p.passes])
        elif c.kind in ("valu", "vmem", "ds"):
            if p.W & (c.R | c.W):
                n = max(n, big)
            if c.kind == "valu" and p.srcC & c.W:
                n = max(n, {4: 3, 8: 7}[p.passes])
    if p.kind == "vmem" and p.store_data:
        if c.kind in ("valu", "mfma") and p.store_data & c.W:
            n = max(n, 2)
        elif p.store_data & c.W:
            n = max(n, 1)
    if p.kind == "salu" and "m0" in p.W:
        if (c.kind == "vmem" and "m0" in c.R) or (c.kind == "valu" and "m0" in c.R):
            n = max(n, 1)
    return n


def hazard_pass(lines):
    out = []
    window = []
    total = 0
    n_nops = 0
    for text in lines:
        c = Ins(text)
        if c.kind == "label":
            out.append(text)
            continue
        req = 0
        for (p, end) in window:
            dist = total - end
            nd = need(p, c)
            if nd > dist:
                req = max(req, nd - dist)
        if req:
            out.append(f"s_nop {req - 1}")
            total += req
            n_nops += 1
        out.append(text)
        total += c.states()
        window.append((c, total))
        window = [(p, e) for (p, e) in window if total - e < 14]
    return out, n_nops


class Prog:
    def __init__(self):
        self.lines = []
        self.nvm = 0
        self.nds = 0
        self.vm_done = 0
        self.ds_done = 0

    def __call__(self, text):
        for l in text.strip().split("\n"):
            l = l.strip()
            if not l:
                continue
            mn = l.split()[0]
            assert not mn.startswith(("buffer_", "global_", "ds_")), "use vm()/ds(): " + l
            self.lines.append(l)

    def raw(self, text):
        self.lines.append(text)

    def vm(self, text, counted=True):
        self.lines.append(text)
        if counted:
            self.nvm += 1
        return self.nvm

    def ds(self, text):
        self.lines.append(text)
        self.nds += 1
        return self.nds

    def wait(self, vm=None, ds=None, force=False):
        parts = []
        if vm is not None and (vm > self.vm_done or force):
            n = self.nvm - vm
            assert n >= 0
            if n > 63:
                n = 63
            parts.append(f"vmcnt({n})")
            self.vm_done = max(self.vm_done, self.nvm - n)
        if ds is not None and (ds > self.ds_done or force):
            n = min(self.nds - ds, 15)
            parts.append(f"lgkmcnt({n})")
            self.ds_done = max(self.ds_done, self.nds - n)
        if parts:
            self.lines.append("s_waitcnt " + " ".join(parts))

    def wait_all_ds(self):
        self.wait(ds=self.nds)

    def wait_all_vm(self):
        self.wait(vm=self.nvm)

    def pad(self, n=15):
        self.lines.append(f"s_nop {n}")

    def text(self):
        out, n = hazard_pass(self.lines)
        self.n_nops = n
        return "\n".join(("" if l.endswith(":") else "    ") + l for l in out)


def interleave(P, mains, fillers, start=0, end=None, per=None):
    n = len(mains)
    end = n if end is None else end
    slots = [[] for _ in range(n)]
    for group in fillers:
        items, s, e = group
        if not items:
            continue
        e = min(e, n)
        span = e - s
        for k, it in enumerate(items):
            slots[s + (k * span) // len(items)].append(it)
    for i, m in enumerate(mains):
        m()
        for f in slots[i]:
            f()


class Alloc:
    def __init__(self, free):
        self.free = set(free)

    def get(self, n, align=2, avoid=()):
        if n == 1:
            align = 1
        for r in sorted(self.free):
            if r % align == 0 and all((r + k) in self.free and (r + k) not in avoid for k in range(n)):
                for k in range(n):
                    self.free.remove(r + k)
                return r
        raise RuntimeError(f"no block of {n} free regs; free={sorted(self.free)}")

    def put(self, r, n):
        for k in range(n):
            assert (r + k) not in self.free
            self.free.add(r + k)


class Side:
    def __init__(self, P):
        self.P, self.q = P, []
        self.starve = 0

    def t(self, step, text, cost=None):
        for l in text.strip().split("\n"):
            l = l.strip()
            if l:
                mn = l.split()[0]
                c = 2 if (mn.startswith("v_permlane") or any(mn.startswith(x) for x in TRANS)) else 1
                self.q.append((step, cost or c, (lambda l=l: self.P(l)), mn.startswith("s_")))

    def a(self, step, text):
        n = len([l for l in text.strip().split("\n") if l.strip()])
        self.q.append((step, n, (lambda: self.P(text)), text.strip().startswith("s_")))

    def f(self, step, fn, cost=1):
        self.q.append((step, cost, fn, False))

    def drain(self):
        while self.q:
            self.q.pop(0)[2]()

    def take(self, step, budget, fresh, strict=False):
        if fresh and self.q and self.q[0][0] <= step and self.q[0][3]:
            budget += 1
        while self.q and self.q[0][0] <= step and budget > 0:
            c = self.q[0][1]
            if strict and c > budget:
                break
            if c > budget + 1 and not fresh and self.starve < 6:
                self.starve += 1
                break
            self.starve = 0
            self.q.pop(0)[2]()
            budget -= c
            fresh = False
        while self.q and self.q[0][0] <= step and self.q[0][1] == 0:
            self.q.pop(0)[2]()
        return budget


class Rec:
    def __init__(self):
        self.items = []

    def __call__(self, text):
        lines = [l.strip() for l in text.strip().split("\n") if l.strip()]
        for l in lines:
            mn = l.split()[0]
            if self.items and (mn.startswith(("s_cselect", "s_addc", "s_cmov", "s_subb"))):
                self.items[-1] += "\n" + l
            else:
                self.items.append(l)

    def into(self, side, step):
        for it in self.items:
            side.a(step, it)


def sizes_of(lines):
    import subprocess, tempfile, os
    d = tempfile.mkdtemp()
    open(d + "/t.s", "w").write('.amdgcn_target "amdgcn-amd-amdhsa--gfx950"\n.text\n' + "\n".join(lines) + "\n")
    subprocess.run(["clang", "-x", "assembler", "-target", "amdgcn-amd-amdhsa", "-mcpu=gfx950", "-c", d + "/t.s", "-o", d + "/t.o"], check=True)
    out = subprocess.run(["llvm-objdump", "-d", "--mcpu=gfx950", d + "/t.o"], capture_output=True, text=True).stdout
    sz = [4 * len(l.split("//")[1].split(":")[1].split("<")[0].split()) for l in out.split("\n") if "//" in l]
    it = iter(sz)
    res = [0 if l.strip().endswith(":") else next(it) for l in lines]
    assert next(it, None) is None
    return res


PROMOTE = ("v_add_f32", "v_mul_f32", "v_max_f32", "v_sub_f32", "v_exp_f32", "v_rcp_f32", "v_mov_b32", "v_and_b32", "v_xor_b32",
           "v_lshlrev_b32", "v_lshrrev_b32", "v_add_u32", "v_sub_u32", "v_mul_u32_u24", "v_fmac_f32", "v_cndmask_b32", "v_min_u32")


def align_pass(lines, minrun=5, heads=(), pages=(), stop=()):
    sz = sizes_of(lines)
    out, osz = [], []
    off, i, floor, fixed = 0, 0, 0, 0
    n = len(lines)
    region, nextpage, masked, slots = None, None, False, []
    while i < n:
        j = i
        while j < n and sz[j] in (8, 0):
            j += 1
        run = [k for k in range(i, j) if sz[k]]
        plain = [k for k in run if not lines[k].strip().startswith("v_mfma")]
        dense = len(run) >= minrun and 4 * len(plain) >= 3 * len(run)
        if dense and off % 8:
            cand = next((k for k in range(len(out) - 1, max(floor, len(out) - 7) - 1, -1)
                         if osz[k] == 4 and out[k].split()[0] in PROMOTE), None)
            if cand is not None:
                mn = out[cand].split()[0]
                out[cand] = out[cand].replace(mn, mn + "_e64", 1)
                osz[cand] = 8
                off += 4
                fixed += 1
            elif len(run) >= minrun + 3:
                out.append("    s_nop 0")
                osz.append(4)
                off += 4
                fixed += 1
        k = i
        while k < min(j + 1, n):
            l = lines[k].strip()
            if l in heads:
                out += [".p2align 6", ".p2align 12,,1408"]
                osz += [0, 0]
                off = 0
                floor = len(out)
            if l in pages:
                out.append(".p2align 12")
                osz.append(0)
                off, floor, region, nextpage = 0, len(out), l, 4096
            if l in stop:
                region = None
            if region and off >= nextpage and not masked and sz[k]:
                slots.append((region, len(out)))
                out.append("SLOT")
                osz.append(4)
                off += 4
                nextpage += 4096
                floor = len(out)
                if k > i:
                    break
            if l.startswith("s_mov_b64 exec"):
                masked = not l.endswith("-1")
            out.append(lines[k])
            osz.append(sz[k])
            off += sz[k]
            k += 1
        else:
            if dense:
                floor = max(floor, len(out) - 1)
        i = k
    return out, fixed, slots
```

```python
import sys
from asmlib import Prog, Alloc, Side, Rec, align_pass

NAME = "recurrent_scan__sliding_local_dilated__glu_gated_reglu__prompt"

A2_MT = 74 * 4096
A2_SIZE = 32 * A2_MT
B2_OFF = 0xA00000
B2_NT = 74 * 5120
B2_SIZE = 8 * B2_NT
ST_OFF = 0xE00000
ST_SIZE = 0x10000
FLAG_OFF = 0x8000
EF_OFF = 0x5000
RESET_WG = 254
TRACE_OFF = 0xF00000
OOB = 0x7FFF0000
X_BYTES = 2048 * 1280

sX, sWQKV, sWO, sWG, sWU, sWD, sOUT, sDBG, sWS = 4, 6, 8, 12, 14, 16, 18, 20, 22
rX, rW0, rW1, rA2, rB2, rST, rWR, rDBG, rOUT = 24, 28, 32, 36, 40, 44, 48, 52, 56
sW, sMT, sNT = 60, 61, 62
sT0, sT1, sT2, sT3 = 63, 64, 65, 66
sM0A, sM0B, sM0R = 67, 68, 69
sKA, sKB = 70, 71
sEXA = 72
sMK0, sMK1, sMK2 = 74, 76, 78
sRP, sSPIN = 80, 81
sPC = 82
sEXP = 83
sRET = 10
sMT2, sNT2, sB2K = 84, 85, 86
sB2Y, sB2W, sA2Y, sA2S = 87, 88, 89, 3
sA2Y1, sA2Y2 = 12, 13
sTR = 90
sFLAG, sRC1 = 100, 101
sHM = 4
vTR = 2
vB2 = 3


def srd(r):
    return f"s[{r}:{r + 3}]"


def vq(r, n=4):
    return f"v[{r}:{r + n - 1}]"


def aq(r, n=4):
    return f"a[{r}:{r + n - 1}]"


class Cfg:
    trace = False
    tevery = 1
    quota_glu = (9, 9, 8)
    quota_qkv = (10, 10, 10, 9, 8)
    tot_glu = 12
    tot_qkv = 10
    pfnq = 6
    pfn = 6
    pf = ((-0.4, 2), (1.9, 8))
    pfq = ((-0.4, 2),)
    st = (1.4, 1.42, -0.4, -0.4, 1.45, 1.5, 1.55, 1.6, 1.65, 1.7)
    npre = (10, 6)
    rpd = (3, 3, 3, 3, 3)
    rpr = 4.5
    rps = (5, 5, 5, 6, 6)
    sig_glu = 7
    spf2 = 14
    spf = 8
    sig_qkv = 10
    fine_qkv = 10
    fine_glu = 20
    poll_glu = 12
    poll_qkv = 13.9
    map2 = 1
    n1_glu = 3
    nepi_glu = 0
    n1_qkv = 5
    ld_every = 10
    ntail = 10
    spoll = 14
    osc = ""
    rot = False
    nfirst = 2
    wpos = 10
    tail_every = 4
    defer = (0, 3)
    deferq = (0, 3)
    ochk = 200
    vsp = 4
    vspq = 3
    vsp2 = 4
    ssp = 4
    qpub = 0
    qst = 0
    gather = False
    enap = 8
    nsix = 99
    gnap = 16
    pchk = 1.2
    atouch = 0
    burst0 = 0
    xearly = False
    align = 8
    n2 = None
    n2q = None
    nvo = 0
    vbar = 26
    ntailq = -5
    ghead = 0
    gover = 1
    gmul = 0
    otouch = 0
    warm = 2
    page = True
    near = True
    share = True
    kdiag = False
    oswap = 20
    fastq = 0
    psc = "sc1"
    fsc = "sc1"
    wlast = (17.9, 17.8)
    early_setup = False
    tpr = 1.5
    stw = 1.3
    bq = 12
    rdelay = 1
    rpg = 1
    wafter = 99
    touch = None
    snap = 16
    tail_rate = 3
    nov = 5
    tot19 = 8
    xpos = 1
    fine2_glu = 9
    boost = 6
    rstride = 2
    vmx = True
    wq = 0
    look = 8
    merge = True
    sbar = 5
    sgate = 4


def mk_srd(P, r, ptr, size, off=0):
    if off:
        P(f"s_add_u32 s{r}, s{ptr}, {off}")
        P(f"s_addc_u32 s{r + 1}, s{ptr + 1}, 0")
    else:
        P(f"s_mov_b32 s{r}, s{ptr}")
        P(f"s_mov_b32 s{r + 1}, s{ptr + 1}")
    P(f"s_mov_b32 s{r + 2}, {size}")
    P(f"s_mov_b32 s{r + 3}, 0x20000")


def smask(P, s, m):
    P(f"s_mov_b32 s{s}, 0x{m & 0xffffffff:x}")
    P(f"s_mov_b32 s{s + 1}, 0x{m >> 32:x}")


class Trace:
    def __init__(self, cfg):
        self.on = cfg.trace
        self.pend = []
        self.n = 0

    def pt(self, P, lane, real=False):
        if not self.on:
            return
        if len(self.pend) == 5:
            self.flush(P)
        s = sTR + 2 * (self.n % 5)
        self.n += 1
        P(f"{'s_memrealtime' if real else 's_memtime'} s[{s}:{s + 1}]")
        self.pend.append((s, lane))
        both = {4: 55, 13: 56, 18: 57, 23: 58, 28: 59, 33: 60, 37: 61, 44: 62, 50: 63, 35: 5, 36: 6, 40: 7}
        if lane in both:
            self.pt(P, both[lane], real=True)

    def flush(self, P, lazy=False):
        if not self.on or not self.pend:
            return
        if not lazy:
            P("s_waitcnt lgkmcnt(0)")
        for s, lane in self.pend:
            P(f"v_writelane_b32 v{vTR}, s{s}, {lane}")
        self.pend = []

    def store(self, P):
        if not self.on:
            return
        self.flush(P)
        mk_srd(P, rWR, sWS, 0x40000, TRACE_OFF)
        P(f"s_lshl_b32 s{sT0}, s2, 10")
        P(f"v_lshl_add_u32 v5, v0, 2, s{sT0}")
        P.vm(f"buffer_store_dword v{vTR}, v5, {srd(rWR)}, 0 offen")


def divc(P, dst, src, c):
    m = (65536 + c - 1) // c
    for x in range(1024):
        assert (x * m) >> 16 == x // c
    P(f"v_mul_u32_u24 v{dst}, {m}, v{src}")
    P(f"v_lshrrev_b32 v{dst}, 16, v{dst}")


class Stats:
    def __init__(self, P, base):
        self.P, self.b = P, base

    def addr(self, P):
        b = self.b
        P(f"s_and_b32 s{sT0}, s2, 4")
        P(f"s_lshl_b32 s{sT0}, s{sT0}, 8")
        P(f"s_and_b32 s{sT1}, s2, 0xf8")
        P(f"s_lshl2_add_u32 s{sT0}, s{sT1}, s{sT0}")
        P(f"s_and_b32 s{sT1}, s2, 3")
        P(f"s_lshl3_add_u32 s{sT0}, s{sT1}, s{sT0}")
        P(f"v_lshrrev_b32 v{b + 20}, 5, v0")
        P(f"v_add_u32 v{b + 20}, s{sT0}, v{b + 20}")
        P(f"v_mul_u32_u24 v{b + 22}, 1280, v{b + 20}")
        P(f"v_and_b32 v{b + 23}, 31, v0")
        P(f"v_lshl_add_u32 v{b + 21}, v{b + 23}, 2, v{b + 22}")

    def load(self, k):
        P, b = self.P, self.b
        self.tok = P.vm(f"buffer_load_dword v{b + k}, v{b + 21}, {srd(rX)}, 0 offen offset:{128 * k}")
        self.nld = getattr(self, "nld", 0) + 1

    def queue(self, sd, step):
        P, b = self.P, self.b
        e = lambda t: sd.t(step, t)
        def w():
            assert self.nld == 10
            P.wait(vm=self.tok)
        sd.f(step, w)
        for i in range(10):
            e(f"v_lshlrev_b32 v{b + 10 + i}, 16, v{b + i}")
            e(f"v_and_b32 v{b + i}, 0xffff0000, v{b + i}")
        s0, s1 = b + 21, b + 22

        def reduce32():
            e(f"v_add_f32 v{s0}, v{s0}, v{s1}")
            for sh in (8, 4, 2, 1):
                sd.t(step, f"v_add_f32_dpp v{s0}, v{s0}, v{s0} row_ror:{sh} row_mask:0xf bank_mask:0xf", 2)
            e(f"v_mov_b32 v{s1}, v{s0}")
            e(f"v_permlane16_swap_b32 v{s0}, v{s1}")
            e(f"v_add_f32 v{s0}, v{s0}, v{s1}")
            e(f"v_mul_f32 v{s0}, 0x3acccccd, v{s0}")

        e(f"v_add_f32 v{s0}, v{b}, v{b + 1}")
        e(f"v_add_f32 v{s1}, v{b + 10}, v{b + 11}")
        for i in range(2, 10):
            e(f"v_add_f32 v{s0}, v{s0}, v{b + i}")
            e(f"v_add_f32 v{s1}, v{s1}, v{b + 10 + i}")
        reduce32()
        for i in range(20):
            e(f"v_sub_f32 v{b + i}, v{b + i}, v{s0}")
        e(f"v_cvt_pk_bf16_f32 v{b + 23}, v{s0}, v{s0}")
        e(f"v_mul_f32 v{s0}, v{b}, v{b}")
        e(f"v_mul_f32 v{s1}, v{b + 1}, v{b + 1}")
        for i in range(2, 20):
            e(f"v_fmac_f32 v{s0 if i % 2 == 0 else s1}, v{b + i}, v{b + i}")
        e(f"v_lshlrev_b32 v{b + 23}, 16, v{b + 23}")
        reduce32()

        def rnd():
            e(f"v_cvt_pk_bf16_f32 v{s0}, v{s0}, v{s0}")
            e(f"v_lshlrev_b32 v{s0}, 16, v{s0}")
        rnd()
        e(f"v_add_f32 v{s0}, 0x3727c5ac, v{s0}")
        rnd()
        e(f"v_sqrt_f32 v{s0}, v{s0}")
        rnd()
        e(f"v_rcp_f32 v{s0}, v{s0}")
        e(f"v_lshlrev_b32 v{b + 20}, 2, v{b + 20}")
        e(f"v_and_b32 v{b}, 31, v0")
        e(f"v_mov_b32 v{b + 1}, {OOB}")
        e(f"v_cmp_eq_u32 vcc, 0, v{b}")
        e(f"v_lshl_add_u32 v{b + 20}, v{b}, 13, v{b + 20}")
        e(f"v_cndmask_b32 v{s0}, v{s0}, v{b + 23}, vcc")
        e(f"v_cmp_gt_u32 vcc, 2, v{b}")
        e(f"s_nop 0")
        e(f"v_cndmask_b32 v{b + 20}, v{b + 1}, v{b + 20}, vcc")

        def last():
            self.done = P.vm(f"buffer_store_dword v{s0}, v{b + 20}, {srd(rST)}, 0 offen sc1")
        sd.f(step, last, 2)


def early_signal(sd, step, P, t0, t1):
    sd.t(step, f"""
        s_lshr_b32 s{sT0}, s2, 3
        s_lshl_b32 s{sT0}, s{sT0}, 5
        s_and_b32 s{sT1}, s2, 7
        s_add_u32 s{sT0}, s{sT0}, s{sT1}
        s_lshl2_add_u32 s{sT0}, s{sT0}, {EF_OFF}
        v_cmp_eq_u32 vcc, 0, v0
        v_mov_b32 v{t0}, s{sT0}
        v_mov_b32 v{t1}, {OOB}
        v_cndmask_b32 v{t0}, v{t1}, v{t0}, vcc
        v_mov_b32 v{t1}, 1""")
    sd.f(step, lambda: P.vm(f"buffer_store_dword v{t1}, v{t0}, {srd(rST)}, 0 offen sc1"), 2)


class Poll:
    def __init__(self, P, va, vd, tag, kind):
        self.P, self.va, self.vd, self.tag, self.kind = P, va, vd, tag + kind, kind

    def ld(self):
        if self.kind != "e":
            return f"buffer_load_dword v{self.vd}, off, {srd(rDBG)}, 0{' offset:128' if self.kind == 'g' else ''} sc1"
        return f"buffer_load_dwordx4 {vq(self.vd)}, v{self.va}, {srd(rST)}, 0 offen sc1"

    def cmp(self):
        d = self.vd
        t = "" if self.kind != "e" else f"v_and_b32 v{d}, v{d}, v{d + 1}\nv_and_b32 v{d + 2}, v{d + 2}, v{d + 3}\nv_and_b32 v{d}, v{d}, v{d + 2}\n"
        return t + f"v_cmp_ne_u32 vcc, {1 if self.kind != 'e' else f's{sEXP}'}, v{d}"

    def issue(self, sd, step):
        P, a = self.P, self.va
        if self.kind == "e":
            sd.t(step, f"""v_lshrrev_b32 v{a}, 1, v1
                v_lshlrev_b32 v{a}, 3, v{a}
                v_and_or_b32 v{a}, v1, 1, v{a}
                s_lshl_b32 s{sT0}, s{sW}, 16
                s_add_u32 s{sT0}, s{sT0}, {EF_OFF}
                v_lshl_add_u32 v{a}, v{a}, 4, s{sT0}""")
            sd.a(step, f"s_cmp_eq_u32 s{sW}, 0\ns_cselect_b32 s{sEXP}, 1, 0")

        def f():
            self.tok = P.vm(self.ld())
        sd.f(step, f, 2)

    def check(self, sd, step):
        P = self.P
        sd.f(step, lambda: P.wait(vm=self.tok))
        sd.t(step, self.cmp())
        sd.a(step, f"s_nop 0\ns_cbranch_vccnz L_spin_{self.tag}\nL_back_{self.tag}:")

    def slow(self, nap=8):
        P = self.P
        P(f"L_spin_{self.tag}:")
        P(f"s_mov_b32 s{sSPIN}, 0")
        P(f"L_spin2_{self.tag}:")
        P(f"s_sleep {nap}")
        P.vm(self.ld(), counted=False)
        P(f"s_add_u32 s{sSPIN}, s{sSPIN}, 1")
        if Poll.trace:
            P(f"v_writelane_b32 v{vTR}, s{sSPIN}, {45 if self.kind == 'r' else 47}")
        P("s_waitcnt vmcnt(0)")
        P(self.cmp())
        P(f"s_cmp_lt_u32 s{sSPIN}, 0x40000")
        P("s_nop 1")
        P(f"s_cbranch_vccz L_back_{self.tag}")
        P(f"s_cbranch_scc1 L_spin2_{self.tag}")
        P(f"s_branch L_back_{self.tag}")


sB13, sA13 = 28, 29
LWO = 61440


def b2_reg(s, j):
    if s < 8:
        return aq(88 + 20 * s + 4 * j)
    if s < 12:
        return aq(20 * (s - 8) + 4 * j)
    return vq(96 + 20 * (s - 12) + 4 * j)


class Late:
    def __init__(self, P, plan, rot=False, n=95, cut=(0, 0)):
        plan = [u for u in plan if (u[2] < 14 - cut[0] if u[1] == "R" else u[2] >= cut[1])]
        n -= 5 * cut[0] + cut[1]
        self.P = P
        self.rot = rot
        self.q = []
        for step, kind, idx in plan:
            self.q += [(step, "R", idx, j) for j in range(5)] if kind == "R" else [(step, "W", idx, 0)]
        assert len(self.q) == n and len({u[1:] for u in self.q}) == n
        self.cur = None
        self.zsrd = False

    def arrange(self, step, lds_ok):
        rw = [u for u in self.q if u[0] <= step and u[1] == "W" and lds_ok]
        rr = [u for u in self.q if u[0] <= step and u[1] == "R"]
        self.q = rw + rr + [u for u in self.q if u not in rw and u not in rr]
        return len(rw) + len(rr)

    def ready(self, step):
        return self.q and self.q[0][0] <= step

    def unit(self):
        P = self.P
        step, kind, s, j = self.q.pop(0)
        preps = []
        if kind == "R":
            if self.cur != s:
                k = s if (not self.rot or s >= 12) else (s + 8) % 12
                preps.append(lambda: P(f"s_add_u32 s{sB2K}, s{sB2Y}, {k * 5120}" if s < 13 else f"s_mov_b32 s{sB2K}, s{sB13}"))
            self.cur = s
            off = f" offset:{j * 1024}" if 0 < j < 4 else ""
            assert s != 13 or self.zsrd
            r = rB2
            return step, False, preps, lambda: P.vm(f"buffer_load_dwordx4 {b2_reg(s, j)}, v{vB2 + (j >> 2)}, {srd(r)}, s{sB2K} offen{off} sc1")
        self.cur = None
        preps = [lambda: P(f"s_add_u32 m0, s{sM0A}, {LWO + s * 4096}"), lambda: P(f"s_add_u32 s{sB2K}, s{sB2W}, {s * 4096}")]
        return step, True, preps, lambda: P.vm(f"buffer_load_dwordx4 v{vB2}, {srd(rB2)}, s{sB2K} offen sc1 lds")

    def emit(self, count, step):
        while count > 0 and self.ready(step):
            _, _, preps, f = self.unit()
            for p in preps:
                p()
            f()
            count -= 1


def tile2_setup(P, cfg):
    P(f"s_and_b32 s{sT0}, s2, 7")
    P(f"s_lshr_b32 s{sT1}, s2, 3")
    if cfg.map2 == 1:
        P(f"s_lshr_b32 s{sMT2}, s{sT0}, 1")
        P(f"s_lshl_b32 s{sMT2}, s{sMT2}, 3")
        P(f"s_lshr_b32 s{sT2}, s{sT1}, 2")
        P(f"s_add_u32 s{sMT2}, s{sMT2}, s{sT2}")
        P(f"s_and_b32 s{sNT2}, s{sT0}, 1")
        P(f"s_lshl_b32 s{sNT2}, s{sNT2}, 2")
        P(f"s_and_b32 s{sT2}, s{sT1}, 3")
        P(f"s_add_u32 s{sNT2}, s{sNT2}, s{sT2}")
    elif cfg.map2 == 2:
        P(f"s_lshr_b32 s{sMT2}, s{sT0}, 1")
        P(f"s_and_b32 s{sT2}, s{sT1}, 7")
        P(f"s_lshl3_add_u32 s{sMT2}, s{sMT2}, s{sT2}")
        P(f"s_lshr_b32 s{sT2}, s{sT1}, 3")
        P(f"s_add_u32 s{sT2}, s{sT2}, s{sT1}")
        P(f"s_and_b32 s{sT2}, s{sT2}, 3")
        P(f"s_and_b32 s{sNT2}, s{sT0}, 1")
        P(f"s_lshl2_add_u32 s{sNT2}, s{sNT2}, s{sT2}")
    else:
        P(f"s_lshl_b32 s{sMT2}, s{sT0}, 2")
        P(f"s_lshr_b32 s{sT2}, s{sT1}, 3")
        P(f"s_add_u32 s{sMT2}, s{sMT2}, s{sT2}")
        P(f"s_and_b32 s{sNT2}, s{sT1}, 7")
    P(f"s_mul_i32 s{sT0}, s{sW}, 13")
    P(f"s_add_u32 s{sT0}, s{sT0}, 20")
    P(f"s_mul_i32 s{sT1}, s{sNT2}, {B2_NT}")
    P(f"s_mul_i32 s{sT2}, s{sT0}, 5120")
    P(f"s_add_u32 s{sB2Y}, s{sT1}, s{sT2}")
    P(f"s_add_u32 s{sB2W}, s{sT1}, s{sM0A}")
    P(f"s_mul_i32 s{sA2S}, s{sMT2}, {A2_MT}")
    P(f"s_lshl_b32 s{sT0}, s{sT0}, 12")
    P(f"s_add_u32 s{sA2Y}, s{sA2S}, s{sT0}")
    P(f"v_lshlrev_b32 v{vB2}, 4, v1")
    P(f"v_add_u32 v{vB2 + 1}, 4096, v{vB2}")


def b2_touch(role, sd, t0, t1):
    P, cfg = role.P, role.cfg
    if not cfg.touch:
        return
    R = Rec()
    R(f"s_sub_u32 s{sT0}, s{sB2W}, s{sM0A}")
    R(f"s_and_b32 s{sT1}, s{sW}, 1")
    R(f"s_add_u32 s{sT1}, s{sT1}, 71")
    R(f"s_mul_i32 s{sT1}, s{sT1}, 5120")
    R(f"s_add_u32 s{sT1}, s{sT1}, s{sT0}")
    R(f"s_mul_i32 s{sT2}, s{sW}, 5120")
    R(f"s_add_u32 s{sT0}, s{sT0}, s{sT2}")
    R(f"s_sub_u32 s{sT0}, s{sT0}, 10240")
    R(f"s_add_u32 s{sT2}, s{sB2Y}, {12 * 5120}")
    R(f"v_mov_b32 v{t0}, {OOB}")
    for lim, sr in ((15, sT0), (10, sT1), (5, sT2)):
        R(f"v_cmp_gt_u32 vcc, {lim}, v1")
        R(f"v_lshl_add_u32 v{t1}, v1, 10, s{sr}")
        R(f"s_nop 0")
        R(f"v_cndmask_b32 v{t0}, v{t0}, v{t1}, vcc")
    R(f"s_and_b32 s{sT0}, s{sMT2}, 7")
    R(f"s_lshl_b32 s{sT0}, s{sT0}, 7")
    R(f"v_add_u32 v{t0}, s{sT0}, v{t0}")
    R.into(sd, cfg.touch - 0.8)

    def f():
        assert role.nbar > role.early_ok
        P.vm(f"buffer_load_dword a255, v{t0}, {srd(rB2)}, 0 offen sc1")
    sd.f(cfg.touch, f, 2)


def xg_addr(P, d, t, u0, u1):
    P(f"s_lshl_b32 s{u0}, s{sMT2}, 6")
    P(f"s_lshl4_add_u32 s{u0}, s{sW}, s{u0}")
    P(f"s_lshl3_add_u32 s{u0}, s{u0}, s{sNT2}")
    P(f"s_mul_i32 s{u0}, s{u0}, 160")
    P(f"v_cmp_gt_u32 vcc, 32, v1")
    for q in range(3):
        if q:
            P(f"v_add_u32 v{t}, {64 * q}, v1")
        divc(P, t, t if q else 1, 10)
        P(f"v_mul_u32_u24 v{t}, 1120, v{t}")
        P(f"v_add3_u32 v{d + q}, v{t}, v{vB2}, s{u0}")
    P(f"v_mov_b32 v{t}, {OOB}")
    P(f"v_cndmask_b32 v{d + 2}, v{t}, v{d + 2}, vcc")
    P(f"s_mul_i32 s{u1}, s{sW}, 3072")
    P(f"s_add_u32 s{u1}, s{u1}, {LWO}")


def common_srds(P):
    mk_srd(P, rST, sWS, ST_SIZE, ST_OFF)
    mk_srd(P, rDBG, sDBG, 256)
    mk_srd(P, rA2, sWS, A2_SIZE)
    mk_srd(P, rB2, sWS, B2_SIZE, B2_OFF)


def phase1_loop(P, cfg, role, tr):
    mf, frags, bars = role.mf, role.frags, role.bars
    N = len(mf)
    per = N // 20
    tok, left = {}, {}
    state = {"m0": None, "ka": None, "kb": None}
    barpos = lambda b: -1 if b < 0 else bars[b]
    role.t, role.nbar = -1, 0

    def unit(kind, idx, q, _a, need):
        m0, (kreg, kval), load = role.dma(kind, idx, q)
        preps = []
        if state["m0"] != m0:
            preps.append(lambda m0=m0: P(f"s_add_u32 m0, s{m0[0]}, {m0[1]}"))
            state["m0"] = m0
        key = "ka" if kreg == sKA else "kb"
        if state[key] != kval:
            preps.append(lambda: P(f"s_mov_b32 s{kreg}, {kval}"))
            state[key] = kval

        def f():
            tok[need] = load()
            left[need] -= 1
        return preps, f

    def now(u):
        preps, f = unit(*u)
        for p in preps:
            p()
        f()

    order = list(role.units)
    for u in order:
        left[u[4]] = left.get(u[4], 0) + 1
    timed = role.timed()

    def timed_now(lo, hi):
        for when, items in timed:
            if lo < when <= hi:
                for _, f in items:
                    f()
    timed_now(-9, -1)
    while order[0][4] < 0:
        now(order.pop(0))
    def warm():
        P("s_mov_b64 exec, 0")
        P(f"s_call_b64 s[{sRET}:{sRET + 1}], L_hop_{role.tag}")
        P("s_mov_b64 exec, -1")
    if cfg.warm == 1:
        warm()
    role.pre_barrier()
    if cfg.warm == 2:
        warm()
    timed_now(-1, -0.5)
    for _ in range(role.npre):
        assert order[0][3] < 0
        now(order.pop(0))
    timed_now(-0.5, -1e-9)
    if cfg.warm == 3:
        warm()
    tr.pt(P, 3)
    if cfg.warm:
        P(f"s_branch L_{role.tag}2")
        P(f"L_hop_{role.tag}:")
        for w in range(3):
            P(f"s_cmp_eq_u32 s{sW}, {w}")
            P(f"s_cbranch_scc1 L_chain_{role.tag}{w}")
        P(f"s_branch L_chain_{role.tag}3")
        P(f"L_{role.tag}2:")
    P.cut = len(P.lines)
    P.wait(vm=tok[-1], ds=P.nds)
    P("s_barrier")
    tr.pt(P, 4)

    slots = [[] for _ in range(N)]
    cap = [2] * N
    for p in bars:
        cap[p - 1] -= 2
    for s in range(20):
        quota = role.quota[min(s, len(role.quota) - 1)]
        extra = list(role.extra.get(s, []))
        T = quota + len(extra)
        if role.late.arrange(s + 0.5, True):
            T = role.tot if s < 19 else role.tot19
        nring, nx = 0, len(extra)
        for k in range(T):
            p = s * per + 1 + (k * (per - 1)) // T
            if s == 0 and cfg.burst0:
                nb = min(cfg.burst0, T)
                p = 2 + 3 * k if k < nb else 3 * nb + 1 + ((k - nb + 1) * (per - 2 - 3 * nb)) // (T - nb)
            if cfg.vmx and (p + 1 in bars or p + 2 in bars):
                p -= 2 if p + 1 in bars else 1
            t = p / per
            nxt = next((x for x, u in enumerate(order) if barpos(u[3]) < p), None)
            if nxt is not None and (not extra or (T - k > len(extra) and nring < -(-(T - nx) * (k + 1) // T))):
                preps, f = unit(*order.pop(nxt))
                nring += 1
            elif extra and (len(extra[0]) < 3 or extra[0][2] < p):
                m0, f = extra.pop(0)[:2]
                preps = []
                if m0:
                    preps = [lambda m0=m0: P(f"s_add_u32 m0, s{m0[0]}, {m0[1]}")]
                    state["m0"] = m0
            elif role.late.arrange((p - 1) / per, t < role.wlast):
                _, um0, preps, g = role.late.unit()
                if um0:
                    state["m0"] = None

                def f(g=g):
                    assert role.nbar > role.early_ok
                    g()
            else:
                continue
            for k_, pp in enumerate(preps):
                g = p - len(preps) + k_
                if g < 0 or slots[g]:
                    g = p - 1
                if slots[g]:
                    cap[g] -= 1
                slots[g].append(pp)
            slots[p].append(f)
            cap[p] -= 2 if cfg.vmx else 1
        assert not extra
    assert not order
    fixed = role.fixed()
    for when, items in timed:
        if when >= 0:
            g = max(1, int(when * per))
            fixed = merge(fixed, {g - 1: items[:-1], g: items[-1:]})
    for g, items in fixed.items():
        for c, f in items:
            slots[g].append(f)
            cap[g] -= c
    first, last, seq = {}, {}, []
    for n, (_, ids) in enumerate(mf):
        for i in ids:
            if i not in first:
                first[i] = n
                seq.append(i)
            last[i] = n
    for n in set(first.values()):
        if n:
            cap[n - 1] -= 1
    prev, rtok, head = {}, {}, []
    todo = []
    for i in seq:
        texts, key, vis, _ = frags[i]
        e = 0 if vis < 0 else bars[vis]
        if key in prev:
            e = max(e, last[prev[key]] + cfg.rdelay)
        prev[key] = i
        todo.append((e, first[i], i))
    cnt = [0] * N
    for e, fu, i in sorted(todo):
        for k, text in enumerate(frags[i][0]):
            def f(i=i, text=text):
                rtok[i] = P.ds(text)
            if fu < role.nhead:
                head.append(f)
                continue
            lim = fu - 7
            rel = frags[i][3]
            if rel is not None and rel < len(bars):
                lim = min(lim, bars[rel] - 6)
            assert e <= lim, (i, e, lim)
            rest = len(frags[i][0]) - 1 - k
            if k and cfg.rstride > 1 and e + cfg.rstride * (rest + 1) <= lim and i[0] == "w" and len(frags[i][0]) > 4:
                e += cfg.rstride
            g = next((g for g in range(e, lim + 1 - rest) if cap[g] > 0 and cnt[g] < cfg.rpg), None)
            if g is None:
                g = next((g for g in range(e, lim + 1) if cap[g] > 0 and cnt[g] < 2), None)
            if g is None:
                g = min(range(e, lim + 1), key=lambda g: (-cap[g], g))
            e = g
            slots[g].append(f)
            cap[g] -= 1
            cnt[g] += 1
    for f in head:
        f()
    sd = role.side
    for n, (text, ids) in enumerate(mf):
        role.t = n / per
        if n % (per * cfg.tevery) == 0:
            tr.pt(P, 8 + n // per)
        if n in bars:
            b = bars.index(n)
            assert left.get(b, 0) == 0, b
            need = max(tok.get(b, 0), role.barrier_needs(b) or 0)
            dsn = max([rtok[i] for i in frags if frags[i][3] == b] + [role.barrier_ds(b) or 0])
            P.wait(vm=need or None, ds=dsn or None)
            P("s_barrier")
            role.nbar += 1
            tr.flush(P, lazy=True)
        P.wait(ds=max(rtok[i] for i in ids))
        P(text)
        for f in slots[n]:
            f()
        b1 = role.side2.take(role.t, cap[n], not slots[n] and cap[n] == 2)
        had = hasattr(role.stats, "done")
        sd.take(role.t, b1 + (role.t < cfg.boost), not slots[n] and b1 == 2)
        if not had and hasattr(role.stats, "done"):
            print(type(role).__name__, "statistics stored at t =", round(role.t, 2), file=sys.stderr)
    assert not sd.q and not role.side2.q, len(sd.q)
    print(type(role).__name__, "weight loads left after the loop:", len(role.late.q), "W:", sum(u[1] == "W" for u in role.late.q), file=sys.stderr)
    tr.pt(P, 28)


def spread(items, lo, hi):
    nv = sum(1 for c, _ in items if c > 1)
    out, k = {}, 0
    for c, f in items:
        g = lo + 1 + (k * (hi - lo - 1)) // max(nv, 1)
        if c > 1:
            k += 1
        else:
            g -= 1
        out.setdefault(g, []).append((c, f))
    return out


def merge(*ds):
    out = {}
    for d in ds:
        for g, it in d.items():
            out.setdefault(g, []).extend(it)
    return out


class GLU:
    LB = 40960
    LA = [106496, 0]
    LR = 143360
    ACC = 64
    vAa, vBa, vRB, vRP, vST, vH, vRA, vRB2 = 5, 11, 15, 19, 24, 28, 54, 60
    vM = (24, 25, 26, 27, 34, 35)
    aRP = 160
    tag = "glu"
    nhead = 8

    def __init__(self, P, cfg):
        self.P, self.cfg = P, cfg
        self.quota, self.tot, self.npre, self.wlast = cfg.quota_glu, cfg.tot_glu, cfg.npre[0], cfg.wlast[0]
        self.tot19 = cfg.tot19
        self.stats = Stats(P, self.vST)
        self.poll = Poll(P, 48, 24, "glu", "g" if cfg.gather else "e")
        self.pollr = Poll(P, 58, 53, "glu", "r")
        self.side = Side(P)
        self.side2 = Side(P)
        self.plan()
        e = cfg.poll_glu + cfg.pchk + 0.15
        if not cfg.gather:
            e = min(p for p in self.bars if p > (e + 0.05) * 48) / 48
        bt = lambda h: max(e, self.bars[self.ge(h)] / 48)
        self.late = Late(P, [(e, "W", k) for k in range(17, 25)] + [(e, "R", k) for k in range(8)]
                         + [(bt(15), "W", k) for k in range(7, 11)] + [(bt(16), "W", k) for k in (3, 4, 5, 6, 11, 12, 13, 14, 15, 16)]
                         + [(bt(17), "W", k) for k in range(3)]
                         + [(19.6, "R", 10)] + [(20, "R", k) for k in (8, 9, 11)] + [(21, "R", 12), (22, "R", 13)], cut=cfg.defer)
        self.extra = {}
        self.early_ok = 999
        self.build_side()

    def cs(self, j):
        return (36, 40, 44, 48, 8, 12, 16, 20)[j]

    def plan(self):
        self.mf, self.frags, self.units = [], {}, []
        have = [h for h in range(19) if h % 2 or h < self.cfg.fine_glu or h > self.cfg.fine2_glu]
        self.bars = [48 * h + 24 for h in have] + [908, 957]
        le = lambda t: max([k for k, u in enumerate(have) if u <= t], default=-1)
        ge = lambda t: -1 if t < 0 else min(k for k, u in enumerate(have) if u >= t)
        self.le, self.ge = le, ge
        for h in range(20):
            S = h // 2
            if h % 2 == 0:
                self.units += [("A", S, q, ge(h - 4), le(h - 1)) for q in range(6)]
                for i in range(6):
                    self.frags["x", S, i] = ([f"ds_read_b128 {aq(8 * i + 4 * ks)}, v{self.vRA + 2 * (S % 2) + ks} offset:{i * 2048}"
                                              for ks in range(2)], ("x", i), le(h - 1), ge(h))
            self.units += [("B", h, q, ge(h - 5), le(min(h, 18) - 1)) for q in range(4)]
            for u in range(2):
                slot, pair = (h, 1 - u) if h < 18 else (18 + u, 19 - h)
                mat = slot % 2
                wr = lambda t, ks: 48 + 16 * u + 8 * t + 4 * ks
                reg, off = (self.vRB, (3 - slot % 5) * 16384) if slot % 5 < 4 else (self.vRB2, 0)
                self.frags["w", h, u] = ([f"ds_read_b64_tr_b16 {aq(wr(t, ks) + 2 * half, 2)}, v{reg + 2 * pair + t} "
                                          f"offset:{off + ks * 8192 + half * 1024}"
                                          for t in range(2) for ks in range(2) for half in range(2)], ("w", u),
                                         le(min(h, 18) - 1), ge(h) if h < 18 else None)
                for n, i in enumerate((5, 4, 3, 2, 1, 0)):
                    for t, ks in ((0, 0), (0, 1), (1, 1), (1, 0)):
                        fresh = S == 0 and ks == t
                        t ^= n & 1
                        d = vq(self.acc(4 * mat + 2 * pair + t, i))
                        self.mf.append((f"v_mfma_f32_16x16x32_bf16 {d}, {aq(wr(t, ks))}, {aq(8 * i + 4 * ks)}, {'0' if fresh else d}",
                                        [("w", h, u), ("x", S, i)]))

    def acc(self, j, i):
        return self.ACC + (j * 6 + i) * 4

    def prologue(self):
        P = self.P
        t0, t1, t2, t3 = 48, 49, 50, 51
        P(f"s_mul_i32 s{sT0}, s{sMT}, 188")
        P(f"v_lshrrev_b32 v{t0}, 3, v0")
        P(f"v_lshrrev_b32 v{t1}, 4, v0")
        P(f"v_xor_b32 v{t2}, v{t1}, v0")
        P(f"v_and_b32 v{t2}, 7, v{t2}")
        P(f"v_cmp_gt_u32 vcc, 28, v{t0}")
        P(f"v_add_u32 v{t0}, s{sT0}, v{t0}")
        P(f"v_mul_u32_u24 v{t0}, 1280, v{t0}")
        P(f"v_lshl_add_u32 v{self.vAa}, v{t2}, 4, v{t0}")
        for q in range(1, 6):
            P(f"v_add_u32 v{self.vAa + q}, {q * 32 * 1280}, v{self.vAa}")
        P(f"v_mov_b32 v{t3}, {OOB}")
        P(f"v_cndmask_b32 v{self.vAa + 5}, v{t3}, v{self.vAa + 5}, vcc")
        P(f"v_lshrrev_b32 v{t0}, 4, v1")
        P(f"v_lshlrev_b32 v{t1}, 1, v{t0}")
        P(f"v_xor_b32 v{t1}, v{t1}, v0")
        P(f"v_and_b32 v{t1}, 15, v{t1}")
        P(f"s_cmp_eq_u32 s{sNT}, 13")
        P(f"s_cselect_b32 s{sT2}, 8, 16")
        P(f"v_mul_u32_u24 v{t0}, 3456, v{t0}")
        P(f"s_mul_i32 s{sT1}, s{sW}, {16 * 3456}")
        P(f"s_lshl_b32 s{sT0}, s{sNT}, 8")
        P(f"s_add_u32 s{sT1}, s{sT1}, s{sT0}")
        for q in (0, 2):
            if q:
                P(f"v_xor_b32 v{t1}, 8, v{t1}")
                P(f"s_add_u32 s{sT1}, s{sT1}, {8 * 3456 - 2048}")
            P(f"v_cmp_gt_u32 vcc, s{sT2}, v{t1}")
            P(f"v_lshlrev_b32 v{t2}, 4, v{t1}")
            P(f"v_add3_u32 v{t2}, v{t2}, v{t0}, s{sT1}")
            P(f"v_cndmask_b32 v{self.vBa + q}, v{t3}, v{t2}, vcc")
            P(f"v_add_u32 v{self.vBa + q + 1}, {4 * 3456 - 1024}, v{self.vBa + q}")
        P(f"s_lshl_b32 s{sM0B}, s{sW}, 12")
        P(f"s_cmp_eq_u32 s{sW}, 3")
        P(f"s_cselect_b32 s{sEXA + 1}, 0x00ffffff, -1")
        P(f"s_mov_b32 s{sEXA}, -1")
        self.stats.addr(P)
        for r, n in ((rX, X_BYTES), (rW0, 640 * 3456), (rW1, 640 * 3456), (rOUT, 640 * 3456)):
            P(f"s_mov_b32 s{r + 2}, {n}")
            P(f"s_mov_b32 s{r + 3}, 0x20000")
        if any(w <= -1 for w, _ in self.cfg.pf):
            self.pf_setup(P)
        P(f"s_cmp_lt_u32 s{sW}, 2")
        P("s_waitcnt lgkmcnt(0)")
        P(f"s_mov_b64 s[{rX}:{rX + 1}], s[{sX}:{sX + 1}]")
        P(f"s_cselect_b64 s[{rOUT}:{rOUT + 1}], s[{sWG}:{sWG + 1}], s[{sWU}:{sWU + 1}]")
        P(f"s_mov_b64 s[{rW0}:{rW0 + 1}], s[{sWG}:{sWG + 1}]")
        P(f"s_mov_b64 s[{rW1}:{rW1 + 1}], s[{sWU}:{sWU + 1}]")

    def pre_barrier(self):
        P = self.P
        t0, t1, t2, t3 = 48, 49, 50, 51
        if not any(w <= -1 for w, _ in self.cfg.pf):
            self.pf_setup(P)
        for k in range(4):
            P(f"v_mov_b32 v{60 + k}, 0x3f803f80")
        P(f"v_and_b32 v{t0}, 7, v0")
        P(f"s_and_b32 s{sT0}, s{sW}, 1")
        P(f"s_mul_i32 s{sT0}, s{sT0}, {self.LA[0]}")
        P(f"s_add_u32 s{sT0}, s{sT0}, {191 * 128}")
        P(f"v_lshl_add_u32 v{t0}, v{t0}, 4, s{sT0}")
        P.ds(f"ds_write_b128 v{t0}, {vq(60)}")
        P(f"v_and_b32 v{t0}, 15, v0")
        P(f"v_bfe_u32 v{t1}, v0, 4, 2")
        P(f"v_lshrrev_b32 v{t2}, 1, v{t0}")
        P(f"v_xor_b32 v{t2}, v{t2}, v{t1}")
        P(f"v_lshlrev_b32 v{t2}, 4, v{t2}")
        P(f"v_lshl_add_u32 v{t2}, v{t0}, 7, v{t2}")
        P(f"s_lshr_b32 s{sT0}, s{sW}, 1")
        P(f"s_mul_i32 s{sT0}, s{sT0}, 12288")
        P(f"v_add_u32 v{self.vRA + 2}, s{sT0}, v{t2}")
        P(f"v_xor_b32 v{self.vRA + 3}, 64, v{self.vRA + 2}")
        P(f"v_add_u32 v{self.vRA}, {self.LA[0]}, v{self.vRA + 2}")
        P(f"v_add_u32 v{self.vRA + 1}, {self.LA[0]}, v{self.vRA + 3}")
        P(f"v_bfe_u32 v{t0}, v0, 2, 2")
        P(f"v_lshl_add_u32 v{t2}, v{t1}, 3, v{t0}")
        P(f"v_and_b32 v{t3}, 3, v0")
        P(f"v_lshlrev_b32 v{t3}, 3, v{t3}")
        P(f"v_lshl_add_u32 v{t2}, v{t2}, 8, v{t3}")
        P(f"v_add_u32 v{t2}, {self.LB}, v{t2}")
        P(f"v_bfe_u32 v{t3}, v0, 2, 3")
        P(f"s_and_b32 s{sT0}, s{sW}, 1")
        P(f"s_lshl_b32 s{sT0}, s{sT0}, 2")
        P(f"v_xor_b32 v{t3}, s{sT0}, v{t3}")
        P(f"v_lshl_add_u32 v{self.vRB}, v{t3}, 5, v{t2}")
        for k in range(1, 4):
            P(f"v_xor_b32 v{self.vRB + k}, {32 * k}, v{self.vRB}")
        for k in range(4):
            P(f"v_subrev_u32 v{self.vRB2 + k}, 16384, v{self.vRB + k}")
        for it in getattr(self, "setup", []):
            P(it)

    def pf_setup(self, P):
        t0, t1, t3 = 48, 49, 51
        divc(P, t0, 1, 3)
        P(f"v_mul_u32_u24 v{t0}, 29, v{t0}")
        P(f"s_mul_i32 s{sT0}, s{sMT}, 3")
        P(f"s_min_u32 s{sT0}, s{sT0}, 29")
        P(f"v_add3_u32 v{t0}, v{t0}, v1, s{sT0}")
        P(f"v_mul_u32_u24 v{t0}, 3456, v{t0}")
        P(f"v_cmp_gt_u32 vcc, {3 * self.cfg.pfn}, v1")
        P(f"s_and_b32 s{sT0}, s{sW}, 1")
        P(f"s_lshl1_add_u32 s{sT0}, s{sNT}, s{sT0}")
        P(f"s_min_u32 s{sT0}, s{sT0}, 26")
        P(f"s_lshl_b32 s{sT0}, s{sT0}, 7")
        P(f"v_add_u32 v{t0}, s{sT0}, v{t0}")
        P(f"v_cndmask_b32 v52, v{t3}, v{t0}, vcc")

    def timed(self):
        P, cfg = self.P, self.cfg
        out = [(w, [(1, lambda f=f: P(f"s_mov_b32 s{sT3}, {f * 32 * 3456}")),
                    (1, lambda: P.vm(f"buffer_load_dword a255, v52, {srd(rOUT)}, s{sT3} offen"))]) for w, f in cfg.pf]
        out += [(w, [(1, lambda k=k: self.stats.load(k))]) for k, w in enumerate(cfg.st)]
        return out

    def build_side(self):
        P, sd, s2, cfg = self.P, self.side, self.side2, self.cfg
        t0, t1, t2, t3 = 48, 49, 50, 51
        R = Rec()
        R(f"s_mul_i32 s{sM0R}, s{sW}, 5120")
        R(f"s_add_u32 s{sM0R}, s{sM0R}, {self.LR}")
        R(f"s_mul_i32 s{sT0}, s{sMT}, 14")
        R(f"s_add_u32 s{sT0}, s{sT0}, s{sNT}")
        R(f"s_lshl_b32 s{sFLAG}, s{sT0}, 7")
        R(f"s_add_u32 s{sFLAG}, s{sFLAG}, {FLAG_OFF}")
        R(f"s_min_u32 s{sT0}, s{sT0}, 147")
        R(f"s_and_b32 s{sT1}, s{sT0}, 1")
        R(f"s_lshl2_add_u32 s{sT1}, s{sT1}, s{sW}")
        R(f"s_lshr_b32 s{sT0}, s{sT0}, 1")
        R(f"s_mul_i32 s{sRP}, s{sT1}, {B2_NT}")
        R(f"s_mul_i32 s{sT2}, s{sT0}, 5120")
        R(f"s_add_u32 s{sRP}, s{sRP}, s{sT2}")
        R(f"s_mul_i32 s{sT1}, s{sT1}, 160")
        sB, sC2, sU = sT2, sMK1, sMK1 + 1
        R(f"s_lshl_b32 s{sB}, s{sT0}, 5")
        R(f"s_sub_u32 s{sB}, s{sB}, 640")
        R(f"s_mul_i32 s{sU}, s{sT0}, 160")
        R(f"s_sub_u32 s{sU}, s{sU}, {160 * 16 - 16}")
        R(f"s_mov_b32 s{rWR + 2}, {1728 * 1280}")
        R(f"s_mov_b32 s{rWR + 3}, 0x20000")
        R(f"s_cmp_lt_u32 s{sT0}, 20")
        R(f"s_cselect_b32 s{sB}, s{sU}, s{sB}")
        R(f"s_cselect_b32 s{sC2}, 20, 4")
        R(f"s_cmp_lt_u32 s{sT0}, 20")
        R(f"s_cselect_b64 s[{rWR}:{rWR + 1}], s[{sWO}:{sWO + 1}], s[{sWD}:{sWD + 1}]")
        R(f"s_cmov_b32 s{rWR + 2}, {640 * 1280}")
        R(f"s_lshl_b32 s{sRC1}, s{sC2}, 2")
        R(f"s_mul_i32 s{sU}, s{sT0}, 40")
        R(f"s_cmp_lt_u32 s{sT0}, 16")
        R(f"s_cselect_b32 s{sB}, s{sU}, s{sB}")
        R(f"s_cmov_b32 s{sC2}, 4")
        R(f"s_cmov_b32 s{sRC1}, 20")
        for q in range(5):
            R(f"v_add_u32 v{t0}, {64 * q}, v1")
            divc(R, t1, t0, 10)
            R(f"v_mul_u32_u24 v{t2}, 10, v{t1}")
            R(f"v_sub_u32 v{t0}, v{t0}, v{t2}")
            R(f"v_lshrrev_b32 v{t2}, 4, v{t1}")
            R(f"v_mul_u32_u24 v{t2}, s{sRC1}, v{t2}")
            R(f"v_bfe_u32 v{t3}, v{t1}, 2, 2")
            R(f"v_mad_u32_u24 v{t2}, v{t3}, s{sC2}, v{t2}")
            R(f"v_and_b32 v{t1}, 3, v{t1}")
            R(f"v_add3_u32 v{t2}, v{t2}, v{t1}, s{sB}")
            R(f"v_mul_u32_u24 v{t2}, 1280, v{t2}")
            R(f"v_lshlrev_b32 v{t0}, 4, v{t0}")
            R(f"v_add3_u32 v{self.vRP + q}, v{t0}, v{t2}, s{sT1}")
        if cfg.early_setup:
            self.setup, self.rp_ready = R.items, True
        else:
            R.into(sd, 0)
        sd.f(0, lambda: setattr(self, "rp_ready", True), 0)
        R = Rec()
        R(f"v_lshrrev_b32 v{t0}, 2, v1")
        R(f"v_mul_u32_u24 v{t0}, 160, v{t0}")
        R(f"v_add_u32 v{t0}, s{sM0R}, v{t0}")
        R(f"v_and_b32 v{t1}, 3, v1")
        R(f"v_lshl_add_u32 v58, v{t1}, 4, v{t0}")
        R(f"v_lshl_add_u32 v59, v{t1}, 3, v{t0}")
        common_srds(R)
        tile2_setup(R, cfg)
        R.into(sd, 0)
        sd.f(0, lambda: setattr(self, "srd_ready", True), 0)
        self.stats.queue(sd, max(cfg.st) + cfg.stw)
        self.pollr.issue(sd, 0)
        for q in range(5):
            def f(q=q):
                assert self.rp_ready
                self.tokR = P.vm(f"buffer_load_dwordx4 v{self.vRP + q}, {srd(rWR)}, 0 offen lds")
            self.extra.setdefault(cfg.rpd[q], []).append(((sM0R, q * 1024), f))

        def w():
            assert self.srd_ready and self.t > max(cfg.rpd) + 1
            P.wait(vm=self.tokR)
        s2.f(cfg.rpr, w)
        for j in range(5):
            for half in range(2):
                def f(j=j, half=half):
                    off = half * 2560 + ((j >> 1) * 64 + (j & 1) * 8 if j < 4 else 128)
                    self.tkR = (P.ds(f"ds_read_b64_tr_b16 {aq(self.aRP + 4 * j + 2 * half, 2)}, v{58 if j < 4 else 59} offset:{off}"), j, half)
                s2.f(cfg.rpr, f)
        for j in range(5):
            def f(j=j):
                assert self.tkR[1:] == (4, 1)
                P.wait(ds=self.tkR[0])
                off = f" offset:{j * 1024}" if 0 < j < 4 else ""
                self.tokRS = P.vm(f"buffer_store_dwordx4 {aq(self.aRP + 4 * j)}, v{vB2 + (j >> 2)}, {srd(rB2)}, s{sRP} offen{off} sc1")
            self.extra.setdefault(cfg.rps[j], []).append((None, f))
        self.SIG = self.ge(cfg.sig_glu)
        assert cfg.sig_glu > max(cfg.rps)
        self.pollr.check(sd, self.bars[self.SIG] / 48 - 0.4)
        early_signal(sd, self.bars[self.SIG] / 48, P, t0, t1)
        assert cfg.poll_glu + 1 > max([w for w, _ in cfg.pf] + [0])
        self.poll.issue(sd, cfg.poll_glu)
        self.poll.check(sd, cfg.poll_glu + cfg.pchk)
        sd.f(0, lambda: setattr(self, "early_ok", -1 if self.cfg.gather else self.nbar), 0)
        R = Rec()
        R(f"s_mul_i32 s{sT0}, s{sMT}, 188")
        R(f"s_lshr_b32 s{sT1}, s{sW}, 1")
        R(f"s_mul_i32 s{sT1}, s{sT1}, 96")
        R(f"s_add_u32 s{sT2}, s{sT0}, 188")
        R(f"s_min_u32 s{sT2}, s{sT2}, 2048")
        R(f"s_add_u32 s{sT0}, s{sT0}, s{sT1}")
        R(f"s_and_b32 s{sT1}, s{sW}, 1")
        R(f"s_add_u32 s{sT1}, s{sT1}, s{sNT}")
        R(f"s_cmp_eq_u32 s{sT1}, 14")
        R(f"s_cselect_b32 s{sT2}, 0, s{sT2}")
        R(f"s_mov_b32 s{sT1}, {A2_MT}")
        u0, u1 = 52, 53
        R(f"v_and_b32 v{u0}, 48, v0")
        R(f"v_mov_b32 v{u1}, {OOB}")
        R(f"v_and_b32 v{t0}, 15, v0")
        R(f"v_add_u32 v{t0}, s{sT0}, v{t0}")
        for i in range(6):
            if i:
                R(f"v_add_u32 v{t0}, 16, v{t0}")
            R(f"v_cmp_gt_u32 vcc, s{sT2}, v{t0}")
            R(f"v_lshrrev_b32 v{t1}, 6, v{t0}")
            R(f"v_mul_lo_u32 v{t1}, v{t1}, s{sT1}")
            R(f"v_bfe_u32 v{t2}, v{t0}, 4, 2")
            R(f"v_lshl_add_u32 v{t1}, v{t2}, 10, v{t1}")
            R(f"v_and_or_b32 v{t2}, v{t0}, 15, v{u0}")
            R(f"v_lshl_add_u32 v{t1}, v{t2}, 4, v{t1}")
            R(f"v_cndmask_b32 v{self.vH + i}, v{u1}, v{t1}, vcc")
            R(f"v_min_u32 v{t1}, 2047, v{t0}")
            R(f"v_lshlrev_b32 v{self.vM[i]}, 2, v{t1}")
        R.into(sd, 0)
        sd.f(0, lambda: setattr(self, "m_ok", True), 0)
        b2_touch(self, sd, t0, t1)
        if cfg.xearly:
            R = Rec()
            xg_addr(R, self.vRP, t0, sT0, sM0R)
            R.into(sd, 0)
            sd.f(0, lambda: setattr(self, "x_ok", True), 0)
            for q, (_, g) in enumerate(resid_units(P, {}, reg=self.vRP)):
                def f(g=g):
                    assert self.x_ok and self.nbar > self.ge(17)
                    g()
                self.extra.setdefault(17, []).append(((sM0R, 0), f, self.bars[self.ge(17)] + 1))
        for i in range(6):
            def f(i=i):
                assert self.early_ok < self.nbar and self.m_ok
                self.tokM = P.vm(f"buffer_load_dword v{self.vM[i]}, v{self.vM[i]}, {srd(rST)}, 0 offen sc1")
            self.extra.setdefault(15 + i // 2, []).append((None, f))
        R = Rec()
        R(f"s_and_b32 s{sT0}, s{sW}, 1")
        R(f"s_lshl_b32 s{sT1}, s{sT0}, 9")
        R(f"v_and_b32 v6, 48, v0")
        R(f"v_add_u32 v6, s{sT1}, v6")
        R(f"s_lshl1_add_u32 s{sT0}, s{sNT}, s{sT0}")
        R(f"s_lshl_b32 s{sT0}, s{sT0}, 13")
        R(f"s_add_u32 s{sT0}, s{sT0}, {20 * 4096}")
        R(f"s_add_u32 s{sT1}, s{sT0}, 4096")
        R(f"s_cmp_ge_u32 s{sW}, 2")
        R(f"s_cselect_b32 s{sMK0}, 0x80008000, 0")
        R(f"s_mov_b32 s{sMK0 + 1}, s{sMK0}")
        R(f"v_lshlrev_b32 v5, 4, v0")
        R(f"v_add_u32 v5, 4096, v5")
        R(f"v_cndmask_b32 v5, v5, v6, s[{sMK0}:{sMK0 + 1}]")
        R.into(sd, 17)
        sd.f(17, lambda: setattr(self, "epi_ok", True), 0)

    def dma(self, kind, idx, q):
        P = self.P
        if kind == "A":
            def load():
                if q == 5:
                    P(f"s_mov_b64 exec, s[{sEXA}:{sEXA + 1}]")
                t = P.vm(f"buffer_load_dwordx4 v{self.vAa + q}, {srd(rX)}, s{sKA} offen lds")
                if q == 5:
                    P("s_mov_b64 exec, -1")
                assert self.t < 17
                return t
            return (sM0A, self.LA[idx % 2] + q * 4096), (sKA, idx * 128), load
        off = f" offset:{q * 1024}" if q else ""
        return ((sM0B, self.LB + (3 - idx % 5) * 16384), (sKB, (idx // 2) * 64 * 3456),
                lambda: P.vm(f"buffer_load_dwordx4 v{self.vBa + q}, {srd(rW1 if idx % 2 else rW0)}, s{sKB} offen{off} lds"))

    def barrier_needs(self, b):
        return max(self.stats.done, self.tokRS) if b == self.SIG else None

    def barrier_ds(self, b):
        return self.tkw if b >= len(self.bars) - 2 else None

    def fixed(self):
        P = self.P
        fx = {}
        for g, j in ((889, 2), (893, 3), (898, 6), (901, 7), (925, 0), (929, 1), (946, 4), (949, 5)):
            def wr(j=j):
                assert self.epi_ok
                self.tkw = P.ds(f"ds_write_b128 v5, {vq(self.acc(j, 5))} offset:{j * 64}")
            fx[g] = [(2, wr)]
        self.tkc = {}
        for g, j in ((908, 2), (909, 6), (910, 3), (911, 7), (957, 0), (957, 4), (958, 1), (958, 5)):
            def f(j=j):
                self.tkc[j] = P.ds(f"ds_read_b128 {vq(self.cs(j))}, v6 offset:{j * 64}")
            fx.setdefault(g, []).append((1, f))
        fx[903] = [(1, lambda: P.wait(vm=self.tokM))]
        for i in range(6):
            fx.setdefault(903 + i // 2, []).append((1, lambda i=i: P(f"v_xor_b32 v{self.vM[i]}, 0x80000000, v{self.vM[i]}")))
        ops = []
        for i in (5, 4, 3, 2, 1, 0)[:self.cfg.nov]:
            ops += self.block(1, i, False)
        lo, hi = 916, 960
        for k, f in enumerate(ops):
            fx.setdefault(lo + (k * (hi - lo)) // len(ops), []).append((1, f))
        return fx

    def block(self, p, i, packed):
        P = self.P
        out = []
        e = lambda t: out.append(lambda: P(t))
        mp, sel = self.vM[i & ~1], i & 1
        mods = f"op_sel:[0,{sel},0] op_sel_hi:[1,{sel},1]"
        dst = self.acc(2 * p, i)
        for jj in (2 * p, 2 * p + 1):
            g, u = self.acc(jj, i), self.acc(jj + 4, i)
            out.append(lambda jj=jj: P.wait(ds=self.tkc[jj + 4]))
            for a, c in ((g, self.cs(jj)), (u, self.cs(jj + 4))):
                if packed:
                    for h in (0, 2):
                        e(f"v_pk_fma_f32 {vq(a + h, 2)}, {vq(c + h, 2)}, {vq(mp, 2)}, {vq(a + h, 2)} {mods}")
                else:
                    for r in range(4):
                        e(f"v_fmac_f32 v{a + r}, v{c + r}, v{self.vM[i]}")
            for r in range(4):
                e(f"v_max_f32 v{g + r}, 0, v{g + r}")
            if packed:
                for h in (0, 2):
                    e(f"v_pk_mul_f32 {vq(u + h, 2)}, {vq(u + h, 2)}, {vq(g + h, 2)}")
            else:
                for r in range(4):
                    e(f"v_mul_f32 v{u + r}, v{u + r}, v{g + r}")
            for h in (0, 2):
                e(f"v_cvt_pk_bf16_f32 v{dst + 2 * (jj & 1) + h // 2}, v{u + h}, v{u + h + 1}")

        def st():
            self.tokS = P.vm(f"buffer_store_dwordx4 {vq(dst)}, v{self.vH + i}, {srd(rA2)}, s{sT0 + p} offen sc1")
        return out + [st]

    def epilogue(self, tr):
        P, cfg = self.P, self.cfg
        todo = [(p, i) for p in (1, 0) for i in (5, 4, 3, 2, 1, 0)][cfg.nov:]
        for k, (p, i) in enumerate(todo):
            for f in self.block(p, i, True):
                f()
            self.late.emit(((k + 1) * cfg.nepi_glu) // len(todo) - (k * cfg.nepi_glu) // len(todo), 20)
        return cfg.n1_glu


class QKV:
    LB = 49152
    LA = [0, 24576]
    LS = 159744
    vRB2 = 13
    ACC = 76
    vAa, vBa, vRA, vRB, vSEL, vST, vM1, vR1, vTK, vT = 5, 70, 11, 15, 17, 22, 46, 50, 54, 60
    BIAS = 12
    tag = "qkv"
    nhead = 8

    def __init__(self, P, cfg):
        self.P, self.cfg = P, cfg
        self.quota, self.tot, self.npre, self.wlast = cfg.quota_qkv, cfg.tot_qkv, cfg.npre[1], cfg.wlast[1]
        self.tot19 = cfg.tot_qkv
        self.pfs = cfg.pf if cfg.pfq is None else cfg.pfq
        self.stats = Stats(P, self.vST)
        self.poll = Poll(P, 60, 22, "qkv", "g" if cfg.gather else "e")
        self.pollr = Poll(P, 73, 75, "qkv", "r")
        self.side = Side(P)
        self.side2 = Side(P)
        self.plan()
        e = cfg.poll_qkv + cfg.pchk + 0.25
        if not cfg.gather:
            e = min(p for p in self.bars if p > e * 45) / 45
        wt = max(e, self.bars[self.le(23)] / 45)
        assert cfg.wq <= 9
        self.late = Late(P, [(e, "R", k) for k in range(8)] + [(wt if k < 6 + cfg.wq else 20, "W", k) for k in range(6, 25)]
                         + [(20, "R", k) for k in (8, 9, 10, 11)] + [(20, "W", k) for k in range(6)]
                         + [(21, "R", 12), (22, "R", 13)], rot=cfg.rot, cut=cfg.deferq)
        self.extra = {}
        self.early_ok = 999
        self.build_side()

    def plan(self):
        self.mf, self.frags, self.units = [], {}, []
        bq = self.cfg.bq
        have = [t for t in range(30) if t % 3 == 2 or t < self.cfg.fine_qkv or t == 28]
        self.bars = [30 * t + bq + (3 if t == 28 else 0) for t in have]
        le = lambda t: max([k for k, u in enumerate(have) if u <= t], default=-1)
        ge = lambda t: -1 if t < 0 else min(k for k, u in enumerate(have) if u >= t)
        self.le = le
        n = 0
        for t in range(30):
            S, sec = t // 3, 2 - t % 3
            xr = lambda G, ks: 24 * (S % 2) + 8 * G + 4 * ks
            vis = le(t - 1)
            if t % 3 == 0:
                self.units += [("A", S, q, ge(t - 6), vis) for q in range(6)]
                for G in range(3):
                    self.frags["x", S, G] = ([f"ds_read_b128 {aq(xr(G, ks))}, v{self.vRA + ks} offset:{self.LA[S % 2] + G * 2048}"
                                              for ks in range(2)], ("x", S % 2, G), vis, ge(t))
            self.units += [("B", t, q, ge(t - 9), vis) for q in range(3)]
            for i in range(5):
                wr = lambda ks: 48 + 8 * i + 4 * ks
                reg = (self.vRB2 if t % 9 >= 5 else self.vRB) + (i == 4)
                self.frags["w", t, i] = ([f"ds_read_b64_tr_b16 {aq(wr(ks) + 2 * half, 2)}, v{reg} "
                                          f"offset:{(t % 9 % 5) * 12288 + ks * 5632 + half * 640 + (i * 40 if i < 4 else 0)}"
                                          for ks in range(2) for half in range(2)], ("w", i), vis, ge(t))
                for G in ((0, 1, 2) if (5 * t + i) % 2 == 0 else (2, 1, 0)):
                    for kk in range(2):
                        ks = kk ^ (n & 1)
                        d = vq(self.acc(sec, i, G))
                        w, x = aq(wr(ks)), aq(xr(G, ks))
                        a, b = (w, x) if sec < 2 else (x, w)
                        self.mf.append((f"v_mfma_f32_16x16x32_bf16 {d}, {a}, {b}, {d if (S or kk) else '0'}",
                                        [("w", t, i), ("x", S, G)]))
                    n += 1

    def acc(self, sec, i, G):
        return self.ACC + ((sec * 5 + i) * 3 + G) * 4

    def prologue(self):
        P = self.P
        t0, t1, t2, t3 = 60, 61, 62, 63
        P(f"s_mul_i32 s{sT0}, s{sMT}, 176")
        P(f"s_sub_u32 s{sT0}, s{sT0}, 16")
        P(f"v_lshrrev_b32 v{t0}, 3, v0")
        P(f"v_lshrrev_b32 v{t1}, 4, v0")
        P(f"v_xor_b32 v{t1}, v{t1}, v0")
        P(f"v_and_b32 v{t1}, 7, v{t1}")
        P(f"v_add_u32 v{t2}, s{sT0}, v{t0}")
        P(f"v_cmp_le_i32 vcc, 0, v{t2}")
        P(f"v_mul_i32_i24 v{t0}, 1280, v{t2}")
        P(f"v_lshl_add_u32 v{self.vAa}, v{t1}, 4, v{t0}")
        for q in range(1, 6):
            P(f"v_add_u32 v{self.vAa + q}, {q * 32 * 1280}, v{self.vAa}")
        P(f"v_mov_b32 v{t3}, {OOB}")
        P(f"v_cndmask_b32 v{self.vAa}, v{t3}, v{self.vAa}, vcc")
        P(f"s_mul_i32 s{sT0}, s{sNT}, 160")
        P(f"s_mul_i32 s{sT1}, s{sW}, 192")
        for q in range(3):
            if q:
                P(f"s_add_u32 s{sT1}, s{sT1}, 64")
                P(f"s_sub_u32 s{sT0}, s{sT0}, 1024")
            P(f"v_add_u32 v{t0}, s{sT1}, v1")
            divc(P, t1, t0, 88)
            P(f"v_mul_u32_u24 v{t2}, 88, v{t1}")
            if q == 2:
                P(f"v_cmp_gt_u32 s[{sMK0}:{sMK0 + 1}], 8, v{t1}")
            P(f"v_sub_u32 v{t0}, v{t0}, v{t2}")
            P(f"v_cmp_gt_u32 vcc, 80, v{t0}")
            divc(P, t2, t0, 10)
            P(f"v_mul_u32_u24 v{t1}, {8 * 3840}, v{t1}")
            P(f"v_mul_u32_u24 v{t2}, {3840 - 160}, v{t2}")
            P(f"v_lshl_add_u32 v{t1}, v{t0}, 4, v{t1}")
            P(f"v_add3_u32 v{t1}, v{t1}, v{t2}, s{sT0}")
            P(f"v_cndmask_b32 v{self.vBa + q}, v{t3}, v{t1}, vcc")
        P(f"v_cndmask_b32 v{self.vBa + 2}, v{t3}, v{self.vBa + 2}, s[{sMK0}:{sMK0 + 1}]")
        P(f"s_mul_i32 s{sM0B}, s{sW}, 3072")
        P(f"s_cmp_eq_u32 s{sW}, 0")
        P(f"s_cselect_b32 s{sEXA}, 0xffffff00, -1")
        P(f"s_mov_b32 s{sEXA + 1}, -1")
        if any(w <= -1 for w, _ in self.pfs):
            self.pf_setup(P)
        self.stats.addr(P)
        for r, n in ((rX, X_BYTES), (rW0, 640 * 3840)):
            P(f"s_mov_b32 s{r + 2}, {n}")
            P(f"s_mov_b32 s{r + 3}, 0x20000")
        P("s_waitcnt lgkmcnt(0)")
        P(f"s_mov_b64 s[{rW0}:{rW0 + 1}], s[{sWQKV}:{sWQKV + 1}]")
        P(f"s_mov_b64 s[{rX}:{rX + 1}], s[{sX}:{sX + 1}]")

    @staticmethod
    def masks():
        par = cur0 = cur1 = 0
        for l in range(64):
            q, g = l & 15, l >> 4
            if q & 1:
                par |= 1 << l
            if 4 * g + (q & 1) <= q:
                cur0 |= 1 << l
            if 4 * g + 2 + (q & 1) <= q:
                cur1 |= 1 << l
        return par, cur0, cur1

    def pre_barrier(self):
        P = self.P
        t0, t1, t2, t3 = 60, 61, 62, 63
        if not any(w <= -1 for w, _ in self.pfs):
            self.pf_setup(P)
        for k in range(4):
            P(f"v_mov_b32 v{64 + k}, 0x3f803f80")
        P(f"v_and_b32 v{t0}, 7, v0")
        P(f"s_and_b32 s{sT0}, s{sW}, 1")
        P(f"s_mul_i32 s{sT0}, s{sT0}, {self.LA[1]}")
        P(f"v_lshl_add_u32 v{t0}, v{t0}, 4, s{sT0}")
        P.ds(f"ds_write_b128 v{t0}, {vq(64)}")
        P(f"v_and_b32 v{t0}, 15, v0")
        P(f"v_bfe_u32 v{t1}, v0, 4, 2")
        P(f"v_lshrrev_b32 v{t2}, 1, v{t0}")
        P(f"v_xor_b32 v{t2}, v{t2}, v{t1}")
        P(f"v_lshlrev_b32 v{t2}, 4, v{t2}")
        P(f"v_lshl_add_u32 v{t2}, v{t0}, 7, v{t2}")
        P(f"s_mul_i32 s{sT0}, s{sW}, 6144")
        P(f"v_add_u32 v{self.vRA}, s{sT0}, v{t2}")
        P(f"v_xor_b32 v{self.vRA + 1}, 64, v{self.vRA}")
        P(f"v_mul_u32_u24 v{t2}, 1408, v{t1}")
        P(f"v_bfe_u32 v{t3}, v0, 2, 2")
        P(f"v_mul_u32_u24 v{t3}, 160, v{t3}")
        P(f"v_add_u32 v{t2}, v{t2}, v{t3}")
        P(f"v_add_u32 v{t2}, {self.LB}, v{t2}")
        P(f"v_and_b32 v{t3}, 3, v0")
        P(f"v_lshl_add_u32 v{self.vRB}, v{t3}, 3, v{t2}")
        P(f"v_mul_u32_u24 v{t3}, 40, v{t3}")
        P(f"v_add3_u32 v{self.vRB + 1}, v{t2}, v{t3}, 32")
        for k in range(2):
            P(f"v_add_u32 v{self.vRB2 + k}, {5 * 12288}, v{self.vRB + k}")

    def pf_setup(self, P):
        t0, t1, t2 = 60, 61, 62
        P(f"s_lshl_b32 s{sT0}, s{sMT}, 2")
        P(f"s_add_u32 s{sT0}, s{sT0}, s{sW}")
        P(f"s_lshl_b32 s{sT0}, s{sT0}, 4")
        P(f"s_add_u32 s{sT0}, s{sT0}, s{sNT}")
        P(f"s_mul_i32 s{sT0}, s{sT0}, 160")
        P(f"v_cmp_gt_u32 vcc, {4 * self.cfg.pfnq}, v1")
        P(f"v_lshrrev_b32 v{t0}, 2, v1")
        P(f"v_mul_u32_u24 v{t0}, {32 * 3840}, v{t0}")
        P(f"v_and_b32 v{t1}, 2, v1")
        P(f"v_mul_u32_u24 v{t1}, 640, v{t1}")
        P(f"v_and_b32 v{t2}, 1, v1")
        P(f"v_mul_u32_u24 v{t2}, 156, v{t2}")
        P(f"v_add3_u32 v{t0}, v{t0}, v{t1}, v{t2}")
        P(f"v_add_u32 v{t0}, s{sT0}, v{t0}")
        P(f"v_cndmask_b32 v74, v63, v{t0}, vcc")

    def timed(self):
        P, cfg = self.P, self.cfg
        out = [(w, [(1, lambda f=f: P(f"s_mov_b32 s{sT3}, {f * 32 * 3840}")),
                    (1, lambda: P.vm(f"buffer_load_dword a255, v74, {srd(rW0)}, s{sT3} offen"))]) for w, f in self.pfs]
        out += [(w, [(1, lambda k=k: self.stats.load(k))]) for k, w in enumerate(cfg.st)]
        return out

    def build_side(self):
        P, sd = self.P, self.side
        t0, t1, t2, t3 = 60, 61, 62, 63
        R = Rec()
        common_srds(R)
        R(f"s_lshl3_add_u32 s{sFLAG}, s{sMT}, s{sNT}")
        R(f"s_lshl_b32 s{sFLAG}, s{sFLAG}, 7")
        R(f"s_add_u32 s{sFLAG}, s{sFLAG}, {FLAG_OFF + 160 * 128}")
        R.into(sd, 0)
        self.stats.queue(sd, max(self.cfg.st) + self.cfg.stw)
        self.pollr.issue(sd, 0)
        self.SIG = self.le(self.cfg.sig_qkv)
        R = Rec()
        R(f"v_and_b32 v{t0}, 15, v0")
        R(f"v_bfe_u32 v{t1}, v0, 4, 2")
        R(f"s_mul_i32 s{sT0}, s{sMT}, 176")
        R(f"s_mul_i32 s{sT1}, s{sW}, 48")
        R(f"s_add_u32 s{sT0}, s{sT0}, s{sT1}")
        R(f"s_sub_u32 s{sT0}, s{sT0}, 16")
        R(f"v_add_u32 v64, s{sT0}, v1")
        R(f"v_max_i32 v64, 0, v64")
        R(f"v_min_i32 v64, 2047, v64")
        R(f"v_lshlrev_b32 v64, 2, v64")
        R(f"s_lshl_b32 s{sM0R}, s{sW}, 9")
        R(f"s_add_u32 s{sM0R}, s{sM0R}, {self.LS}")
        R(f"v_lshl_add_u32 v65, v{t0}, 2, s{sM0R}")
        R(f"v_lshl_add_u32 v66, v{t1}, 4, s{sM0R}")
        par, cur0, cur1 = self.masks()
        smask(R, sMK0, par)
        smask(R, sMK1, cur0)
        smask(R, sMK2, cur1)
        for h in range(4):
            smask(R, sHM + 2 * h, 0xffff << (16 * h))
        R(f"v_mov_b32 v{t3}, 0x0c0c0c0c")
        for u in range(2):
            lo = 0x0c0c0000 | ((2 * u + 1) << 8) | (2 * u)
            hi = 0x00000c0c | ((2 * u + 1) << 24) | ((2 * u) << 16)
            mk = sMK1 if u == 0 else sMK2
            R(f"v_mov_b32 v{t0}, 0x{lo:x}")
            R(f"v_mov_b32 v{t1}, 0x{hi:x}")
            R(f"v_cndmask_b32 v{t0}, v{t0}, v{t1}, s[{sMK0}:{sMK0 + 1}]")
            R(f"v_cndmask_b32 v{self.vSEL + u}, v{t3}, v{t0}, s[{mk}:{mk + 1}]")
            R(f"v_cndmask_b32 v{self.vSEL + 2 + u}, v{t0}, v{t3}, s[{mk}:{mk + 1}]")
        self.pollr.check(sd, self.bars[self.SIG] / 45 - 0.4)
        early_signal(sd, self.bars[self.SIG] / 45, P, t0, t1)
        R.into(sd, 1)
        R = Rec()
        tile2_setup(R, self.cfg)
        R(f"s_mul_i32 s{sT0}, s{sMT}, 11")
        R(f"s_mul_i32 s{sT1}, s{sW}, 3")
        R(f"s_add_u32 s{sT0}, s{sT0}, s{sT1}")
        for G in range(3):
            R(f"s_add_u32 s{sT1}, s{sT0}, {G - 1}")
            R(f"s_lshr_b32 s{sT2}, s{sT1}, 2")
            R(f"s_mul_i32 s{sT2}, s{sT2}, {A2_MT}")
            R(f"s_cmp_ge_u32 s{sT1}, 128")
            R(f"s_cselect_b32 s{sT2}, {OOB}, s{sT2}")
            if G == 0:
                R(f"s_cmp_eq_u32 s{sW}, 0")
                R(f"s_cselect_b32 s{sT2}, {OOB}, s{sT2}")
            R(f"s_and_b32 s{sT1}, s{sT1}, 3")
            R(f"s_lshl_b32 s{sT1}, s{sT1}, 6")
            R(f"v_add_u32 v{t0}, s{sT1}, v1")
            R(f"v_lshl_add_u32 v{self.vTK + G}, v{t0}, 4, s{sT2}")
            if self.cfg.oswap:
                R(f"v_and_b32 v{t0}, 31, v1")
                R(f"v_lshrrev_b32 v{t1}, 5, v1")
                R(f"v_lshl_add_u32 v{t0}, v{t0}, 1, v{t1}")
                R(f"v_add_u32 v{t0}, s{sT1}, v{t0}")
            R(f"v_lshl_add_u32 v{self.vTK + 3 + G}, v{t0}, 3, s{sT2}")
        R.into(sd, 0)
        self.poll.issue(sd, self.cfg.poll_qkv)
        self.poll.check(sd, self.cfg.poll_qkv + self.cfg.pchk)
        sd.f(0, lambda: setattr(self, "early_ok", -1 if self.cfg.gather else self.nbar), 0)
        sd.t(0, f"s_movk_i32 s{sRC1}, 0x2000")
        b2_touch(self, sd, t0, t1)
        for k in range(2):
            def f(k=k):
                assert self.early_ok < self.nbar
                self.tokM = P.vm(f"buffer_load_dword v64, {srd(rST)}, {f's{sRC1}' if k else '0'} offen sc1 lds")
            self.extra.setdefault(16, []).append(((sM0R, 256 * k), f))
        s2 = self.side2
        s2.f(17.9, lambda: P.wait(vm=self.tokM))
        for G in range(3):
            for k in range(2):
                s2.f(17.9, lambda G=G, k=k: P.ds(f"ds_read_b128 {vq(self.vST + 8 * G + 4 * k)}, v66 offset:{256 * k + 64 * G}"))
                s2.f(17.9, lambda G=G, k=k: P.ds(f"ds_read_b32 v{(self.vR1 if k else self.vM1) + G}, v65 offset:{256 * k + 64 * G}"))
        s2.f(17.9, lambda: setattr(self, "st_ok", True), 0)
        R = Rec()
        R("v_and_b32 v5, 48, v0")
        R("v_and_b32 v6, 15, v0")
        R("v_lshlrev_b32 v6, 2, v6")
        R(f"s_mul_i32 s{sT0}, s{sW}, 5632")
        R(f"s_add_u32 s{sT0}, s{sT0}, 16384")
        R(f"v_lshl_add_u32 v7, v1, 4, s{sT0}")
        R(f"v_lshl_add_u32 v8, v1, 3, s{sT0}")
        R(f"s_add_u32 s{sT0}, s{sW}, 3")
        R(f"s_and_b32 s{sT0}, s{sT0}, 3")
        R(f"s_mul_i32 s{sT0}, s{sT0}, 5632")
        R(f"s_add_u32 s{sT0}, s{sT0}, 16384")
        R(f"v_lshl_add_u32 v9, v1, 4, s{sT0}")
        R(f"v_lshl_add_u32 v10, v1, 3, s{sT0}")
        R(f"s_cmp_eq_u32 s{sW}, 0")
        R(f"s_cselect_b32 s14, 0x00010001, 0")
        R(f"s_cselect_b32 s16, 0xffff, 0")
        R(f"s_mov_b32 s15, s14")
        R(f"s_mov_b32 s17, 0")
        R(f"v_lshlrev_b32 v49, 4, v0")
        R(f"v_add_u32 v49, 4096, v49")
        R(f"v_cndmask_b32 v21, v49, v6, s[16:17]")
        R(f"v_cndmask_b32 v49, v49, v5, s[14:15]")
        R(f"s_or_b32 s{sT3}, s{sMT}, s{sW}")
        R(f"s_cmp_eq_u32 s{sT3}, 0")
        R(f"s_cselect_b32 s{sT3}, 0xf149f2ca, 0")
        R(f"s_lshl_b32 s{sT0}, s{sNT}, 13")
        R(f"s_add_u32 s{sT1}, s{sT0}, 4096")
        R(f"s_lshl_b32 s{sT2}, s{sNT}, 11")
        R(f"s_add_u32 s{sT2}, s{sT2}, {16 * 4096}")
        R.into(sd, 16.6)
        sd.f(16.6, lambda: setattr(self, "epi_ok", True), 0)

    def dma(self, kind, idx, q):
        P = self.P
        if kind == "A":
            def load():
                if q == 0:
                    P(f"s_mov_b64 exec, s[{sEXA}:{sEXA + 1}]")
                t = P.vm(f"buffer_load_dwordx4 v{self.vAa + q}, {srd(rX)}, s{sKA} offen lds")
                if q == 0:
                    P("s_mov_b64 exec, -1")
                assert self.t < 16.6
                return t
            return (sM0A, self.LA[idx % 2] + q * 4096), (sKA, idx * 128), load
        off = f" offset:{q * 1024}" if q else ""
        return ((sM0B, self.LB + (idx % 9) * 12288), (sKB, (idx // 3) * 64 * 3840 + (2 - idx % 3) * 1280),
                lambda: P.vm(f"buffer_load_dwordx4 v{self.vBa + q}, {srd(rW0)}, s{sKB} offen{off} lds") if self.t < 18.5 else None)

    def barrier_needs(self, b):
        return self.stats.done if b == self.SIG else None

    def barrier_ds(self, b):
        return self.tkw if b == len(self.bars) - 2 else None

    def cswrite(self, sec, i):
        self.tkw2 = self.P.ds(f"ds_write_b128 v49, {vq(self.acc(sec, i, 0))} offset:{(sec * 5 + i) * 64}")

    def fixed(self):
        P = self.P
        fx = {}
        for i in range(5):
            def wr(i=i):
                assert self.epi_ok and self.nbar >= len(self.bars) - 2
                self.tkw = P.ds(f"ds_write_b32 v21, v{self.acc(2, i, 0)} offset:{640 + i * 64}")
            fx[839 + 2 * i] = [(1, wr)]
        for g, sec, i in ((862, 1, 0), (866, 1, 1), (874, 1, 2), (886, 1, 3), (889, 1, 4), (892, 0, 0), (895, 0, 1), (898, 0, 2)):
            fx[g] = [(2, lambda sec=sec, i=i: self.cswrite(sec, i))]
        self.al = al = Alloc(list(range(60, 76)))
        self.csV = al.get(6)
        self.tkV, self.Vb, self.cs = {}, {}, {}
        for k, i in enumerate((4, 3, 2, 1, 0)):
            def f(i=i):
                assert self.nbar == len(self.bars) - 1 and self.st_ok
                self.tkV[i] = P.ds(f"ds_read_b32 v{self.csV + i}, v6 offset:{640 + i * 64}")
            fx.setdefault(self.bars[-2] + k, []).append((1, f))
        ops = []
        for i in (4, 3, 2, 1, 0)[:self.cfg.nvo]:
            ops += self.vfix(i, P, False)
        lo, hi = self.bars[-2] + 9, 900
        for k, f in enumerate(ops):
            fx.setdefault(lo + (k * (hi - lo)) // len(ops), []).append((1, f))
        return fx

    @staticmethod
    def bc(reg, pos, n):
        lo, hi = [0] * n, [1] * n
        lo[pos] = hi[pos] = reg & 1
        return vq(reg & ~1, 2), f"op_sel:[{','.join(map(str, lo))}] op_sel_hi:[{','.join(map(str, hi))}]"

    def vfix(self, i, V, packed):
        P, al = self.P, self.al
        out = [lambda: P.wait(ds=self.tkV[i])]
        e = lambda t: out.append(lambda: V(t))
        vb = self.Vb[i] = al.get(8)
        c, m1 = self.bc(self.csV + i, 1, 3)
        if not packed:
            e(f"v_xor_b32 v{self.csV + i}, 0x80000000, v{self.csV + i}")
        for G in (2, 0, 1):
            a = self.acc(2, i, G)
            m4, r4 = self.vST + 8 * G, self.vST + 8 * G + 4
            if packed:
                for h in (0, 2):
                    e(f"v_pk_fma_f32 {vq(a + h, 2)}, {vq(m4 + h, 2)}, {c}, {vq(a + h, 2)} {m1} neg_lo:[0,1,0] neg_hi:[0,1,0]")
                for h in (0, 2):
                    e(f"v_pk_mul_f32 {vq(a + h, 2)}, {vq(a + h, 2)}, {vq(r4 + h, 2)}")
            else:
                for r in range(4):
                    e(f"v_fmac_f32 v{a + r}, v{m4 + r}, v{self.csV + i}")
                for r in range(4):
                    e(f"v_mul_f32 v{a + r}, v{a + r}, v{r4 + r}")
            for h in (0, 2):
                e(f"v_cvt_pk_bf16_f32 v{vb + 2 * (2 - G) + h // 2}, v{a + h}, v{a + h + 1}")
            if G == 2:
                out.append(lambda: P.ds(f"ds_write_b64 v8, {vq(vb, 2)} offset:{3072 + i * 512}"))
        al.put(self.acc(2, i, 0), 12)
        self.cs[i] = al.get(4)
        return out

    def epilogue(self, tr):
        P, cfg, al = self.P, self.cfg, self.al
        BIAS = self.BIAS
        cnt = [0]
        halo_done = []

        def V(text):
            P(text)
            cnt[0] += 1
            if cnt[0] % cfg.ld_every == 0:
                if self.late.arrange(20, False) or halo_done:
                    self.late.emit(1, 20)

        bc = self.bc
        NEG = "neg_lo:[0,1,0] neg_hi:[0,1,0]"
        csV, Vb, cs, tkK = self.csV, self.Vb, self.cs, {}
        al.put(16, 1)
        for k in range(4):
            V(f"v_mov_b32 v{BIAS + k}, s{sT3}")
        rest = [f for i in (4, 3, 2, 1, 0)[cfg.nvo:] for f in self.vfix(i, V, True) + [i]]
        ready = list((4, 3, 2, 1, 0)[:cfg.nvo])
        bar_at = min(len(rest), cfg.vbar)
        for k, f in enumerate(rest + [None]):
            if k == min(bar_at, 4):
                self.cswrite(0, 3)
            if k == min(bar_at, 10):
                self.cswrite(0, 4)
            if k == bar_at:
                P.wait(ds=self.tkw2)
                P("s_barrier")
            if isinstance(f, int):
                ready.append(f)
            elif f:
                f()
            while k >= bar_at and ready:
                ik = ready.pop(0)
                tkK[ik] = P.ds(f"ds_read_b128 {vq(cs[ik])}, v5 offset:{(5 + ik) * 64}")
        al.put(csV, 6)
        al.put(self.vST, 24)
        tr.pt(P, 29)
        k2 = al.get(12)
        Kb = [(al.get(6), al.get(6)), (al.get(6), al.get(6)), (k2, k2 + 6)]
        kr = lambda G, pos: Kb[G][pos // 6] + pos % 6

        def kput(G):
            al.put(Kb[G][0], 6)
            al.put(Kb[G][1], 6)
        kpos = {0: [0], 1: [4], 2: [6], 3: [10], 4: [2, 8]}
        kdone = {3: 2, 1: 1, 0: 0}
        for i in (4, 3, 2, 1, 0):
            P.wait(ds=tkK[i])
            for G in (2, 1, 0):
                a = self.acc(1, i, G)
                m, mm = bc(self.vM1 + G, 1, 3)
                r, rm = bc(self.vR1 + G, 1, 2)
                for h in (0, 2):
                    V(f"v_pk_fma_f32 {vq(a + h, 2)}, {vq(cs[i] + h, 2)}, {m}, {vq(a + h, 2)} {mm} {NEG}")
                for h in (0, 2):
                    V(f"v_pk_mul_f32 {vq(a + h, 2)}, {vq(a + h, 2)}, {r} {rm}")
                for pos in kpos[i]:
                    for h in (0, 2):
                        V(f"v_cvt_pk_bf16_f32 v{kr(G, pos) + h // 2}, v{a + h}, v{a + h + 1}")
                if G == 2 and i in kdone:
                    k = kdone[i]
                    P.ds(f"ds_write_b128 v7, {vq(k2 + 4 * k)} offset:{k * 1024}")
            al.put(self.acc(1, i, 0), 12)
            tkK[i] = P.ds(f"ds_read_b128 {vq(cs[i])}, v5 offset:{i * 64}")
        tr.pt(P, 30)
        k3 = al.get(12)
        Kb.append((k3, k3 + 6))
        for n_, i in enumerate((4, 3, 2, 1, 0)):
            P.wait(ds=tkK[i])
            for G in (2, 1, 0):
                a = self.acc(0, i, G)
                m, mm = bc(self.vM1 + G, 1, 3)
                for h in (0, 2):
                    V(f"v_pk_fma_f32 {vq(a + h, 2)}, {vq(cs[i] + h, 2)}, {m}, {vq(a + h, 2)} {mm} {NEG}")
            al.put(cs[i], 4)
        P("s_barrier")
        assert P.ds_done == P.nds
        halo_done.append(1)
        if cfg.xearly:
            xr = al.get(4)
            xg_addr(P, xr, xr + 3, sKA, sKB)
            run(resid_units(P, {}, reg=xr, sm=sKB))
            al.put(xr, 4)
        for k in range(3):
            P.ds(f"ds_read_b128 {vq(k3 + 4 * k)}, v9 offset:{k * 1024}")
        for i in range(5):
            tkH = P.ds(f"ds_read_b64 {vq(Vb[i] + 6, 2)}, v10 offset:{3072 + i * 512}")
        qmain = lambda h: 4 * h + (0 if h % 2 == 0 else 2)
        qext = lambda h: 4 * h + (2 if h % 2 == 0 else 0)
        kq = {0: 0, 1: 2, 2: 6, 3: 8}
        sm = lambda s: f"s[{s}:{s + 1}]"
        mk = {0: sMK1, 1: sMK2}
        S, X, CQ, Qb = {}, {}, {}, {}
        pend = []

        def VM(text):
            assert "v_pk_" not in text
            V(text)
            VM.c += 1
            if pend and VM.c % 2 == 0:
                pend.pop(0)()
        VM.c = 0

        def qpack(G):
            Qb[G] = al.get(16)
            a = self.acc(0, 4, G)
            for h in (0, 2):
                VM(f"v_cvt_pk_bf16_f32 v{a + h // 2}, v{a + h}, v{a + h + 1}")
            for i in range(4):
                for h in range(2):
                    VM(f"v_cndmask_b32 v{Qb[G] + qext(i) + h}, 0, v{a + h}, {sm(sHM + 2 * i)}")
                b = self.acc(0, i, G)
                for h in (0, 2):
                    VM(f"v_cvt_pk_bf16_f32 v{Qb[G] + qmain(i) + h // 2}, v{b + h}, v{b + h + 1}")
                al.put(b, 4)
            al.put(a, 4)

        def scores(G):
            S[G] = [(al.get(4), al.get(4)) for _ in range(4)]
            for h in range(4):
                q = vq(Qb[G] + 4 * h)
                sc_, sp_ = S[G][h]
                pend.append(lambda h=h, q=q, d=sc_: P(f"v_mfma_f32_16x16x32_bf16 {vq(d)}, {vq(kr(G, kq[h]))}, {q}, 0"))

                def f(h=h, q=q, d=sp_):
                    if G == 0:
                        P.wait(ds=tkH)
                    c = vq(BIAS) if G == 1 else "0"
                    P(f"v_mfma_f32_16x16x32_bf16 {vq(d)}, {vq(kr((G - 1) % 4, kq[h]))}, {q}, {c}")
                pend.append(f)

        def flush():
            while pend:
                pend.pop(0)()

        def select(G):
            X[G] = al.get(8)
            for h in range(4):
                sc_, sp_ = S[G][h]
                for u in range(2):
                    VM(f"v_cndmask_b32 v{sc_ + 2 * u}, v{sc_ + 2 * u}, v{sc_ + 2 * u + 1}, vcc")
                    VM(f"v_cndmask_b32 v{sp_ + 2 * u}, v{sp_ + 2 * u}, v{sp_ + 2 * u + 1}, vcc")
                for u in range(2):
                    VM(f"v_cndmask_b32 v{X[G] + 2 * h + u}, v{sp_ + 2 * u}, v{sc_ + 2 * u}, {sm(mk[u])}")
            for sc_, sp_ in S[G]:
                al.put(sc_, 4)
                al.put(sp_, 4)

        P(f"s_mov_b64 vcc, {sm(sMK0)}")
        qpack(2)
        scores(2)
        qpack(1)
        flush()
        al.put(Qb[2], 16)
        kput(2)
        scores(1)
        qpack(0)
        flush()
        al.put(Qb[1], 16)
        kput(1)
        scores(0)
        select(2)
        flush()
        select(1)
        select(0)
        al.put(Qb[0], 16)
        kput(0)
        kput(3)
        tr.pt(P, 31)
        GS = (2, 1, 0)
        for G in GS:
            CQ[G] = al.get(2)
            V(f"v_mul_f32 v{CQ[G]}, 0x3ea52b5c, v{self.vR1 + G}")
            for u in range(2):
                V(f"v_permlane32_swap_b32 v{X[G] + u}, v{X[G] + 4 + u}")
                V(f"v_permlane32_swap_b32 v{X[G] + 2 + u}, v{X[G] + 6 + u}")
            for u in range(2):
                V(f"v_permlane16_swap_b32 v{X[G] + u}, v{X[G] + 2 + u}")
                V(f"v_permlane16_swap_b32 v{X[G] + 4 + u}, v{X[G] + 6 + u}")
        W, O, O4 = {}, {}, {}
        for G in GS:
            x, m = X[G], CQ[G] + 1
            V(f"v_max3_f32 v{m}, v{x}, v{x + 1}, v{x + 2}")
            V(f"v_max3_f32 v{m}, v{m}, v{x + 3}, v{x + 4}")
            V(f"v_max3_f32 v{m}, v{m}, v{x + 5}, v{x + 6}")
            V(f"v_max_f32 v{m}, v{m}, v{x + 7}")
            V(f"v_mul_f32 v{m}, v{m}, v{CQ[G]}")
            for k in range(0, 8, 2):
                V(f"v_pk_fma_f32 {vq(x + k, 2)}, {vq(x + k, 2)}, {vq(CQ[G], 2)}, {vq(CQ[G], 2)} op_sel:[0,0,1] op_sel_hi:[1,0,1] neg_lo:[0,0,1] neg_hi:[0,0,1]")
            for k in range(8):
                V(f"v_exp_f32 v{x + k}, v{x + k}")
            w = W[G] = al.get(4)
            V(f"v_pk_add_f32 {vq(w, 2)}, {vq(x, 2)}, {vq(x + 2, 2)}")
            V(f"v_pk_add_f32 {vq(w + 2, 2)}, {vq(x + 4, 2)}, {vq(x + 6, 2)}")
            V(f"v_pk_add_f32 {vq(w, 2)}, {vq(w, 2)}, {vq(w + 2, 2)}")
            V(f"v_add_f32 v{w}, v{w}, v{w + 1}")
            V(f"v_rcp_f32 v{CQ[G]}, v{w}")
        for G in GS:
            x, w = X[G], W[G]
            for k in range(0, 8, 2):
                V(f"v_pk_mul_f32 {vq(x + k, 2)}, {vq(x + k, 2)}, {vq(CQ[G], 2)} op_sel:[0,0] op_sel_hi:[1,0]")
            for k in (0, 2, 1, 3):
                V(f"v_cvt_pk_bf16_f32 v{w + k}, v{x + 2 * k}, v{x + 2 * k + 1}")
            al.put(x, 8)
        for G in GS:
            V(f"v_permlane32_swap_b32 v{W[G]}, v{W[G] + 2}")
            V(f"v_permlane32_swap_b32 v{W[G] + 1}, v{W[G] + 3}")
        for G in GS:
            V(f"v_permlane16_swap_b32 v{W[G]}, v{W[G] + 1}")
            V(f"v_permlane16_swap_b32 v{W[G] + 2}, v{W[G] + 3}")
        tr.pt(P, 32)
        if cfg.fastq:
            phase2_setup1(P, self.late.rot)
            self.hpoll = FlagPoll(P, 0, "qkv")
            if cfg.fastq == 1:
                self.hpoll.issue()

        def pv(G):
            Pq = [al.get(4) for _ in range(4)]
            O[G] = [al.get(4) for _ in range(4)]
            O4[G] = [al.get(4) for _ in range(4)]
            for h in range(4):
                for k in range(4):
                    VM(f"v_perm_b32 v{Pq[h] + k}, v{W[G] + h}, v{W[G] + h}, v{self.vSEL + k}")
                assert not pend
                VM.c = 0
                pend.append(lambda h=h: P(f"v_mfma_f32_16x16x32_bf16 {vq(O[G][h])}, {vq(Vb[h] + 2 * (2 - G))}, {vq(Pq[h])}, 0"))
                pend.append(lambda h=h: P(f"v_mfma_f32_16x16x32_bf16 {vq(O4[G][h])}, {vq(Vb[4] + 2 * (2 - G))}, {vq(Pq[h])}, 0"))
            return Pq

        def out(G):
            for p in range(2):
                d = al.get(4, avoid=range(64, 96))
                for hh in range(2):
                    o = O[G][2 * p + hh]
                    VM(f"v_cvt_pk_bf16_f32 v{d + 2 * hh}, v{o}, v{o + 1}")
                    VM(f"v_cvt_pk_bf16_f32 v{d + 2 * hh + 1}, v{o + 2}, v{o + 3}")
                self.stores.append(lambda d=d, p=p: P.vm(f"buffer_store_dwordx4 {vq(d)}, v{self.vTK + G}, {srd(rA2)}, s{sT0 + p} offen sc1"))
                if cfg.qst == 0:
                    self.stores.pop()()

        self.stores = []
        p2 = pv(2)
        pv(1)
        for r in p2:
            al.put(r, 4)
        out(2)
        if cfg.fastq == 2:
            self.hpoll.issue()
        pv(0)
        out(1)
        if cfg.fastq == 3:
            self.hpoll.issue()
        flush()
        out(0)
        d4 = {G: al.get(2, avoid=range(64, 96)) for G in GS}
        for hd in range(4):
            P(f"s_mov_b64 exec, {sm(sHM + 2 * hd)}")
            for G in GS:
                o = O4[G][hd]
                P(f"v_cvt_pk_bf16_f32 v{d4[G]}, v{o}, v{o + 1}")
                P(f"v_cvt_pk_bf16_f32 v{d4[G] + 1}, v{o + 2}, v{o + 3}")
        P("s_mov_b64 exec, -1")
        if not cfg.fastq:
            self.late.emit(99, 20)
        for G in GS:
            def st(G=G):
                self.tokS = P.vm(f"buffer_store_dwordx2 {vq(d4[G], 2)}, v{self.vTK + 3 + G}, {srd(rA2)}, s{sT2} offen sc1")
            self.stores.append(st)
            if cfg.qst == 0:
                self.stores.pop()()
        return cfg.n1_qkv


vA2, vAh, vXL, vFL, vFD, vR, vW, vRd = 5, 9, 10, 12, 14, 22, 24, 27
vXG = 136
vXD = 142
vXS = 28
GO = (1, 2, 3, 0)
sU0, sU1, sU2, sU3 = sKA, sKB, sRP, sRC1


def phase2_setup1(P, rot):
    P(f"s_add_u32 s{sA2Y1}, s{sA2Y}, {8 * 4096 if rot else 0}")
    P(f"s_sub_u32 s{sA2Y2}, s{sA2Y}, {4 * 4096 if rot else 0}")
    P(f"v_lshlrev_b32 v{vA2}, 4, v0")
    for i in range(1, 4):
        P(f"v_add_u32 v{vA2 + i}, {1024 * i}, v{vA2}")
        P(f"v_and_b32 v{vA2 + i}, 4095, v{vA2 + i}")
    for x in range(2048):
        assert (x * 2979) >> 19 == x // 176 and (x * 2789) >> 19 == x // 188
    P(f"s_mul_i32 s{sU0}, s{sMT2}, {64 * 2789}")
    P(f"v_bfe_u32 v{vFD}, v0, 3, 1")
    P(f"v_mul_u32_u24 v{vFD}, {63 * 2789}, v{vFD}")
    P(f"v_add_u32 v{vFD}, s{sU0}, v{vFD}")
    P(f"v_lshrrev_b32 v{vFL}, 19, v{vFD}")
    P(f"v_and_b32 v{vFD}, 7, v0")
    P(f"v_cmp_gt_u32 vcc, 4, v{vFD}")
    P(f"s_mul_i32 s{sU0}, s{sW}, 3")
    P(f"v_add_u32 v{vFD}, s{sU0}, v{vFD}")
    P(f"v_cndmask_b32 v{vFD}, 13, v{vFD}, vcc")
    P(f"v_mad_u32_u24 v{vFL}, v{vFL}, 14, v{vFD}")
    P(f"v_lshlrev_b32 v{vFL}, 7, v{vFL}")
    P(f"v_add_u32 v{vFL}, {FLAG_OFF}, v{vFL}")


def phase2_setup2(P):
    mk_srd(P, rOUT, sOUT, X_BYTES)
    P(f"s_and_b32 s{sU0}, s{sW}, 1")
    P(f"s_add_u32 s{sU0}, s{sU0}, 72")
    P(f"s_mul_i32 s{sB13}, s{sU0}, 5120")
    P(f"s_add_u32 s{sB13}, s{sB13}, s{sB2W}")
    P(f"s_sub_u32 s{sB13}, s{sB13}, s{sM0A}")
    P(f"s_lshl_b32 s{sA13}, s{sU0}, 12")
    P(f"s_add_u32 s{sA13}, s{sA13}, s{sA2S}")
    for i in range(4):
        P(f"s_add_u32 s{sU0}, s{sW}, {i}")
        P(f"s_and_b32 s{sU0}, s{sU0}, 3")
        P(f"s_mul_i32 s{sU1}, s{sU0}, 15360")
        if i > 1:
            P(f"s_add_u32 s{sU1}, s{sU1}, {(i - 1) * 5120}")
        P(f"v_add_u32 v{vW + i - 1 if i else vRd}, s{sU1}, v{vB2}")
    P(f"s_lshl_b32 s{sU0}, s{sMT2}, 6")
    P(f"s_lshl4_add_u32 s{sU1}, s{sW}, s{sU0}")
    xg_addr(P, vXG, vR, sU2, sU3)
    P(f"s_mul_i32 s{sM0R}, s{sW}, 15360")
    P(f"v_and_b32 v{vR}, 15, v0")
    P(f"v_mul_u32_u24 v{vXL}, 160, v{vR}")
    P(f"v_lshrrev_b32 v{vR + 1}, 4, v1")
    P(f"v_lshlrev_b32 v{vR + 1}, 3, v{vR + 1}")
    P(f"v_add3_u32 v{vXL + 1}, v{vXL}, v{vR + 1}, s{sM0R}")
    P(f"v_add_u32 v{vXL}, v{vXL + 1}, v{vR + 1}")
    P(f"s_mul_i32 s{sU2}, s{sW}, {15360 - 3072}")
    P(f"s_sub_u32 s{sU2}, {LWO}, s{sU2}")
    P(f"s_add_u32 s{sM0R}, s{sM0R}, s{sU2}")
    P(f"v_add_u32 v{vXS}, s{sU2}, v{vXL}")
    P(f"v_add_u32 v{vXS + 1}, s{sU2}, v{vXL + 1}")
    P(f"s_lshl2_add_u32 s{sU2}, s{sU1}, 8192")
    P(f"v_lshl_add_u32 v{vR}, v{vR}, 2, s{sU2}")
    P(f"s_mul_i32 s{sU0}, s{sU1}, 2979")
    P(f"s_lshr_b32 s{sU0}, s{sU0}, 19")
    P(f"s_lshl_b32 s{sU0}, s{sU0}, 10")
    P(f"s_add_u32 s{sU0}, s{sU0}, {FLAG_OFF + 160 * 128}")
    P(f"v_and_b32 v{vR + 1}, 7, v0")
    P(f"v_lshl_add_u32 v{vFL + 1}, v{vR + 1}, 7, s{sU0}")
    if Cfg.oswap:
        P(f"v_lshrrev_b32 v{vAh}, 5, v1")
        P(f"v_mul_u32_u24 v{vAh}, 1536, v{vAh}")
        P(f"s_lshl_b32 s{sU0}, s{sW}, 9")
        P(f"v_add3_u32 v{vAh}, v{vAh}, v{vB2}, s{sU0}")
    else:
        P(f"v_lshrrev_b32 v{vAh}, 1, v{vA2}")


class FlagPoll:
    def __init__(self, P, k, tag):
        self.P, self.k, self.tag = P, k, tag

    def ld(self):
        return f"buffer_load_dword v{vFD}, v{vFL + self.k}, {srd(rST)}, 0 offen {FlagPoll.sc}"

    def issue(self):
        self.tok = self.P.vm(self.ld())

    def check(self):
        P = self.P
        P.wait(vm=self.tok)
        P(f"v_cmp_ne_u32 vcc, 1, v{vFD}")
        P("s_nop 0")
        P(f"s_cbranch_vccnz L_fspin_{self.tag}")
        P(f"L_fback_{self.tag}:")

    def slow(self, tr, lane, nap=2):
        P = self.P
        P(f"L_fspin_{self.tag}:")
        P(f"s_mov_b32 s{sSPIN}, 0")
        P(f"L_fspin2_{self.tag}:")
        P.vm(self.ld(), counted=False)
        P(f"s_add_u32 s{sSPIN}, s{sSPIN}, 1")
        if tr.on:
            P(f"v_writelane_b32 v{vTR}, s{sSPIN}, {lane}")
        P("s_waitcnt vmcnt(0)")
        P(f"v_cmp_ne_u32 vcc, 1, v{vFD}")
        P(f"s_cmp_lt_u32 s{sSPIN}, 0x40000")
        P("s_nop 0")
        P(f"s_cbranch_vccz L_fback_{self.tag}")
        P(f"s_sleep {nap}")
        P(f"s_cbranch_scc1 L_fspin2_{self.tag}")
        P(f"s_branch L_fback_{self.tag}")


def abuf(m, i, k):
    if m == 6 and Cfg.merge:
        return (aq(88 + 4 * i) if k == 0 else (aq(248), vq(152))[i])
    return vq(64 - (m % 2) * 32 + i * 8 + 4 * k)


def loadsA(P, tok, m, i, first):
    sA = lambda k: 14 + (m % 2) * 2 + k
    base = lambda s: sA2Y1 if s < 4 else sA2Y2 if s < 12 else sA2Y
    out = []
    for k in range(1 if (m == 6 and i > 1) else 2):
        last = 2 * m + k == 13

        def f(k=k, last=last):
            tok[m, i] = P.vm(f"buffer_load_dwordx4 {abuf(m, i, k)}, v{vA2 + i}, {srd(rA2)}, s{sA13 if last else sA(k)} offen sc1")
        out.append(([lambda k=k: P(f"s_add_u32 s{sA(k)}, s{base(2 * m + k)}, {(2 * m + k) * 4096}")] if first and not last else [], f))
    return out


def run(units):
    for preps, f in units:
        for p in preps:
            p()
        f()


def resid_units(P, tok, early=False, reg=None, sm=None):
    def ldx(q):
        tok["x"] = P.vm(f"buffer_load_dwordx4 v{(reg or vXG) + q}, {srd(rX)}, 0 offen offset:{q * 1024} lds")
    xs = [([lambda: P(f"s_mov_b32 m0, s{sm or sM0R}")] if q == 0 else [], lambda q=q: ldx(q)) for q in range(3)]
    if reg:
        return xs
    return [([], lambda: P.vm(f"buffer_load_dword v{vR}, v{vR}, {srd(rST)}, 0 offen sc1"))] + ([] if early else xs)


def flag_regs(P):
    P(f"v_mov_b32 v{vXD}, s{sFLAG}")
    P(f"v_mov_b32 v{vXD + 1}, {OOB}")
    P("v_cmp_eq_u32 vcc, 0, v0")
    P(f"v_cndmask_b32 v{vXD}, v{vXD + 1}, v{vXD}, vcc")
    P(f"v_mov_b32 v{vXD + 1}, 1")


def raise_flag(P, role, tr):
    P.wait(vm=role.tokS)
    tr.pt(P, 35)
    P("s_barrier")
    P.vm(f"buffer_store_dword v{vXD + 1}, v{vXD}, {srd(rST)}, 0 offen sc1")


def enter_phase2(P, cfg, late, ntail, tr, tag):
    poll = FlagPoll(P, 0, tag)
    late.zsrd = True
    late.emit(len(late.q) - abs(ntail), 99)
    if ntail >= 0:
        run(resid_units(P, {}, early=cfg.xearly and tag != "spare"))
    poll.issue()
    if cfg.atouch and tag != "spare":
        P(f"s_and_b32 s{sU0}, s{sNT2}, 3")
        P(f"s_lshl_b32 s{sU0}, s{sU0}, 7")
        P(f"s_add_u32 s{sU0}, s{sU0}, s{sA2Y1}")
        P(f"v_cmp_gt_u32 vcc, {cfg.atouch}, v1")
        P(f"v_lshl_add_u32 v30, v1, 9, s{sU0}")
        P(f"v_mov_b32 v31, {OOB}")
        P(f"v_cndmask_b32 v30, v31, v30, vcc")
        P.vm(f"buffer_load_dword a255, v30, {srd(rA2)}, 0 offen sc1")
    if ntail < 0:
        run(resid_units(P, {}, early=cfg.xearly and tag != "spare"))
    late.emit(99, 99)
    tr.pt(P, 36)
    poll.check()
    tr.pt(P, 37)
    tr.flush(P)
    return poll


def finish(P, role, n1, tr, tag):
    cfg = role.cfg
    tr.pt(P, 33)
    tok = {}
    if tag == "glu" or not cfg.fastq:
        assert not any(u[1] == "W" for u in role.late.q)
        P.pad(1)
        role.late.emit(n1, 21)
        n2 = cfg.n2 if tag == "glu" else cfg.n2q
        if n2 is None:
            phase2_setup1(P, role.late.rot)
            phase2_setup2(P)
        flag_regs(P)
        tr.pt(P, 34)
        raise_flag(P, role, tr)
        if n2 is not None:
            role.late.emit(n2, 21)
            phase2_setup1(P, role.late.rot)
            phase2_setup2(P)
        poll = enter_phase2(P, cfg, role.late, cfg.ntail if tag == "glu" else cfg.ntailq, tr, tag)
        if tag == "glu":
            P("L_p2:")
            if cfg.warm:
                P("s_cbranch_execz L_ret")
        elif cfg.defer == cfg.deferq and cfg.share:
            P("s_branch L_p2")
            poll.slow(tr, 38)
            return
        tok["x"] = P.nvm
        for n, i in enumerate(GO):
            run(loadsA(P, tok, 0, i, n == 0))
        spoll = phase2(P, cfg, tr, tag, tok, cfg.defer if tag == "glu" else cfg.deferq)
    else:
        poll = role.hpoll
        if not role.stores:
            P.pad(1)
        role.late.emit(99, 20 if role.stores else 21)
        assert not role.late.q
        tr.pt(P, 36)
        poll.check()
        tr.pt(P, 37)
        for n, i in enumerate(GO):
            run(loadsA(P, tok, 0, i, n == 0))
        for f in role.stores:
            f()
        P.pad(1)
        phase2_setup2(P)
        flag_regs(P)
        tr.pt(P, 34)
        spoll = phase2(P, cfg, tr, tag, tok, cfg.deferq, role)
    poll.slow(tr, 38)
    spoll.slow(tr, 39)


def phase2(P, cfg, tr, tag, tok, defer, role=None):
    ACC, ACS, XU, E = (176, 64, 156, 32) if cfg.merge else (176, 32, 156, 64)
    vWO = 140
    accY = lambda j, i: vq(ACC + (i * 5 + j) * 4)
    oreg = lambda f: 88 + 4 * f
    OSW = 96
    oprd = lambda f: vq(OSW + 4 * (f - 16)) if (cfg.oswap and f >= 16) else aq(oreg(f))
    YP = [ACC + 20, ACC + 40, ACC + 60]
    P(f"v_add_u32 v{vWO}, {LWO}, v{vB2}")
    P(f"v_add_u32 v{vWO + 1}, {LWO + 51200}, v{vB2}")
    poll = FlagPoll(P, 1, "s" + tag)
    dr, dw = defer
    assert dw >= 3
    late = Late(P, [(0, "R", k) for k in range(14 - dr, 14)] + [(0, "W", k) for k in range(dw)], n=5 * dr + dw)
    late.zsrd = True
    tk = {}

    mf = []
    flip = 0
    done = {}
    mg = cfg.merge
    for m in range(6 if mg else 7):
        tailp = m == (5 if mg else 6)
        for i in ((2, 3, 1, 0) if tailp else GO):
            st = list(range(2 * m, 13 if (tailp and i > 1) else 14 if tailp else 2 * m + 2))
            for q, j in enumerate(range(5) if (flip % 2 == 0 or tailp) else range(4, -1, -1)):
                for kk, s in enumerate(st if (q + (0 if tailp else flip)) % 2 == 0 else st[::-1]):
                    d = accY(j, i)
                    done[i, j] = len(mf)
                    mf.append((f"v_mfma_f32_16x16x32_bf16 {d}, {b2_reg(s, j)}, {abuf(s // 2, i, s % 2)}, {d if (m or kk) else '0'}",
                               (s // 2, i), None))
            flip += 1
    S0 = len(mf)
    nf = 4 * (-(-4 * dw // 20))
    FO = list(range(nf, 20)) + list(range(nf))
    seq = []
    for p in range(5):
        for q, j in enumerate(range(4, -1, -1) if p % 2 == 0 else range(5)):
            for kk in range(4):
                seq.append((FO[4 * p + (kk if q % 2 == 0 else 3 - kk)], j))
    wreg = lambda n: aq(168 + 4 * (n % 40) if n % 40 < 20 else 4 * (n % 40 - 20))
    for n, (f, j) in enumerate(seq):
        d = vq(ACS + 4 * j)
        mf.append((f"v_mfma_f32_16x16x32_bf16 {d}, {wreg(n)}, {oprd(f)}, {d if (n >= 20 or n % 4) else '0'}", ("o", f), ("w", n | 1)))
    N = len(mf)
    WBAR = S0 + (20 - nf) * 5 - cfg.look
    lead = [[] for _ in range(N)]
    body = [[] for _ in range(N)]
    cap = [2] * N
    event = {}

    def place(lo, fn, cost=1, step=1, maxn=2):
        g = lo
        while cap[g] < cost or len(body[g]) >= maxn:
            g += step
        body[g].append(fn)
        cap[g] -= cost
        return g

    g = 0
    for i in (2, 3, 1):
        for j in range(5):
            def snd(i=i, j=j):
                tk["sent"] = P.ds(f"ds_write_b128 v{vW + i - 1}, {accY(j, i)} offset:{j * 1024}")
            g = place(max(int(g), done[i, j] + 8), snd, cost=2) + cfg.ssp + (g - int(g))
    BAR = int(g - cfg.ssp) + cfg.sbar

    def lateu(key):
        _, _, preps, f = late.unit()

        def g():
            tok[key] = f()
        return preps, g

    def ldo(f):
        pre = [lambda: P(f"s_add_u32 s{sKA}, s{sA2S}, {f * 4096}")]
        if f < 16:
            def g():
                tok["o", f] = P.vm(f"buffer_load_dwordx4 {aq(oreg(f))}, v{vA2}, {srd(rA2)}, s{sKA} offen sc1")
            return [(pre, g)]

        if cfg.oswap:
            def g():
                tok["o", f] = P.vm(f"buffer_load_dwordx4 {oprd(f)}, v{vAh}, {srd(rA2)}, s{sKA} offen sc1")
            return [(pre, g)]

        def g():
            tok["o", f] = P.vm(f"buffer_load_dwordx2 {aq(oreg(f) + 2, 2)}, v{vAh}, {srd(rA2)}, s{sKA} offen offset:2048 sc1")
        return [(pre, lambda: P.vm(f"buffer_load_dwordx2 {aq(oreg(f), 2)}, v{vAh}, {srd(rA2)}, s{sKA} offen sc1")), ([], g)]
    qa = [(0 if m == 1 else 40 * (m - 2) + 10 * (n + 1), u) for m in range(1, 7) for n, i in enumerate(GO) for u in loadsA(P, tok, m, i, n == 0)]
    if mg:
        u5 = {i: [x for x in qa[32 + 2 * n:34 + 2 * n]] for n, i in enumerate(GO)}
        u6 = {i: [(120, u) for u in loadsA(P, tok, 6, i, i == 2)] for i in GO}
        qa = qa[:32] + u5[1] + u5[2] + u6[2] + u5[3] + u6[3] + u6[1] + u5[0] + u6[0]
    run([u for _, u in qa[:2 * cfg.nfirst]])
    qa = qa[2 * cfg.nfirst:]
    mid = (resid_units(P, tok) if role else []) + [lateu("b") for _ in range(5 * dr)]
    qb = [(20 + (k * (110 if mg else 140)) // len(mid), u) for k, u in enumerate(mid)]
    OCHK = cfg.ochk
    qb.append((OCHK - 60, ([], poll.issue)))
    qb.sort(key=lambda x: x[0])
    qo = [(max(OCHK, S0 if ((mg and f < 4) or (cfg.oswap and f >= 16)) else 0), u) for f in FO for u in ldo(f)]
    assert not mg or nf == 4
    qw = [(BAR, lateu("w")) for _ in range(dw)]
    for q in range(cfg.otouch):
        qo.append((S0, ([], lambda q=q: P.vm(f"buffer_load_dword a255, v{vXG + q}, {srd(rOUT)}, 0 offen offset:{q * 1024}"))))
    p = 2
    while qa or qb or qo or qw:
        assert p < N
        q = next((q for q in (qb, qa, qw, qo) if q and q[0][0] <= p - 2), None)
        if q is None or p + 1 in (BAR, WBAR) or cap[p] < 2:
            p += 1
            continue
        preps, f = q.pop(0)[1]
        for k, pp in enumerate(preps):
            lead[p - len(preps) + k].append(pp)
        body[p].append(f)
        cap[p] = 0
        p += (cfg.vspq if role else cfg.vsp) if (qa or qb) else cfg.vsp2
    event[OCHK] = poll.check

    def rdw(n):
        f, j = seq[n]
        off = f * 5120 + j * 1024
        tk["w", n] = P.ds(f"ds_read_b128 {wreg(n)}, v{vWO + (off >= 51200)} offset:{off % 51200}")
    g = 0
    NPRE = 30 if mg else 40
    for n in range(NPRE):
        g = place(max(g, 161 if n < 20 else 201 if n < 30 else 241), lambda n=n: rdw(n), maxn=1 if n < 30 else 2) + (n < 30)

    def barA():
        assert P.ds_done >= tk["x"]
        P.wait(ds=tk["sent"])
        P("s_barrier")
    event[BAR] = barA
    g = BAR
    for jj in range(5):
        for k in range(3):
            def fet(jj=jj, k=k):
                tk[jj] = P.ds(f"ds_read_b128 {vq(YP[k] + 4 * jj)}, v{vRd} offset:{k * 5120 + jj * 1024}")
            g = place(g, fet)
    GATE = g + cfg.sgate
    for n in range(NPRE, 100, 2):
        g = max(g, S0 + n - cfg.look)
        g = place(g, lambda n=n: (rdw(n), rdw(n + 1)), cost=2)
        assert g <= S0 + n - 5 or g < GATE <= S0 + n, (n, g)

    def barW():
        P.wait(vm=tok["w"])
        P("s_barrier")
    event[WBAR] = barW
    if role:
        event[cfg.qpub] = lambda: raise_flag(P, role, tr)

    if cfg.oswap:
        n0 = S0 + min(n for n, (f, j) in enumerate(seq) if f >= 16)
        g = n0 - cfg.oswap
        for f in range(16, 20):
            for k in range(2):
                def sw(f=f, k=k):
                    P.wait(vm=tok["o", f])
                    P(f"v_permlane32_swap_b32 v{OSW + 4 * (f - 16) + k}, v{OSW + 4 * (f - 16) + 2 + k}")
                g = place(g, sw, cost=2)
        assert g < n0

    fill = Side(P)

    def rdx():
        assert P.vm_done >= tok["x"]
        P.ds(f"ds_read_b128 {vq(vXD)}, v{vXS}")
        P.ds(f"ds_read_b128 {vq(vXD + 4)}, v{vXS} offset:64")
    fill.f(140, rdx, 2)

    def rdx2():
        tk["x"] = P.ds(f"ds_read_b64 {vq(vXD + 8, 2)}, v{vXS + 1} offset:128")
    fill.f(140, rdx2)
    fill.t(140, f"v_mul_f32 v{vR}, v{vR}, v{vR}\nv_mul_f32 v{vR + 1}, 0xbfb8aa3b, v{vR}\nv_rcp_f32 v{vR}, v{vR}")
    fill.f(150, lambda: P.wait(ds=tk["x"]))
    for k in range(10):
        fill.t(150, f"v_lshlrev_b32 v{XU + 2 * k}, 16, v{vXD + k}\nv_and_b32 v{XU + 2 * k + 1}, 0xffff0000, v{vXD + k}")

    def gate_head():
        tr.pt(P, 49)
        for j in range(5):
            P.wait(ds=tk[j])
            y, e = ACC + 4 * j, E + 4 * j
            for k in range(3):
                for h in (0, 2):
                    P(f"v_pk_add_f32 {vq(y + h, 2)}, {vq(y + h, 2)}, {vq(YP[k] + 4 * j + h, 2)}")
            for h in (0, 2):
                P(f"v_pk_mul_f32 {vq(e + h, 2)}, {vq(y + h, 2)}, {vq(vR, 2)} op_sel:[0,1] op_sel_hi:[1,1]")
        for r in range(cfg.ghead):
            P(f"v_exp_f32 v{E + 19 - r}, v{E + 19 - r}")
        tr.pt(P, 51)
    event[GATE] = gate_head
    for r in range(19 - cfg.ghead, -1, -1):
        fill.t(GATE, f"v_exp_f32 v{E + r}, v{E + r}")
    for r in range(18, -1, -2):
        fill.t(GATE, f"v_fma_f32 v{E + r + 1}, v{E + r + 1}, v{vR}, v{vR}\nv_fma_f32 v{E + r}, v{E + r}, v{vR}, v{vR}")
        fill.t(GATE, f"v_rcp_f32 v{E + r + 1}, v{E + r + 1}\nv_rcp_f32 v{E + r}, v{E + r}")

    for r in range(19, 19 - cfg.gmul, -1):
        fill.t(GATE, f"v_mul_f32 v{ACC + r}, v{ACC + r}, v{E + r}")

    for n, (text, vk, dk) in enumerate(mf):
        if n in event:
            event[n]()
        P.wait(vm=tok[vk], ds=tk[dk] if dk else None)
        if n == (200 if mg else 240):
            assert P.vm_done >= tok.get("b", 0)
        if n in (0, 80, 160, 240):
            tr.pt(P, 40 + n // 40)
        if n == 20:
            tr.pt(P, 41)
        if n == S0:
            tr.pt(P, 48)
        P(text)
        if n + 1 < N and n + 1 not in event and not lead[n]:
            _, vk1, dk1 = mf[n + 1]
            if vk1 in tok and (dk1 is None or dk1 in tk):
                P.wait(vm=tok[vk1], ds=tk[dk1] if dk1 else None)
        for f in lead[n] + body[n]:
            f()
        if cap[n] > 0:
            fill.take(n, cap[n] + (cfg.gover if n >= GATE else 0), False, strict=True)
    tr.pt(P, 50)
    fill.drain()
    for r in range(18 - cfg.gmul, -1, -2):
        P(f"v_pk_mul_f32 {vq(ACC + r, 2)}, {vq(ACC + r, 2)}, {vq(E + r, 2)}")
    for j in (4, 3, 2, 1, 0):
        s = ACS + 4 * j
        for h in (0, 2):
            P(f"v_pk_fma_f32 {vq(s + h, 2)}, {vq(s + h, 2)}, {vq(ACC + 4 * j + h, 2)}, {vq(XU + 4 * j + h, 2)}")
        for h in (0, 2):
            P(f"v_cvt_pk_bf16_f32 v{vXD + 2 * j + h // 2}, v{s + h}, v{s + h + 1}")
        if j == 0:
            P.ds(f"ds_write_b128 v{vXL}, {vq(vXD)}")
        if j == 2:
            P.ds(f"ds_write_b128 v{vXL}, {vq(vXD + 4)} offset:64")
        if j == 4:
            P.ds(f"ds_write_b64 v{vXL + 1}, {vq(vXD + 8, 2)} offset:128")
    tq = [P.ds(f"ds_read_b128 {vq(E + 4 * q)}, v{vRd} offset:{q * 1024}") for q in range(3)]
    for q in range(3):
        P.wait(ds=tq[q])
        P.vm(f"buffer_store_dwordx4 {vq(E + 4 * q)}, v{vXG + q}, {srd(rOUT)}, 0 offen offset:{q * 1024}{cfg.osc}")
    if tr.on:
        tr.pt(P, 52)
        P.wait_all_vm()
        tr.pt(P, 53)
        tr.pt(P, 54, real=True)
        tr.store(P)
    P("s_endpgm")
    return poll


def gen(cfg):
    FlagPoll.sc = cfg.psc
    Poll.trace = cfg.trace
    Cfg.merge, Cfg.oswap = cfg.merge, cfg.oswap
    outs = []
    P = Prog()
    tr = Trace(cfg)
    tr.pt(P, 0, real=True)
    tr.pt(P, 1)
    P("s_load_dwordx16 s[4:19], s[0:1], 0")
    P("s_load_dwordx4 s[20:23], s[0:1], 64")
    P("s_cmp_lt_u32 s2, 96")
    P("s_cbranch_scc1 L_qkv")
    P("s_cmp_lt_u32 s2, 256")
    P("s_cbranch_scc1 L_go")
    P("s_endpgm")
    if cfg.warm:
        P("L_ret:")
        P(f"s_setpc_b64 s[{sRET}:{sRET + 1}]")
    P("L_go:")

    def ids(P):
        P("v_lshrrev_b32 v1, 6, v0")
        P(f"s_lshr_b32 s{sT0}, s2, 3")
        P(f"v_readfirstlane_b32 s{sW}, v1")
        P("v_and_b32 v1, 63, v0")
        if tr.on:
            P(f"v_mov_b32 v{vTR}, 0")
        P(f"s_bfe_u32 s{sT1}, s2, 0x10002")
        P(f"s_and_b32 s{sT2}, s2, 3")
        P(f"s_lshl_b32 s{sM0A}, s{sW}, 10")
    P(f"s_getpc_b64 s[{sPC}:{sPC + 1}]")
    P("L_pc:")
    P("s_and_b32 s3, s2, 0xf8")
    P("s_lshl_b32 s3, s3, 9")
    P(f"s_sub_u32 s3, s3, {12 * 4096}")
    P("v_lshlrev_b32 v5, 4, v0")
    P("v_add_u32 v5, s3, v5")
    P("v_min_u32 v5, L_codeend-L_pc-4, v5")
    P.vm(f"global_load_dword a255, v5, s[{sPC}:{sPC + 1}]")
    nvm0 = P.nvm
    ids(P)
    P(f"s_and_b32 s{sT3}, s2, 0xfb")
    P(f"s_sub_u32 s{sT3}, s{sT3}, 248")
    P(f"s_cmp_lt_u32 s{sT3}, 3")
    P("s_cbranch_scc1 L_spare")
    P(f"s_mul_i32 s{sT2}, s{sT2}, 19")
    P(f"s_add_u32 s{sT2}, s{sT2}, s{sT0}")
    P(f"s_sub_u32 s{sT2}, s{sT2}, 12")
    for x in range(77):
        assert (x * 94) >> 10 == x // 11
    P(f"s_mul_i32 s{sNT}, s{sT2}, 94")
    P(f"s_lshr_b32 s{sNT}, s{sNT}, 10")
    P(f"s_mul_i32 s{sT3}, s{sNT}, 11")
    P(f"s_sub_u32 s{sT2}, s{sT2}, s{sT3}")
    P(f"s_mul_i32 s{sMT}, s{sT1}, 5")
    P(f"s_add_u32 s{sMT}, s{sMT}, s{sT2}")
    P(f"s_add_u32 s{sT1}, s{sT1}, 5")
    P(f"s_cmp_ge_u32 s{sT2}, s{sT1}")
    P(f"s_cselect_b32 s{sT3}, 5, 0")
    P(f"s_addc_u32 s{sNT}, s{sNT}, s{sNT}")
    P(f"s_sub_u32 s{sMT}, s{sMT}, s{sT3}")
    outs.append(P)
    pend0, n0 = list(tr.pend), tr.n

    for cls, lab in ((GLU, "L_glu"), (QKV, "L_qkv")):
        Q = Prog()
        Q.nvm = nvm0
        tr.pend, tr.n = list(pend0), n0
        Q(f"{lab}:")
        if cls is QKV:
            ids(Q)
            Q(f"s_lshr_b32 s{sMT}, s{sT0}, 1")
            Q(f"s_mul_i32 s{sT3}, s{sT1}, 6")
            Q(f"s_add_u32 s{sMT}, s{sMT}, s{sT3}")
            Q(f"s_and_b32 s{sNT}, s{sT0}, 1")
            Q(f"s_lshl1_add_u32 s{sNT}, s{sT2}, s{sNT}")
        role = cls(Q, cfg)
        if cfg.kdiag:
            Q("s_waitcnt lgkmcnt(0)")
            tr.pt(Q, 9)
        role.prologue()
        tr.pt(Q, 2)
        phase1_loop(Q, cfg, role, tr)
        n1 = role.epilogue(tr)
        finish(Q, role, n1, tr, lab[2:])
        role.poll.slow(2 if cfg.gather else cfg.enap)
        role.pollr.slow()
        if cfg.near:
            H = Prog()
            H.lines, Q.lines = Q.lines[:Q.cut - 1], Q.lines[Q.cut - 1:]
            outs.insert(1 if lab == "L_glu" else 2, H)
        outs.append(Q)

    Q = Prog()
    Q.nvm = nvm0
    tr.pend, tr.n = list(pend0), n0
    Q("L_spare:")
    st = Stats(Q, 24)
    st.addr(Q)
    Q("s_waitcnt lgkmcnt(0)")
    mk_srd(Q, rX, sX, X_BYTES)
    common_srds(Q)
    Q(f"s_cmp_eq_u32 s2, {RESET_WG}")
    Q("s_cbranch_scc0 L_noreset")
    for k in range(4):
        Q(f"v_mov_b32 v{52 + k}, 0")
    Q("v_lshlrev_b32 v48, 4, v0")
    Q(f"v_add_u32 v48, {EF_OFF}, v48")
    Q("v_lshlrev_b32 v49, 7, v0")
    Q(f"v_add_u32 v49, {FLAG_OFF}, v49")
    Q.vm(f"buffer_store_dwordx4 {vq(52)}, v48, {srd(rST)}, 0 offen sc1", counted=False)
    Q.vm(f"buffer_store_dwordx4 {vq(52)}, v49, {srd(rST)}, 0 offen sc1", counted=False)
    Q("v_lshlrev_b32 v48, 8, v0")
    Q("v_mov_b32 v49, 1")
    Q("s_waitcnt vmcnt(0)")
    Q("s_barrier")
    Q.vm(f"buffer_store_dword v49, v48, {srd(rDBG)}, 0 offen sc1", counted=False)
    Q("L_noreset:")
    mk_srd(Q, rW0, sWQKV, 640 * 3840)
    mk_srd(Q, rW1, sWG, 640 * 3456)
    mk_srd(Q, rWR, sWU, 640 * 3456)
    Q(f"s_bfe_u32 s{sT0}, s2, 0x10002")
    Q(f"s_mul_i32 s{sT0}, s{sT0}, 3")
    Q(f"s_and_b32 s{sT1}, s2, 3")
    Q(f"s_add_u32 s{sT0}, s{sT0}, s{sT1}")
    Q(f"s_lshl_b32 s{sT0}, s{sT0}, 15")
    Q(f"v_lshl_add_u32 v56, v0, 7, s{sT0}")
    segs = {rW0: [cfg.spf * 32 * 3840, 640 * 3840], rW1: [cfg.spf2 * 32 * 3456, 640 * 3456], rWR: [cfg.spf2 * 32 * 3456, 640 * 3456]}
    rounds = []
    while any(a < b for a, b in segs.values()):
        r = rW0 if segs[rW0][0] < segs[rW0][1] else min((rW1, rWR), key=lambda r: segs[r][0])
        rounds.append((r, segs[r][0]))
        segs[r][0] += (6 if len(rounds) <= cfg.nsix else 5) * 256 * 128

    def spf(n):
        for _ in range(min(n, len(rounds))):
            r, o = rounds.pop(0)
            Q(f"v_add_u32 v57, {o}, v56")
            Q.vm(f"buffer_load_dword a255, v57, {srd(r)}, 0 offen")
    spf(1)
    for k in range(10):
        st.load(k)
    spf(2)
    sd = Side(Q)
    st.queue(sd, 0)
    pollr = Poll(Q, 48, 52, "spare", "r")
    pollr.issue(sd, 0)
    sd.drain()
    spf(2)
    pollr.check(sd, 0)
    sd.drain()
    Q("s_barrier")
    early_signal(sd, 0, Q, 48, 49)
    sd.drain()
    spf(cfg.nsix - 5)
    Q(f"s_cmp_eq_u32 s2, {RESET_WG}")
    Q("s_cbranch_scc1 L_gather")
    spf(99)
    Q("s_branch L_gathered")
    Q("L_gather:")
    polle = Poll(Q, 48, 52, "spare", "e")
    polle.issue(sd, 0)
    polle.check(sd, 0)
    sd.drain()
    Q("v_lshlrev_b32 v48, 8, v0")
    Q("v_mov_b32 v49, 1")
    Q.vm(f"buffer_store_dword v49, v48, {srd(rDBG)}, 0 offen offset:128 sc1")
    Q("L_gathered:")
    poll = Poll(Q, 48, 52, "spare", "g")
    poll.issue(sd, 0)
    poll.check(sd, 0)
    sd.drain()
    tr.pt(Q, 33)
    tile2_setup(Q, cfg)
    phase2_setup1(Q, False)
    phase2_setup2(Q)
    hpoll = enter_phase2(Q, cfg, Late(Q, [(0, "R", k) for k in range(14)] + [(0, "W", k) for k in range(25)], cut=cfg.defer), 0, tr, "spare")
    Q("s_barrier")
    Q("s_branch L_p2")
    hpoll.slow(tr, 38, cfg.snap)
    poll.slow(8)
    polle.slow(cfg.gnap)
    pollr.slow()
    outs.append(Q)
    T = Prog()
    T("L_codeend:")
    outs.append(T)
    lines = "\n".join(o.text() for o in outs).split("\n")
    if cfg.warm:
        assert cfg.share and cfg.defer == cfg.deferq and not cfg.fastq
        qh = "L_qkv2:" if cfg.near else "L_qkv:"
        fake = [f"L_chain_{t}{w}:" for t in ("glu", "qkv") for w in range(4)]
        lines, n, slots = align_pass(lines + fake, cfg.align, ("L_spare:",), ("L_glu2:", qh), ("L_fspin_glu:", "L_fspin_qkv:"))
        lines = lines[:-len(fake)]
        p2 = lines.index("L_p2:")
        name = {pos: f"L_pg{k}" for k, (_, pos) in enumerate(slots)}
        shared = [name[pos] for r, pos in slots if r == "L_glu2:" and pos > p2]
        nxt, sub = {x: "L_ret" for x in shared}, {}
        for t, r in (("glu", "L_glu2:"), ("qkv", qh)):
            own = [name[pos] for rr, pos in slots if rr == r and name[pos] not in shared]
            chains = [own[w::4] for w in range(4)]
            tails = shared + (["L_p2"] if t == "qkv" else [])
            assert len(tails) <= 4
            for c, x in zip(sorted(chains, key=len), tails):
                c.append(x)
            for w, c in enumerate(chains):
                sub[f"L_chain_{t}{w}"] = c[0]
                for x, y in zip(c, c[1:] + ["L_ret"]):
                    nxt.setdefault(x, y)
            print(t, "page chains", chains, file=sys.stderr)
        for k, l in enumerate(lines):
            if k in name:
                lines[k] = f"{name[k]}:\n    s_cbranch_execz {nxt[name[k]]}"
            elif l.split()[-1] in sub:
                lines[k] = l.replace(l.split()[-1], sub[l.split()[-1]])
    else:
        lines, n, _ = align_pass(lines, cfg.align, ("L_qkv:", "L_spare:"))
    print("alignment fixes:", n, file=sys.stderr)
    return "\n".join(lines)


HEADER = """; Kernarg layout for this problem (80 bytes, ptrs only, base s[0:1]):
;   offset   8: d_in[1] A_wqkv  shape=(640, 1920) dtype=bfloat16 strides=(3840, 2) contiguous=True
;
"""


def build(cfg):
    name = NAME + "_kernel"
    return HEADER + f"""; @launch grid=(256,1,1) block=(256,1,1) lds=163840
.amdgcn_target "amdgcn-amd-amdhsa--gfx950"
.text
.globl {name}
{'.p2align 12' if cfg.page else ''}
.p2align 8
.type {name},@function
{name}:
{gen(cfg)}
.section .rodata,"a"
.p2align 6
.amdhsa_kernel {name}
  .amdhsa_next_free_vgpr 512
  .amdhsa_next_free_sgpr 102
  .amdhsa_accum_offset 256
  .amdhsa_group_segment_fixed_size 0
  .amdhsa_kernarg_size 80
  .amdhsa_user_sgpr_count 2
  .amdhsa_user_sgpr_kernarg_segment_ptr 1
  .amdhsa_system_sgpr_workgroup_id_x 1
  .amdhsa_float_denorm_mode_32 3
.end_amdhsa_kernel
"""


if __name__ == "__main__":
    cfg = Cfg()
    out = sys.argv[1]
    for a in sys.argv[2:]:
        k, v = a.split("=")
        assert hasattr(cfg, k), k
        setattr(cfg, k, eval(v))
    open(out, "w").write(build(cfg))
```

```python
import sys
from asmlib import Prog, Alloc, Side, Rec, align_pass

NAME = "recurrent_scan__sliding_local_dilated__glu_gated_reglu__prompt"

A2_MT = 74 * 4096
A2_SIZE = 32 * A2_MT
B2_OFF = 0xA00000
B2_NT = 74 * 5120
B2_SIZE = 8 * B2_NT
ST_OFF = 0xE00000
ST_SIZE = 0x10000
FLAG_OFF = 0x8000
EF_OFF = 0x5000
RESET_WG = 254
TRACE_OFF = 0xF00000
OOB = 0x7FFF0000
X_BYTES = 2048 * 1280

sX, sWQKV, sWO, sWG, sWU, sWD, sOUT, sDBG, sWS = 4, 6, 8, 12, 14, 16, 18, 20, 22
rX, rW0, rW1, rA2, rB2, rST, rWR, rDBG, rOUT = 24, 28, 32, 36, 40, 44, 48, 52, 56
sW, sMT, sNT = 60, 61, 62
sT0, sT1, sT2, sT3 = 63, 64, 65, 66
sM0A, sM0B, sM0R = 67, 68, 69
sKA, sKB = 70, 71
sEXA = 72
sMK0, sMK1, sMK2 = 74, 76, 78
sRP, sSPIN = 80, 81
sPC = 82
sEXP = 83
sRET = 10
sMT2, sNT2, sB2K = 84, 85, 86
sB2Y, sB2W, sA2Y, sA2S = 87, 88, 89, 3
sA2Y1, sA2Y2 = 12, 13
sTR = 90
sFLAG, sRC1 = 100, 101
sHM = 4
vTR = 2
vB2 = 3


def srd(r):
    return f"s[{r}:{r + 3}]"


def vq(r, n=4):
    return f"v[{r}:{r + n - 1}]"


def aq(r, n=4):
    return f"a[{r}:{r + n - 1}]"


class Cfg:
    trace = False
    tevery = 1
    quota_glu = (9, 9, 8)
    quota_qkv = (10, 10, 10, 9, 8)
    tot_glu = 12
    tot_qkv = 10
    pfnq = 6
    pfn = 6
    pf = ((-0.4, 2), (1.9, 8))
    pfq = ((-0.4, 2),)
    st = (1.4, 1.42, -0.4, -0.4, 1.45, 1.5, 1.55, 1.6, 1.65, 1.7)
    npre = (10, 6)
    rpd = (3, 3, 3, 3, 3)
    rpr = 4.5
    rps = (5, 5, 5, 6, 6)
    sig_glu = 7
    spf2 = 14
    spf = 8
    sig_qkv = 10
    fine_qkv = 10
    fine_glu = 20
    poll_glu = 12
    poll_qkv = 13.9
    map2 = 1
    n1_glu = 3
    nepi_glu = 0
    n1_qkv = 5
    ld_every = 10
    ntail = 8
    spoll = 14
    osc = ""
    rot = False
    nfirst = 1
    wpos = 10
    tail_every = 4
    defer = (0, 3)
    deferq = (0, 3)
    ochk = 200
    vsp = 4
    vspq = 3
    vsp2 = 4
    ssp = 4
    qpub = 0
    qst = 0
    gather = False
    enap = 8
    nsix = 99
    gnap = 16
    pchk = 1.2
    atouch = 0
    burst0 = 0
    xearly = False
    align = 8
    n2 = None
    n2q = None
    nvo = 0
    vbar = 26
    ntailq = -5
    ghead = 0
    gover = 1
    gmul = 0
    fair0 = 1
    sx = 0
    vsw = 60
    vsw2 = 260
    fair = (0, 1, 2, 3, 4)
    p2fine = False
    otouch = 0
    warm = 2
    page = True
    near = True
    share = True
    kdiag = False
    oswap = 20
    fastq = 0
    psc = "sc1"
    fsc = "sc1"
    wlast = (17.9, 17.8)
    early_setup = False
    tpr = 1.5
    stw = 1.3
    bq = 12
    rdelay = 1
    rpg = 1
    wafter = 99
    touch = None
    snap = 16
    tail_rate = 3
    nov = 5
    tot19 = 8
    xpos = 1
    fine2_glu = 9
    boost = 6
    rstride = 2
    vmx = True
    wq = 0
    look = 8
    merge = True
    sbar = 5
    sgate = 4


def mk_srd(P, r, ptr, size, off=0):
    if off:
        P(f"s_add_u32 s{r}, s{ptr}, {off}")
        P(f"s_addc_u32 s{r + 1}, s{ptr + 1}, 0")
    else:
        P(f"s_mov_b32 s{r}, s{ptr}")
        P(f"s_mov_b32 s{r + 1}, s{ptr + 1}")
    P(f"s_mov_b32 s{r + 2}, {size}")
    P(f"s_mov_b32 s{r + 3}, 0x20000")


def smask(P, s, m):
    P(f"s_mov_b32 s{s}, 0x{m & 0xffffffff:x}")
    P(f"s_mov_b32 s{s + 1}, 0x{m >> 32:x}")


class Trace:
    def __init__(self, cfg):
        self.on = cfg.trace
        self.pend = []
        self.n = 0

    def pt(self, P, lane, real=False):
        if not self.on:
            return
        if len(self.pend) == 5:
            self.flush(P)
        s = sTR + 2 * (self.n % 5)
        self.n += 1
        P(f"{'s_memrealtime' if real else 's_memtime'} s[{s}:{s + 1}]")
        self.pend.append((s, lane))
        both = {4: 55, 13: 56, 18: 57, 23: 58, 28: 59, 33: 60, 37: 61, 44: 62, 50: 63, 35: 5, 36: 6, 40: 7}
        if lane in both:
            self.pt(P, both[lane], real=True)

    def flush(self, P, lazy=False):
        if not self.on or not self.pend:
            return
        if not lazy:
            P("s_waitcnt lgkmcnt(0)")
        for s, lane in self.pend:
            P(f"v_writelane_b32 v{vTR}, s{s}, {lane}")
        self.pend = []

    def store(self, P):
        if not self.on:
            return
        self.flush(P)
        mk_srd(P, rWR, sWS, 0x40000, TRACE_OFF)
        P(f"s_lshl_b32 s{sT0}, s2, 10")
        P(f"v_lshl_add_u32 v5, v0, 2, s{sT0}")
        P.vm(f"buffer_store_dword v{vTR}, v5, {srd(rWR)}, 0 offen")


def divc(P, dst, src, c):
    m = (65536 + c - 1) // c
    for x in range(1024):
        assert (x * m) >> 16 == x // c
    P(f"v_mul_u32_u24 v{dst}, {m}, v{src}")
    P(f"v_lshrrev_b32 v{dst}, 16, v{dst}")


class Stats:
    def __init__(self, P, base):
        self.P, self.b = P, base

    def addr(self, P):
        b = self.b
        P(f"s_and_b32 s{sT0}, s2, 4")
        P(f"s_lshl_b32 s{sT0}, s{sT0}, 8")
        P(f"s_and_b32 s{sT1}, s2, 0xf8")
        P(f"s_lshl2_add_u32 s{sT0}, s{sT1}, s{sT0}")
        P(f"s_and_b32 s{sT1}, s2, 3")
        P(f"s_lshl3_add_u32 s{sT0}, s{sT1}, s{sT0}")
        P(f"v_lshrrev_b32 v{b + 20}, 5, v0")
        P(f"v_add_u32 v{b + 20}, s{sT0}, v{b + 20}")
        P(f"v_mul_u32_u24 v{b + 22}, 1280, v{b + 20}")
        P(f"v_and_b32 v{b + 23}, 31, v0")
        P(f"v_lshl_add_u32 v{b + 21}, v{b + 23}, 2, v{b + 22}")

    def load(self, k):
        P, b = self.P, self.b
        self.tok = P.vm(f"buffer_load_dword v{b + k}, v{b + 21}, {srd(rX)}, 0 offen offset:{128 * k}")
        self.nld = getattr(self, "nld", 0) + 1

    def queue(self, sd, step):
        P, b = self.P, self.b
        e = lambda t: sd.t(step, t)
        def w():
            assert self.nld == 10
            P.wait(vm=self.tok)
        sd.f(step, w)
        for i in range(10):
            e(f"v_lshlrev_b32 v{b + 10 + i}, 16, v{b + i}")
            e(f"v_and_b32 v{b + i}, 0xffff0000, v{b + i}")
        s0, s1 = b + 21, b + 22

        def reduce32():
            e(f"v_add_f32 v{s0}, v{s0}, v{s1}")
            for sh in (8, 4, 2, 1):
                sd.t(step, f"v_add_f32_dpp v{s0}, v{s0}, v{s0} row_ror:{sh} row_mask:0xf bank_mask:0xf", 2)
            e(f"v_mov_b32 v{s1}, v{s0}")
            e(f"v_permlane16_swap_b32 v{s0}, v{s1}")
            e(f"v_add_f32 v{s0}, v{s0}, v{s1}")
            e(f"v_mul_f32 v{s0}, 0x3acccccd, v{s0}")

        e(f"v_add_f32 v{s0}, v{b}, v{b + 1}")
        e(f"v_add_f32 v{s1}, v{b + 10}, v{b + 11}")
        for i in range(2, 10):
            e(f"v_add_f32 v{s0}, v{s0}, v{b + i}")
            e(f"v_add_f32 v{s1}, v{s1}, v{b + 10 + i}")
        reduce32()
        for i in range(20):
            e(f"v_sub_f32 v{b + i}, v{b + i}, v{s0}")
        e(f"v_cvt_pk_bf16_f32 v{b + 23}, v{s0}, v{s0}")
        e(f"v_mul_f32 v{s0}, v{b}, v{b}")
        e(f"v_mul_f32 v{s1}, v{b + 1}, v{b + 1}")
        for i in range(2, 20):
            e(f"v_fmac_f32 v{s0 if i % 2 == 0 else s1}, v{b + i}, v{b + i}")
        e(f"v_lshlrev_b32 v{b + 23}, 16, v{b + 23}")
        reduce32()

        def rnd():
            e(f"v_cvt_pk_bf16_f32 v{s0}, v{s0}, v{s0}")
            e(f"v_lshlrev_b32 v{s0}, 16, v{s0}")
        rnd()
        e(f"v_add_f32 v{s0}, 0x3727c5ac, v{s0}")
        rnd()
        e(f"v_sqrt_f32 v{s0}, v{s0}")
        rnd()
        e(f"v_rcp_f32 v{s0}, v{s0}")
        e(f"v_lshlrev_b32 v{b + 20}, 2, v{b + 20}")
        e(f"v_and_b32 v{b}, 31, v0")
        e(f"v_mov_b32 v{b + 1}, {OOB}")
        e(f"v_cmp_eq_u32 vcc, 0, v{b}")
        e(f"v_lshl_add_u32 v{b + 20}, v{b}, 13, v{b + 20}")
        e(f"v_cndmask_b32 v{s0}, v{s0}, v{b + 23}, vcc")
        e(f"v_cmp_gt_u32 vcc, 2, v{b}")
        e(f"s_nop 0")
        e(f"v_cndmask_b32 v{b + 20}, v{b + 1}, v{b + 20}, vcc")

        def last():
            self.done = P.vm(f"buffer_store_dword v{s0}, v{b + 20}, {srd(rST)}, 0 offen sc1")
        sd.f(step, last, 2)


def early_signal(sd, step, P, t0, t1):
    sd.t(step, f"""
        s_lshr_b32 s{sT0}, s2, 3
        s_lshl_b32 s{sT0}, s{sT0}, 5
        s_and_b32 s{sT1}, s2, 7
        s_add_u32 s{sT0}, s{sT0}, s{sT1}
        s_lshl2_add_u32 s{sT0}, s{sT0}, {EF_OFF}
        v_cmp_eq_u32 vcc, 0, v0
        v_mov_b32 v{t0}, s{sT0}
        v_mov_b32 v{t1}, {OOB}
        v_cndmask_b32 v{t0}, v{t1}, v{t0}, vcc
        v_mov_b32 v{t1}, 1""")
    sd.f(step, lambda: P.vm(f"buffer_store_dword v{t1}, v{t0}, {srd(rST)}, 0 offen sc1"), 2)


class Poll:
    def __init__(self, P, va, vd, tag, kind):
        self.P, self.va, self.vd, self.tag, self.kind = P, va, vd, tag + kind, kind

    def ld(self):
        if self.kind != "e":
            return f"buffer_load_dword v{self.vd}, off, {srd(rDBG)}, 0{' offset:128' if self.kind == 'g' else ''} sc1"
        return f"buffer_load_dwordx4 {vq(self.vd)}, v{self.va}, {srd(rST)}, 0 offen sc1"

    def cmp(self):
        d = self.vd
        t = "" if self.kind != "e" else f"v_and_b32 v{d}, v{d}, v{d + 1}\nv_and_b32 v{d + 2}, v{d + 2}, v{d + 3}\nv_and_b32 v{d}, v{d}, v{d + 2}\n"
        return t + f"v_cmp_ne_u32 vcc, {1 if self.kind != 'e' else f's{sEXP}'}, v{d}"

    def issue(self, sd, step):
        P, a = self.P, self.va
        if self.kind == "e":
            sd.t(step, f"""v_lshrrev_b32 v{a}, 1, v1
                v_lshlrev_b32 v{a}, 3, v{a}
                v_and_or_b32 v{a}, v1, 1, v{a}
                s_lshl_b32 s{sT0}, s{sW}, 16
                s_add_u32 s{sT0}, s{sT0}, {EF_OFF}
                v_lshl_add_u32 v{a}, v{a}, 4, s{sT0}""")
            sd.a(step, f"s_cmp_eq_u32 s{sW}, 0\ns_cselect_b32 s{sEXP}, 1, 0")

        def f():
            self.tok = P.vm(self.ld())
        sd.f(step, f, 2)

    def check(self, sd, step):
        P = self.P
        sd.f(step, lambda: P.wait(vm=self.tok))
        sd.t(step, self.cmp())
        sd.a(step, f"s_nop 0\ns_cbranch_vccnz L_spin_{self.tag}\nL_back_{self.tag}:")

    def slow(self, nap=8):
        P = self.P
        P(f"L_spin_{self.tag}:")
        P(f"s_mov_b32 s{sSPIN}, 0")
        P(f"L_spin2_{self.tag}:")
        P(f"s_sleep {nap}")
        P.vm(self.ld(), counted=False)
        P(f"s_add_u32 s{sSPIN}, s{sSPIN}, 1")
        if Poll.trace:
            P(f"v_writelane_b32 v{vTR}, s{sSPIN}, {45 if self.kind == 'r' else 47}")
        P("s_waitcnt vmcnt(0)")
        P(self.cmp())
        P(f"s_cmp_lt_u32 s{sSPIN}, 0x40000")
        P("s_nop 1")
        P(f"s_cbranch_vccz L_back_{self.tag}")
        P(f"s_cbranch_scc1 L_spin2_{self.tag}")
        P(f"s_branch L_back_{self.tag}")


sB13, sA13 = 28, 29
LWO = 61440


def b2_reg(s, j):
    if s < 8:
        return aq(88 + 20 * s + 4 * j)
    if s < 12:
        return aq(20 * (s - 8) + 4 * j)
    return vq(96 + 20 * (s - 12) + 4 * j)


class Late:
    def __init__(self, P, plan, rot=False, n=95, cut=(0, 0)):
        plan = [u for u in plan if (u[2] < 14 - cut[0] if u[1] == "R" else u[2] >= cut[1])]
        n -= 5 * cut[0] + cut[1]
        self.P = P
        self.rot = rot
        self.q = []
        for step, kind, idx in plan:
            self.q += [(step, "R", idx, j) for j in range(5)] if kind == "R" else [(step, "W", idx, 0)]
        assert len(self.q) == n and len({u[1:] for u in self.q}) == n
        self.cur = None
        self.zsrd = False

    def arrange(self, step, lds_ok):
        rw = [u for u in self.q if u[0] <= step and u[1] == "W" and lds_ok]
        rr = [u for u in self.q if u[0] <= step and u[1] == "R"]
        self.q = rw + rr + [u for u in self.q if u not in rw and u not in rr]
        return len(rw) + len(rr)

    def ready(self, step):
        return self.q and self.q[0][0] <= step

    def unit(self):
        P = self.P
        step, kind, s, j = self.q.pop(0)
        preps = []
        if kind == "R":
            if self.cur != s:
                k = s if (not self.rot or s >= 12) else (s + 8) % 12
                preps.append(lambda: P(f"s_add_u32 s{sB2K}, s{sB2Y}, {k * 5120}" if s < 13 else f"s_mov_b32 s{sB2K}, s{sB13}"))
            self.cur = s
            off = f" offset:{j * 1024}" if 0 < j < 4 else ""
            assert s != 13 or self.zsrd
            r = rB2
            return step, False, preps, lambda: P.vm(f"buffer_load_dwordx4 {b2_reg(s, j)}, v{vB2 + (j >> 2)}, {srd(r)}, s{sB2K} offen{off} sc1")
        self.cur = None
        preps = [lambda: P(f"s_add_u32 m0, s{sM0A}, {LWO + s * 4096}"), lambda: P(f"s_add_u32 s{sB2K}, s{sB2W}, {s * 4096}")]
        return step, True, preps, lambda: P.vm(f"buffer_load_dwordx4 v{vB2}, {srd(rB2)}, s{sB2K} offen sc1 lds")

    def emit(self, count, step):
        while count > 0 and self.ready(step):
            _, _, preps, f = self.unit()
            for p in preps:
                p()
            f()
            count -= 1


def tile2_setup(P, cfg):
    P(f"s_and_b32 s{sT0}, s2, 7")
    P(f"s_lshr_b32 s{sT1}, s2, 3")
    if cfg.map2 == 1:
        P(f"s_lshr_b32 s{sMT2}, s{sT0}, 1")
        P(f"s_lshl_b32 s{sMT2}, s{sMT2}, 3")
        P(f"s_lshr_b32 s{sT2}, s{sT1}, 2")
        P(f"s_add_u32 s{sMT2}, s{sMT2}, s{sT2}")
        P(f"s_and_b32 s{sNT2}, s{sT0}, 1")
        P(f"s_lshl_b32 s{sNT2}, s{sNT2}, 2")
        P(f"s_and_b32 s{sT2}, s{sT1}, 3")
        P(f"s_add_u32 s{sNT2}, s{sNT2}, s{sT2}")
    elif cfg.map2 == 2:
        P(f"s_lshr_b32 s{sMT2}, s{sT0}, 1")
        P(f"s_and_b32 s{sT2}, s{sT1}, 7")
        P(f"s_lshl3_add_u32 s{sMT2}, s{sMT2}, s{sT2}")
        P(f"s_lshr_b32 s{sT2}, s{sT1}, 3")
        P(f"s_add_u32 s{sT2}, s{sT2}, s{sT1}")
        P(f"s_and_b32 s{sT2}, s{sT2}, 3")
        P(f"s_and_b32 s{sNT2}, s{sT0}, 1")
        P(f"s_lshl2_add_u32 s{sNT2}, s{sNT2}, s{sT2}")
    else:
        P(f"s_lshl_b32 s{sMT2}, s{sT0}, 2")
        P(f"s_lshr_b32 s{sT2}, s{sT1}, 3")
        P(f"s_add_u32 s{sMT2}, s{sMT2}, s{sT2}")
        P(f"s_and_b32 s{sNT2}, s{sT1}, 7")
    P(f"s_mul_i32 s{sT0}, s{sW}, 13")
    P(f"s_add_u32 s{sT0}, s{sT0}, 20")
    P(f"s_mul_i32 s{sT1}, s{sNT2}, {B2_NT}")
    P(f"s_mul_i32 s{sT2}, s{sT0}, 5120")
    P(f"s_add_u32 s{sB2Y}, s{sT1}, s{sT2}")
    P(f"s_add_u32 s{sB2W}, s{sT1}, s{sM0A}")
    P(f"s_mul_i32 s{sA2S}, s{sMT2}, {A2_MT}")
    P(f"s_lshl_b32 s{sT0}, s{sT0}, 12")
    P(f"s_add_u32 s{sA2Y}, s{sA2S}, s{sT0}")
    P(f"v_lshlrev_b32 v{vB2}, 4, v1")
    P(f"v_add_u32 v{vB2 + 1}, 4096, v{vB2}")


def b2_touch(role, sd, t0, t1):
    P, cfg = role.P, role.cfg
    if not cfg.touch:
        return
    R = Rec()
    R(f"s_sub_u32 s{sT0}, s{sB2W}, s{sM0A}")
    R(f"s_and_b32 s{sT1}, s{sW}, 1")
    R(f"s_add_u32 s{sT1}, s{sT1}, 71")
    R(f"s_mul_i32 s{sT1}, s{sT1}, 5120")
    R(f"s_add_u32 s{sT1}, s{sT1}, s{sT0}")
    R(f"s_mul_i32 s{sT2}, s{sW}, 5120")
    R(f"s_add_u32 s{sT0}, s{sT0}, s{sT2}")
    R(f"s_sub_u32 s{sT0}, s{sT0}, 10240")
    R(f"s_add_u32 s{sT2}, s{sB2Y}, {12 * 5120}")
    R(f"v_mov_b32 v{t0}, {OOB}")
    for lim, sr in ((15, sT0), (10, sT1), (5, sT2)):
        R(f"v_cmp_gt_u32 vcc, {lim}, v1")
        R(f"v_lshl_add_u32 v{t1}, v1, 10, s{sr}")
        R(f"s_nop 0")
        R(f"v_cndmask_b32 v{t0}, v{t0}, v{t1}, vcc")
    R(f"s_and_b32 s{sT0}, s{sMT2}, 7")
    R(f"s_lshl_b32 s{sT0}, s{sT0}, 7")
    R(f"v_add_u32 v{t0}, s{sT0}, v{t0}")
    R.into(sd, cfg.touch - 0.8)

    def f():
        assert role.nbar > role.early_ok
        P.vm(f"buffer_load_dword a255, v{t0}, {srd(rB2)}, 0 offen sc1")
    sd.f(cfg.touch, f, 2)


def xg_addr(P, d, t, u0, u1):
    P(f"s_lshl_b32 s{u0}, s{sMT2}, 6")
    P(f"s_lshl4_add_u32 s{u0}, s{sW}, s{u0}")
    P(f"s_lshl3_add_u32 s{u0}, s{u0}, s{sNT2}")
    P(f"s_mul_i32 s{u0}, s{u0}, 160")
    P(f"v_cmp_gt_u32 vcc, 32, v1")
    for q in range(3):
        if q:
            P(f"v_add_u32 v{t}, {64 * q}, v1")
        divc(P, t, t if q else 1, 10)
        P(f"v_mul_u32_u24 v{t}, 1120, v{t}")
        P(f"v_add3_u32 v{d + q}, v{t}, v{vB2}, s{u0}")
    P(f"v_mov_b32 v{t}, {OOB}")
    P(f"v_cndmask_b32 v{d + 2}, v{t}, v{d + 2}, vcc")
    P(f"s_mul_i32 s{u1}, s{sW}, 3072")
    P(f"s_add_u32 s{u1}, s{u1}, {LWO}")


def common_srds(P):
    mk_srd(P, rST, sWS, ST_SIZE, ST_OFF)
    mk_srd(P, rDBG, sDBG, 256)
    mk_srd(P, rA2, sWS, A2_SIZE)
    mk_srd(P, rB2, sWS, B2_SIZE, B2_OFF)


def phase1_loop(P, cfg, role, tr):
    mf, frags, bars = role.mf, role.frags, role.bars
    N = len(mf)
    per = N // 20
    tok, left = {}, {}
    state = {"m0": None, "ka": None, "kb": None}
    barpos = lambda b: -1 if b < 0 else bars[b]
    role.t, role.nbar = -1, 0

    def unit(kind, idx, q, _a, need):
        m0, (kreg, kval), load = role.dma(kind, idx, q)
        preps = []
        if state["m0"] != m0:
            preps.append(lambda m0=m0: P(f"s_add_u32 m0, s{m0[0]}, {m0[1]}"))
            state["m0"] = m0
        key = "ka" if kreg == sKA else "kb"
        if state[key] != kval:
            preps.append(lambda: P(f"s_mov_b32 s{kreg}, {kval}"))
            state[key] = kval

        def f():
            tok[need] = load()
            left[need] -= 1
        return preps, f

    def now(u):
        preps, f = unit(*u)
        for p in preps:
            p()
        f()

    order = list(role.units)
    for u in order:
        left[u[4]] = left.get(u[4], 0) + 1
    timed = role.timed()

    def timed_now(lo, hi):
        for when, items in timed:
            if lo < when <= hi:
                for _, f in items:
                    f()
    timed_now(-9, -1)
    while order[0][4] < 0:
        now(order.pop(0))
    def warm():
        P("s_mov_b64 exec, 0")
        P(f"s_call_b64 s[{sRET}:{sRET + 1}], L_hop_{role.tag}")
        P("s_mov_b64 exec, -1")
    if cfg.warm == 1:
        warm()
    role.pre_barrier()
    if cfg.warm == 2:
        warm()
    timed_now(-1, -0.5)
    for _ in range(role.npre):
        assert order[0][3] < 0
        if cfg.fair0 and (_ == 0 or order[0][4] != lastneed):
            P("s_barrier")
        lastneed = order[0][4]
        now(order.pop(0))
    if cfg.fair0 > 1:
        P("s_barrier")
    timed_now(-0.5, -1e-9)
    if cfg.warm == 3:
        warm()
    tr.pt(P, 3)
    if cfg.warm:
        P(f"s_branch L_{role.tag}2")
        P(f"L_hop_{role.tag}:")
        for w in range(3):
            P(f"s_cmp_eq_u32 s{sW}, {w}")
            P(f"s_cbranch_scc1 L_chain_{role.tag}{w}")
        P(f"s_branch L_chain_{role.tag}3")
        P(f"L_{role.tag}2:")
    P.cut = len(P.lines)
    P.wait(vm=tok[-1], ds=P.nds)
    P("s_barrier")
    tr.pt(P, 4)

    slots = [[] for _ in range(N)]
    cap = [2] * N
    for p in bars:
        cap[p - 1] -= 2
    for s in range(20):
        quota = role.quota[min(s, len(role.quota) - 1)]
        extra = list(role.extra.get(s, []))
        T = quota + len(extra)
        if role.late.arrange(s + 0.5, True):
            T = role.tot if s < 19 else role.tot19
        nring, nx = 0, len(extra)
        for k in range(T):
            p = s * per + 1 + (k * (per - 1)) // T
            if s == 0 and cfg.burst0:
                nb = min(cfg.burst0, T)
                p = 2 + 3 * k if k < nb else 3 * nb + 1 + ((k - nb + 1) * (per - 2 - 3 * nb)) // (T - nb)
            if cfg.vmx and (p + 1 in bars or p + 2 in bars):
                p -= 2 if p + 1 in bars else 1
            t = p / per
            nxt = next((x for x, u in enumerate(order) if barpos(u[3]) < p), None)
            if nxt is not None and (not extra or (T - k > len(extra) and nring < -(-(T - nx) * (k + 1) // T))):
                preps, f = unit(*order.pop(nxt))
                nring += 1
            elif extra and (len(extra[0]) < 3 or extra[0][2] < p):
                m0, f = extra.pop(0)[:2]
                preps = []
                if m0:
                    preps = [lambda m0=m0: P(f"s_add_u32 m0, s{m0[0]}, {m0[1]}")]
                    state["m0"] = m0
            elif role.late.arrange((p - 1) / per, t < role.wlast):
                _, um0, preps, g = role.late.unit()
                if um0:
                    state["m0"] = None

                def f(g=g):
                    assert role.nbar > role.early_ok
                    g()
            else:
                continue
            for k_, pp in enumerate(preps):
                g = p - len(preps) + k_
                if g < 0 or slots[g]:
                    g = p - 1
                if slots[g]:
                    cap[g] -= 1
                slots[g].append(pp)
            slots[p].append(f)
            cap[p] -= 2 if cfg.vmx else 1
        assert not extra
    assert not order
    fixed = role.fixed()
    for when, items in timed:
        if when >= 0:
            g = max(1, int(when * per))
            fixed = merge(fixed, {g - 1: items[:-1], g: items[-1:]})
    for g, items in fixed.items():
        for c, f in items:
            slots[g].append(f)
            cap[g] -= c
    first, last, seq = {}, {}, []
    for n, (_, ids) in enumerate(mf):
        for i in ids:
            if i not in first:
                first[i] = n
                seq.append(i)
            last[i] = n
    for n in set(first.values()):
        if n:
            cap[n - 1] -= 1
    prev, rtok, head = {}, {}, []
    todo = []
    for i in seq:
        texts, key, vis, _ = frags[i]
        e = 0 if vis < 0 else bars[vis]
        if key in prev:
            e = max(e, last[prev[key]] + cfg.rdelay)
        prev[key] = i
        todo.append((e, first[i], i))
    cnt = [0] * N
    for e, fu, i in sorted(todo):
        for k, text in enumerate(frags[i][0]):
            def f(i=i, text=text):
                rtok[i] = P.ds(text)
            if fu < role.nhead:
                head.append(f)
                continue
            lim = fu - 7
            rel = frags[i][3]
            if rel is not None and rel < len(bars):
                lim = min(lim, bars[rel] - 6)
            assert e <= lim, (i, e, lim)
            rest = len(frags[i][0]) - 1 - k
            if k and cfg.rstride > 1 and e + cfg.rstride * (rest + 1) <= lim and i[0] == "w" and len(frags[i][0]) > 4:
                e += cfg.rstride
            g = next((g for g in range(e, lim + 1 - rest) if cap[g] > 0 and cnt[g] < cfg.rpg), None)
            if g is None:
                g = next((g for g in range(e, lim + 1) if cap[g] > 0 and cnt[g] < 2), None)
            if g is None:
                g = min(range(e, lim + 1), key=lambda g: (-cap[g], g))
            e = g
            slots[g].append(f)
            cap[g] -= 1
            cnt[g] += 1
    for f in head:
        f()
    sd = role.side
    for n, (text, ids) in enumerate(mf):
        role.t = n / per
        if n % (per * cfg.tevery) == 0:
            tr.pt(P, 8 + n // per)
        if n in bars:
            b = bars.index(n)
            assert left.get(b, 0) == 0, b
            need = max(tok.get(b, 0), role.barrier_needs(b) or 0)
            dsn = max([rtok[i] for i in frags if frags[i][3] == b] + [role.barrier_ds(b) or 0])
            P.wait(vm=need or None, ds=dsn or None)
            P("s_barrier")
            role.nbar += 1
            tr.flush(P, lazy=True)
        P.wait(ds=max(rtok[i] for i in ids))
        P(text)
        for f in slots[n]:
            f()
        b1 = role.side2.take(role.t, cap[n], not slots[n] and cap[n] == 2)
        had = hasattr(role.stats, "done")
        sd.take(role.t, b1 + (role.t < cfg.boost), not slots[n] and b1 == 2)
        if not had and hasattr(role.stats, "done"):
            print(type(role).__name__, "statistics stored at t =", round(role.t, 2), file=sys.stderr)
    assert not sd.q and not role.side2.q, len(sd.q)
    print(type(role).__name__, "weight loads left after the loop:", len(role.late.q), "W:", sum(u[1] == "W" for u in role.late.q), file=sys.stderr)
    tr.pt(P, 28)


def spread(items, lo, hi):
    nv = sum(1 for c, _ in items if c > 1)
    out, k = {}, 0
    for c, f in items:
        g = lo + 1 + (k * (hi - lo - 1)) // max(nv, 1)
        if c > 1:
            k += 1
        else:
            g -= 1
        out.setdefault(g, []).append((c, f))
    return out


def merge(*ds):
    out = {}
    for d in ds:
        for g, it in d.items():
            out.setdefault(g, []).extend(it)
    return out


class GLU:
    LB = 40960
    LA = [106496, 0]
    LR = 143360
    ACC = 64
    vAa, vBa, vRB, vRP, vST, vH, vRA, vRB2 = 5, 11, 15, 19, 24, 28, 54, 60
    vM = (24, 25, 26, 27, 34, 35)
    aRP = 160
    tag = "glu"
    nhead = 8

    def __init__(self, P, cfg):
        self.P, self.cfg = P, cfg
        self.quota, self.tot, self.npre, self.wlast = cfg.quota_glu, cfg.tot_glu, cfg.npre[0], cfg.wlast[0]
        self.tot19 = cfg.tot19
        self.stats = Stats(P, self.vST)
        self.poll = Poll(P, 48, 24, "glu", "g" if cfg.gather else "e")
        self.pollr = Poll(P, 58, 53, "glu", "r")
        self.side = Side(P)
        self.side2 = Side(P)
        self.plan()
        e = cfg.poll_glu + cfg.pchk + 0.15
        if not cfg.gather:
            e = min(p for p in self.bars if p > (e + 0.05) * 48) / 48
        bt = lambda h: max(e, self.bars[self.ge(h)] / 48)
        self.late = Late(P, [(e, "W", k) for k in range(17, 25)] + [(e, "R", k) for k in range(8)]
                         + [(bt(15), "W", k) for k in range(7, 11)] + [(bt(16), "W", k) for k in (3, 4, 5, 6, 11, 12, 13, 14, 15, 16)]
                         + [(bt(17), "W", k) for k in range(3)]
                         + [(19.6, "R", 10)] + [(20, "R", k) for k in (8, 9, 11)] + [(21, "R", 12), (22, "R", 13)], cut=cfg.defer)
        self.extra = {}
        self.early_ok = 999
        self.build_side()

    def cs(self, j):
        return (36, 40, 44, 48, 8, 12, 16, 20)[j]

    def plan(self):
        self.mf, self.frags, self.units = [], {}, []
        have = [h for h in range(19) if h % 2 or h < self.cfg.fine_glu or h > self.cfg.fine2_glu]
        self.bars = [48 * h + 24 for h in have] + [908, 957]
        le = lambda t: max([k for k, u in enumerate(have) if u <= t], default=-1)
        ge = lambda t: -1 if t < 0 else min(k for k, u in enumerate(have) if u >= t)
        self.le, self.ge = le, ge
        for h in range(20):
            S = h // 2
            if h % 2 == 0:
                self.units += [("A", S, q, ge(h - 4), le(h - 1)) for q in range(6)]
                for i in range(6):
                    self.frags["x", S, i] = ([f"ds_read_b128 {aq(8 * i + 4 * ks)}, v{self.vRA + 2 * (S % 2) + ks} offset:{i * 2048}"
                                              for ks in range(2)], ("x", i), le(h - 1), ge(h))
            self.units += [("B", h, q, ge(h - 5), le(min(h, 18) - 1)) for q in range(4)]
            for u in range(2):
                slot, pair = (h, 1 - u) if h < 18 else (18 + u, 19 - h)
                mat = slot % 2
                wr = lambda t, ks: 48 + 16 * u + 8 * t + 4 * ks
                reg, off = (self.vRB, (3 - slot % 5) * 16384) if slot % 5 < 4 else (self.vRB2, 0)
                self.frags["w", h, u] = ([f"ds_read_b64_tr_b16 {aq(wr(t, ks) + 2 * half, 2)}, v{reg + 2 * pair + t} "
                                          f"offset:{off + ks * 8192 + half * 1024}"
                                          for t in range(2) for ks in range(2) for half in range(2)], ("w", u),
                                         le(min(h, 18) - 1), ge(h) if h < 18 else None)
                for n, i in enumerate((5, 4, 3, 2, 1, 0)):
                    for t, ks in ((0, 0), (0, 1), (1, 1), (1, 0)):
                        fresh = S == 0 and ks == t
                        t ^= n & 1
                        d = vq(self.acc(4 * mat + 2 * pair + t, i))
                        self.mf.append((f"v_mfma_f32_16x16x32_bf16 {d}, {aq(wr(t, ks))}, {aq(8 * i + 4 * ks)}, {'0' if fresh else d}",
                                        [("w", h, u), ("x", S, i)]))

    def acc(self, j, i):
        return self.ACC + (j * 6 + i) * 4

    def prologue(self):
        P = self.P
        t0, t1, t2, t3 = 48, 49, 50, 51
        P(f"s_mul_i32 s{sT0}, s{sMT}, 188")
        P(f"v_lshrrev_b32 v{t0}, 3, v0")
        P(f"v_lshrrev_b32 v{t1}, 4, v0")
        P(f"v_xor_b32 v{t2}, v{t1}, v0")
        P(f"v_and_b32 v{t2}, 7, v{t2}")
        P(f"v_cmp_gt_u32 vcc, 28, v{t0}")
        P(f"v_add_u32 v{t0}, s{sT0}, v{t0}")
        P(f"v_mul_u32_u24 v{t0}, 1280, v{t0}")
        P(f"v_lshl_add_u32 v{self.vAa}, v{t2}, 4, v{t0}")
        for q in range(1, 6):
            P(f"v_add_u32 v{self.vAa + q}, {q * 32 * 1280}, v{self.vAa}")
        P(f"v_mov_b32 v{t3}, {OOB}")
        P(f"v_cndmask_b32 v{self.vAa + 5}, v{t3}, v{self.vAa + 5}, vcc")
        P(f"v_lshrrev_b32 v{t0}, 4, v1")
        P(f"v_lshlrev_b32 v{t1}, 1, v{t0}")
        P(f"v_xor_b32 v{t1}, v{t1}, v0")
        P(f"v_and_b32 v{t1}, 15, v{t1}")
        P(f"s_cmp_eq_u32 s{sNT}, 13")
        P(f"s_cselect_b32 s{sT2}, 8, 16")
        P(f"v_mul_u32_u24 v{t0}, 3456, v{t0}")
        P(f"s_mul_i32 s{sT1}, s{sW}, {16 * 3456}")
        P(f"s_lshl_b32 s{sT0}, s{sNT}, 8")
        P(f"s_add_u32 s{sT1}, s{sT1}, s{sT0}")
        for q in (0, 2):
            if q:
                P(f"v_xor_b32 v{t1}, 8, v{t1}")
                P(f"s_add_u32 s{sT1}, s{sT1}, {8 * 3456 - 2048}")
            P(f"v_cmp_gt_u32 vcc, s{sT2}, v{t1}")
            P(f"v_lshlrev_b32 v{t2}, 4, v{t1}")
            P(f"v_add3_u32 v{t2}, v{t2}, v{t0}, s{sT1}")
            P(f"v_cndmask_b32 v{self.vBa + q}, v{t3}, v{t2}, vcc")
            P(f"v_add_u32 v{self.vBa + q + 1}, {4 * 3456 - 1024}, v{self.vBa + q}")
        P(f"s_lshl_b32 s{sM0B}, s{sW}, 12")
        P(f"s_cmp_eq_u32 s{sW}, 3")
        P(f"s_cselect_b32 s{sEXA + 1}, 0x00ffffff, -1")
        P(f"s_mov_b32 s{sEXA}, -1")
        self.stats.addr(P)
        for r, n in ((rX, X_BYTES), (rW0, 640 * 3456), (rW1, 640 * 3456), (rOUT, 640 * 3456)):
            P(f"s_mov_b32 s{r + 2}, {n}")
            P(f"s_mov_b32 s{r + 3}, 0x20000")
        if any(w <= -1 for w, _ in self.cfg.pf):
            self.pf_setup(P)
        P(f"s_cmp_lt_u32 s{sW}, 2")
        P("s_waitcnt lgkmcnt(0)")
        P(f"s_mov_b64 s[{rX}:{rX + 1}], s[{sX}:{sX + 1}]")
        P(f"s_cselect_b64 s[{rOUT}:{rOUT + 1}], s[{sWG}:{sWG + 1}], s[{sWU}:{sWU + 1}]")
        P(f"s_mov_b64 s[{rW0}:{rW0 + 1}], s[{sWG}:{sWG + 1}]")
        P(f"s_mov_b64 s[{rW1}:{rW1 + 1}], s[{sWU}:{sWU + 1}]")

    def pre_barrier(self):
        P = self.P
        t0, t1, t2, t3 = 48, 49, 50, 51
        if not any(w <= -1 for w, _ in self.cfg.pf):
            self.pf_setup(P)
        for k in range(4):
            P(f"v_mov_b32 v{60 + k}, 0x3f803f80")
        P(f"v_and_b32 v{t0}, 7, v0")
        P(f"s_and_b32 s{sT0}, s{sW}, 1")
        P(f"s_mul_i32 s{sT0}, s{sT0}, {self.LA[0]}")
        P(f"s_add_u32 s{sT0}, s{sT0}, {191 * 128}")
        P(f"v_lshl_add_u32 v{t0}, v{t0}, 4, s{sT0}")
        P.ds(f"ds_write_b128 v{t0}, {vq(60)}")
        P(f"v_and_b32 v{t0}, 15, v0")
        P(f"v_bfe_u32 v{t1}, v0, 4, 2")
        P(f"v_lshrrev_b32 v{t2}, 1, v{t0}")
        P(f"v_xor_b32 v{t2}, v{t2}, v{t1}")
        P(f"v_lshlrev_b32 v{t2}, 4, v{t2}")
        P(f"v_lshl_add_u32 v{t2}, v{t0}, 7, v{t2}")
        P(f"s_lshr_b32 s{sT0}, s{sW}, 1")
        P(f"s_mul_i32 s{sT0}, s{sT0}, 12288")
        P(f"v_add_u32 v{self.vRA + 2}, s{sT0}, v{t2}")
        P(f"v_xor_b32 v{self.vRA + 3}, 64, v{self.vRA + 2}")
        P(f"v_add_u32 v{self.vRA}, {self.LA[0]}, v{self.vRA + 2}")
        P(f"v_add_u32 v{self.vRA + 1}, {self.LA[0]}, v{self.vRA + 3}")
        P(f"v_bfe_u32 v{t0}, v0, 2, 2")
        P(f"v_lshl_add_u32 v{t2}, v{t1}, 3, v{t0}")
        P(f"v_and_b32 v{t3}, 3, v0")
        P(f"v_lshlrev_b32 v{t3}, 3, v{t3}")
        P(f"v_lshl_add_u32 v{t2}, v{t2}, 8, v{t3}")
        P(f"v_add_u32 v{t2}, {self.LB}, v{t2}")
        P(f"v_bfe_u32 v{t3}, v0, 2, 3")
        P(f"s_and_b32 s{sT0}, s{sW}, 1")
        P(f"s_lshl_b32 s{sT0}, s{sT0}, 2")
        P(f"v_xor_b32 v{t3}, s{sT0}, v{t3}")
        P(f"v_lshl_add_u32 v{self.vRB}, v{t3}, 5, v{t2}")
        for k in range(1, 4):
            P(f"v_xor_b32 v{self.vRB + k}, {32 * k}, v{self.vRB}")
        for k in range(4):
            P(f"v_subrev_u32 v{self.vRB2 + k}, 16384, v{self.vRB + k}")
        for it in getattr(self, "setup", []):
            P(it)

    def pf_setup(self, P):
        t0, t1, t3 = 48, 49, 51
        divc(P, t0, 1, 3)
        P(f"v_mul_u32_u24 v{t0}, 29, v{t0}")
        P(f"s_mul_i32 s{sT0}, s{sMT}, 3")
        P(f"s_min_u32 s{sT0}, s{sT0}, 29")
        P(f"v_add3_u32 v{t0}, v{t0}, v1, s{sT0}")
        P(f"v_mul_u32_u24 v{t0}, 3456, v{t0}")
        P(f"v_cmp_gt_u32 vcc, {3 * self.cfg.pfn}, v1")
        P(f"s_and_b32 s{sT0}, s{sW}, 1")
        P(f"s_lshl1_add_u32 s{sT0}, s{sNT}, s{sT0}")
        P(f"s_min_u32 s{sT0}, s{sT0}, 26")
        P(f"s_lshl_b32 s{sT0}, s{sT0}, 7")
        P(f"v_add_u32 v{t0}, s{sT0}, v{t0}")
        P(f"v_cndmask_b32 v52, v{t3}, v{t0}, vcc")

    def timed(self):
        P, cfg = self.P, self.cfg
        out = [(w, [(1, lambda f=f: P(f"s_mov_b32 s{sT3}, {f * 32 * 3456}")),
                    (1, lambda: P.vm(f"buffer_load_dword a255, v52, {srd(rOUT)}, s{sT3} offen"))]) for w, f in cfg.pf]
        out += [(w, [(1, lambda k=k: self.stats.load(k))]) for k, w in enumerate(cfg.st)]
        return out

    def build_side(self):
        P, sd, s2, cfg = self.P, self.side, self.side2, self.cfg
        t0, t1, t2, t3 = 48, 49, 50, 51
        R = Rec()
        R(f"s_mul_i32 s{sM0R}, s{sW}, 5120")
        R(f"s_add_u32 s{sM0R}, s{sM0R}, {self.LR}")
        R(f"s_mul_i32 s{sT0}, s{sMT}, 14")
        R(f"s_add_u32 s{sT0}, s{sT0}, s{sNT}")
        R(f"s_lshl_b32 s{sFLAG}, s{sT0}, 7")
        R(f"s_add_u32 s{sFLAG}, s{sFLAG}, {FLAG_OFF}")
        R(f"s_min_u32 s{sT0}, s{sT0}, 147")
        R(f"s_and_b32 s{sT1}, s{sT0}, 1")
        R(f"s_lshl2_add_u32 s{sT1}, s{sT1}, s{sW}")
        R(f"s_lshr_b32 s{sT0}, s{sT0}, 1")
        R(f"s_mul_i32 s{sRP}, s{sT1}, {B2_NT}")
        R(f"s_mul_i32 s{sT2}, s{sT0}, 5120")
        R(f"s_add_u32 s{sRP}, s{sRP}, s{sT2}")
        R(f"s_mul_i32 s{sT1}, s{sT1}, 160")
        sB, sC2, sU = sT2, sMK1, sMK1 + 1
        R(f"s_lshl_b32 s{sB}, s{sT0}, 5")
        R(f"s_sub_u32 s{sB}, s{sB}, 640")
        R(f"s_mul_i32 s{sU}, s{sT0}, 160")
        R(f"s_sub_u32 s{sU}, s{sU}, {160 * 16 - 16}")
        R(f"s_mov_b32 s{rWR + 2}, {1728 * 1280}")
        R(f"s_mov_b32 s{rWR + 3}, 0x20000")
        R(f"s_cmp_lt_u32 s{sT0}, 20")
        R(f"s_cselect_b32 s{sB}, s{sU}, s{sB}")
        R(f"s_cselect_b32 s{sC2}, 20, 4")
        R(f"s_cmp_lt_u32 s{sT0}, 20")
        R(f"s_cselect_b64 s[{rWR}:{rWR + 1}], s[{sWO}:{sWO + 1}], s[{sWD}:{sWD + 1}]")
        R(f"s_cmov_b32 s{rWR + 2}, {640 * 1280}")
        R(f"s_lshl_b32 s{sRC1}, s{sC2}, 2")
        R(f"s_mul_i32 s{sU}, s{sT0}, 40")
        R(f"s_cmp_lt_u32 s{sT0}, 16")
        R(f"s_cselect_b32 s{sB}, s{sU}, s{sB}")
        R(f"s_cmov_b32 s{sC2}, 4")
        R(f"s_cmov_b32 s{sRC1}, 20")
        for q in range(5):
            R(f"v_add_u32 v{t0}, {64 * q}, v1")
            divc(R, t1, t0, 10)
            R(f"v_mul_u32_u24 v{t2}, 10, v{t1}")
            R(f"v_sub_u32 v{t0}, v{t0}, v{t2}")
            R(f"v_lshrrev_b32 v{t2}, 4, v{t1}")
            R(f"v_mul_u32_u24 v{t2}, s{sRC1}, v{t2}")
            R(f"v_bfe_u32 v{t3}, v{t1}, 2, 2")
            R(f"v_mad_u32_u24 v{t2}, v{t3}, s{sC2}, v{t2}")
            R(f"v_and_b32 v{t1}, 3, v{t1}")
            R(f"v_add3_u32 v{t2}, v{t2}, v{t1}, s{sB}")
            R(f"v_mul_u32_u24 v{t2}, 1280, v{t2}")
            R(f"v_lshlrev_b32 v{t0}, 4, v{t0}")
            R(f"v_add3_u32 v{self.vRP + q}, v{t0}, v{t2}, s{sT1}")
        if cfg.early_setup:
            self.setup, self.rp_ready = R.items, True
        else:
            R.into(sd, 0)
        sd.f(0, lambda: setattr(self, "rp_ready", True), 0)
        R = Rec()
        R(f"v_lshrrev_b32 v{t0}, 2, v1")
        R(f"v_mul_u32_u24 v{t0}, 160, v{t0}")
        R(f"v_add_u32 v{t0}, s{sM0R}, v{t0}")
        R(f"v_and_b32 v{t1}, 3, v1")
        R(f"v_lshl_add_u32 v58, v{t1}, 4, v{t0}")
        R(f"v_lshl_add_u32 v59, v{t1}, 3, v{t0}")
        common_srds(R)
        tile2_setup(R, cfg)
        R.into(sd, 0)
        sd.f(0, lambda: setattr(self, "srd_ready", True), 0)
        self.stats.queue(sd, max(cfg.st) + cfg.stw)
        self.pollr.issue(sd, 0)
        for q in range(5):
            def f(q=q):
                assert self.rp_ready
                self.tokR = P.vm(f"buffer_load_dwordx4 v{self.vRP + q}, {srd(rWR)}, 0 offen lds")
            self.extra.setdefault(cfg.rpd[q], []).append(((sM0R, q * 1024), f))

        def w():
            assert self.srd_ready and self.t > max(cfg.rpd) + 1
            P.wait(vm=self.tokR)
        s2.f(cfg.rpr, w)
        for j in range(5):
            for half in range(2):
                def f(j=j, half=half):
                    off = half * 2560 + ((j >> 1) * 64 + (j & 1) * 8 if j < 4 else 128)
                    self.tkR = (P.ds(f"ds_read_b64_tr_b16 {aq(self.aRP + 4 * j + 2 * half, 2)}, v{58 if j < 4 else 59} offset:{off}"), j, half)
                s2.f(cfg.rpr, f)
        for j in range(5):
            def f(j=j):
                assert self.tkR[1:] == (4, 1)
                P.wait(ds=self.tkR[0])
                off = f" offset:{j * 1024}" if 0 < j < 4 else ""
                self.tokRS = P.vm(f"buffer_store_dwordx4 {aq(self.aRP + 4 * j)}, v{vB2 + (j >> 2)}, {srd(rB2)}, s{sRP} offen{off} sc1")
            self.extra.setdefault(cfg.rps[j], []).append((None, f))
        self.SIG = self.ge(cfg.sig_glu)
        assert cfg.sig_glu > max(cfg.rps)
        self.pollr.check(sd, self.bars[self.SIG] / 48 - 0.4)
        early_signal(sd, self.bars[self.SIG] / 48, P, t0, t1)
        assert cfg.poll_glu + 1 > max([w for w, _ in cfg.pf] + [0])
        self.poll.issue(sd, cfg.poll_glu)
        self.poll.check(sd, cfg.poll_glu + cfg.pchk)
        sd.f(0, lambda: setattr(self, "early_ok", -1 if self.cfg.gather else self.nbar), 0)
        R = Rec()
        R(f"s_mul_i32 s{sT0}, s{sMT}, 188")
        R(f"s_lshr_b32 s{sT1}, s{sW}, 1")
        R(f"s_mul_i32 s{sT1}, s{sT1}, 96")
        R(f"s_add_u32 s{sT2}, s{sT0}, 188")
        R(f"s_min_u32 s{sT2}, s{sT2}, 2048")
        R(f"s_add_u32 s{sT0}, s{sT0}, s{sT1}")
        R(f"s_and_b32 s{sT1}, s{sW}, 1")
        R(f"s_add_u32 s{sT1}, s{sT1}, s{sNT}")
        R(f"s_cmp_eq_u32 s{sT1}, 14")
        R(f"s_cselect_b32 s{sT2}, 0, s{sT2}")
        R(f"s_mov_b32 s{sT1}, {A2_MT}")
        u0, u1 = 52, 53
        R(f"v_and_b32 v{u0}, 48, v0")
        R(f"v_mov_b32 v{u1}, {OOB}")
        R(f"v_and_b32 v{t0}, 15, v0")
        R(f"v_add_u32 v{t0}, s{sT0}, v{t0}")
        for i in range(6):
            if i:
                R(f"v_add_u32 v{t0}, 16, v{t0}")
            R(f"v_cmp_gt_u32 vcc, s{sT2}, v{t0}")
            R(f"v_lshrrev_b32 v{t1}, 6, v{t0}")
            R(f"v_mul_lo_u32 v{t1}, v{t1}, s{sT1}")
            R(f"v_bfe_u32 v{t2}, v{t0}, 4, 2")
            R(f"v_lshl_add_u32 v{t1}, v{t2}, 10, v{t1}")
            R(f"v_and_or_b32 v{t2}, v{t0}, 15, v{u0}")
            R(f"v_lshl_add_u32 v{t1}, v{t2}, 4, v{t1}")
            R(f"v_cndmask_b32 v{self.vH + i}, v{u1}, v{t1}, vcc")
            R(f"v_min_u32 v{t1}, 2047, v{t0}")
            R(f"v_lshlrev_b32 v{self.vM[i]}, 2, v{t1}")
        R.into(sd, 0)
        sd.f(0, lambda: setattr(self, "m_ok", True), 0)
        b2_touch(self, sd, t0, t1)
        if cfg.xearly:
            R = Rec()
            xg_addr(R, self.vRP, t0, sT0, sM0R)
            R.into(sd, 0)
            sd.f(0, lambda: setattr(self, "x_ok", True), 0)
            for q, (_, g) in enumerate(resid_units(P, {}, reg=self.vRP)):
                def f(g=g):
                    assert self.x_ok and self.nbar > self.ge(17)
                    g()
                self.extra.setdefault(17, []).append(((sM0R, 0), f, self.bars[self.ge(17)] + 1))
        for i in range(6):
            def f(i=i):
                assert self.early_ok < self.nbar and self.m_ok
                self.tokM = P.vm(f"buffer_load_dword v{self.vM[i]}, v{self.vM[i]}, {srd(rST)}, 0 offen sc1")
            self.extra.setdefault(15 + i // 2, []).append((None, f))
        R = Rec()
        R(f"s_and_b32 s{sT0}, s{sW}, 1")
        R(f"s_lshl_b32 s{sT1}, s{sT0}, 9")
        R(f"v_and_b32 v6, 48, v0")
        R(f"v_add_u32 v6, s{sT1}, v6")
        R(f"s_lshl1_add_u32 s{sT0}, s{sNT}, s{sT0}")
        R(f"s_lshl_b32 s{sT0}, s{sT0}, 13")
        R(f"s_add_u32 s{sT0}, s{sT0}, {20 * 4096}")
        R(f"s_add_u32 s{sT1}, s{sT0}, 4096")
        R(f"s_cmp_ge_u32 s{sW}, 2")
        R(f"s_cselect_b32 s{sMK0}, 0x80008000, 0")
        R(f"s_mov_b32 s{sMK0 + 1}, s{sMK0}")
        R(f"v_lshlrev_b32 v5, 4, v0")
        R(f"v_add_u32 v5, 4096, v5")
        R(f"v_cndmask_b32 v5, v5, v6, s[{sMK0}:{sMK0 + 1}]")
        R.into(sd, 17)
        sd.f(17, lambda: setattr(self, "epi_ok", True), 0)

    def dma(self, kind, idx, q):
        P = self.P
        if kind == "A":
            def load():
                if q == 5:
                    P(f"s_mov_b64 exec, s[{sEXA}:{sEXA + 1}]")
                t = P.vm(f"buffer_load_dwordx4 v{self.vAa + q}, {srd(rX)}, s{sKA} offen lds")
                if q == 5:
                    P("s_mov_b64 exec, -1")
                assert self.t < 17
                return t
            return (sM0A, self.LA[idx % 2] + q * 4096), (sKA, idx * 128), load
        off = f" offset:{q * 1024}" if q else ""
        return ((sM0B, self.LB + (3 - idx % 5) * 16384), (sKB, (idx // 2) * 64 * 3456),
                lambda: P.vm(f"buffer_load_dwordx4 v{self.vBa + q}, {srd(rW1 if idx % 2 else rW0)}, s{sKB} offen{off} lds"))

    def barrier_needs(self, b):
        return max(self.stats.done, self.tokRS) if b == self.SIG else None

    def barrier_ds(self, b):
        return self.tkw if b >= len(self.bars) - 2 else None

    def fixed(self):
        P = self.P
        fx = {}
        for g, j in ((889, 2), (893, 3), (898, 6), (901, 7), (925, 0), (929, 1), (946, 4), (949, 5)):
            def wr(j=j):
                assert self.epi_ok
                self.tkw = P.ds(f"ds_write_b128 v5, {vq(self.acc(j, 5))} offset:{j * 64}")
            fx[g] = [(2, wr)]
        self.tkc = {}
        for g, j in ((908, 2), (909, 6), (910, 3), (911, 7), (957, 0), (957, 4), (958, 1), (958, 5)):
            def f(j=j):
                self.tkc[j] = P.ds(f"ds_read_b128 {vq(self.cs(j))}, v6 offset:{j * 64}")
            fx.setdefault(g, []).append((1, f))
        fx[903] = [(1, lambda: P.wait(vm=self.tokM))]
        for i in range(6):
            fx.setdefault(903 + i // 2, []).append((1, lambda i=i: P(f"v_xor_b32 v{self.vM[i]}, 0x80000000, v{self.vM[i]}")))
        ops = []
        for i in (5, 4, 3, 2, 1, 0)[:self.cfg.nov]:
            ops += self.block(1, i, False)
        lo, hi = 916, 960
        for k, f in enumerate(ops):
            fx.setdefault(lo + (k * (hi - lo)) // len(ops), []).append((1, f))
        return fx

    def block(self, p, i, packed):
        P = self.P
        out = []
        e = lambda t: out.append(lambda: P(t))
        mp, sel = self.vM[i & ~1], i & 1
        mods = f"op_sel:[0,{sel},0] op_sel_hi:[1,{sel},1]"
        dst = self.acc(2 * p, i)
        for jj in (2 * p, 2 * p + 1):
            g, u = self.acc(jj, i), self.acc(jj + 4, i)
            out.append(lambda jj=jj: P.wait(ds=self.tkc[jj + 4]))
            for a, c in ((g, self.cs(jj)), (u, self.cs(jj + 4))):
                if packed:
                    for h in (0, 2):
                        e(f"v_pk_fma_f32 {vq(a + h, 2)}, {vq(c + h, 2)}, {vq(mp, 2)}, {vq(a + h, 2)} {mods}")
                else:
                    for r in range(4):
                        e(f"v_fmac_f32 v{a + r}, v{c + r}, v{self.vM[i]}")
            for r in range(4):
                e(f"v_max_f32 v{g + r}, 0, v{g + r}")
            if packed:
                for h in (0, 2):
                    e(f"v_pk_mul_f32 {vq(u + h, 2)}, {vq(u + h, 2)}, {vq(g + h, 2)}")
            else:
                for r in range(4):
                    e(f"v_mul_f32 v{u + r}, v{u + r}, v{g + r}")
            for h in (0, 2):
                e(f"v_cvt_pk_bf16_f32 v{dst + 2 * (jj & 1) + h // 2}, v{u + h}, v{u + h + 1}")

        def st():
            self.tokS = P.vm(f"buffer_store_dwordx4 {vq(dst)}, v{self.vH + i}, {srd(rA2)}, s{sT0 + p} offen sc1")
        return out + [st]

    def epilogue(self, tr):
        P, cfg = self.P, self.cfg
        todo = [(p, i) for p in (1, 0) for i in (5, 4, 3, 2, 1, 0)][cfg.nov:]
        for k, (p, i) in enumerate(todo):
            for f in self.block(p, i, True):
                f()
            self.late.emit(((k + 1) * cfg.nepi_glu) // len(todo) - (k * cfg.nepi_glu) // len(todo), 20)
        return cfg.n1_glu


class QKV:
    LB = 49152
    LA = [0, 24576]
    LS = 159744
    vRB2 = 13
    ACC = 76
    vAa, vBa, vRA, vRB, vSEL, vST, vM1, vR1, vTK, vT = 5, 70, 11, 15, 17, 22, 46, 50, 54, 60
    BIAS = 12
    tag = "qkv"
    nhead = 8

    def __init__(self, P, cfg):
        self.P, self.cfg = P, cfg
        self.quota, self.tot, self.npre, self.wlast = cfg.quota_qkv, cfg.tot_qkv, cfg.npre[1], cfg.wlast[1]
        self.tot19 = cfg.tot_qkv
        self.pfs = cfg.pf if cfg.pfq is None else cfg.pfq
        self.stats = Stats(P, self.vST)
        self.poll = Poll(P, 60, 22, "qkv", "g" if cfg.gather else "e")
        self.pollr = Poll(P, 73, 75, "qkv", "r")
        self.side = Side(P)
        self.side2 = Side(P)
        self.plan()
        e = cfg.poll_qkv + cfg.pchk + 0.25
        if not cfg.gather:
            e = min(p for p in self.bars if p > e * 45) / 45
        wt = max(e, self.bars[self.le(23)] / 45)
        assert cfg.wq <= 9
        self.late = Late(P, [(e, "R", k) for k in range(8)] + [(wt if k < 6 + cfg.wq else 20, "W", k) for k in range(6, 25)]
                         + [(20, "R", k) for k in (8, 9, 10, 11)] + [(20, "W", k) for k in range(6)]
                         + [(21, "R", 12), (22, "R", 13)], rot=cfg.rot, cut=cfg.deferq)
        self.extra = {}
        self.early_ok = 999
        self.build_side()

    def plan(self):
        self.mf, self.frags, self.units = [], {}, []
        bq = self.cfg.bq
        have = [t for t in range(30) if t % 3 == 2 or t < self.cfg.fine_qkv or t == 28]
        self.bars = [30 * t + bq + (3 if t == 28 else 0) for t in have]
        le = lambda t: max([k for k, u in enumerate(have) if u <= t], default=-1)
        ge = lambda t: -1 if t < 0 else min(k for k, u in enumerate(have) if u >= t)
        self.le = le
        n = 0
        for t in range(30):
            S, sec = t // 3, 2 - t % 3
            xr = lambda G, ks: 24 * (S % 2) + 8 * G + 4 * ks
            vis = le(t - 1)
            if t % 3 == 0:
                self.units += [("A", S, q, ge(t - 6), vis) for q in range(6)]
                for G in range(3):
                    self.frags["x", S, G] = ([f"ds_read_b128 {aq(xr(G, ks))}, v{self.vRA + ks} offset:{self.LA[S % 2] + G * 2048}"
                                              for ks in range(2)], ("x", S % 2, G), vis, ge(t))
            self.units += [("B", t, q, ge(t - 9), vis) for q in range(3)]
            for i in range(5):
                wr = lambda ks: 48 + 8 * i + 4 * ks
                reg = (self.vRB2 if t % 9 >= 5 else self.vRB) + (i == 4)
                self.frags["w", t, i] = ([f"ds_read_b64_tr_b16 {aq(wr(ks) + 2 * half, 2)}, v{reg} "
                                          f"offset:{(t % 9 % 5) * 12288 + ks * 5632 + half * 640 + (i * 40 if i < 4 else 0)}"
                                          for ks in range(2) for half in range(2)], ("w", i), vis, ge(t))
                for G in ((0, 1, 2) if (5 * t + i) % 2 == 0 else (2, 1, 0)):
                    for kk in range(2):
                        ks = kk ^ (n & 1)
                        d = vq(self.acc(sec, i, G))
                        w, x = aq(wr(ks)), aq(xr(G, ks))
                        a, b = (w, x) if sec < 2 else (x, w)
                        self.mf.append((f"v_mfma_f32_16x16x32_bf16 {d}, {a}, {b}, {d if (S or kk) else '0'}",
                                        [("w", t, i), ("x", S, G)]))
                    n += 1

    def acc(self, sec, i, G):
        return self.ACC + ((sec * 5 + i) * 3 + G) * 4

    def prologue(self):
        P = self.P
        t0, t1, t2, t3 = 60, 61, 62, 63
        P(f"s_mul_i32 s{sT0}, s{sMT}, 176")
        P(f"s_sub_u32 s{sT0}, s{sT0}, 16")
        P(f"v_lshrrev_b32 v{t0}, 3, v0")
        P(f"v_lshrrev_b32 v{t1}, 4, v0")
        P(f"v_xor_b32 v{t1}, v{t1}, v0")
        P(f"v_and_b32 v{t1}, 7, v{t1}")
        P(f"v_add_u32 v{t2}, s{sT0}, v{t0}")
        P(f"v_cmp_le_i32 vcc, 0, v{t2}")
        P(f"v_mul_i32_i24 v{t0}, 1280, v{t2}")
        P(f"v_lshl_add_u32 v{self.vAa}, v{t1}, 4, v{t0}")
        for q in range(1, 6):
            P(f"v_add_u32 v{self.vAa + q}, {q * 32 * 1280}, v{self.vAa}")
        P(f"v_mov_b32 v{t3}, {OOB}")
        P(f"v_cndmask_b32 v{self.vAa}, v{t3}, v{self.vAa}, vcc")
        P(f"s_mul_i32 s{sT0}, s{sNT}, 160")
        P(f"s_mul_i32 s{sT1}, s{sW}, 192")
        for q in range(3):
            if q:
                P(f"s_add_u32 s{sT1}, s{sT1}, 64")
                P(f"s_sub_u32 s{sT0}, s{sT0}, 1024")
            P(f"v_add_u32 v{t0}, s{sT1}, v1")
            divc(P, t1, t0, 88)
            P(f"v_mul_u32_u24 v{t2}, 88, v{t1}")
            if q == 2:
                P(f"v_cmp_gt_u32 s[{sMK0}:{sMK0 + 1}], 8, v{t1}")
            P(f"v_sub_u32 v{t0}, v{t0}, v{t2}")
            P(f"v_cmp_gt_u32 vcc, 80, v{t0}")
            divc(P, t2, t0, 10)
            P(f"v_mul_u32_u24 v{t1}, {8 * 3840}, v{t1}")
            P(f"v_mul_u32_u24 v{t2}, {3840 - 160}, v{t2}")
            P(f"v_lshl_add_u32 v{t1}, v{t0}, 4, v{t1}")
            P(f"v_add3_u32 v{t1}, v{t1}, v{t2}, s{sT0}")
            P(f"v_cndmask_b32 v{self.vBa + q}, v{t3}, v{t1}, vcc")
        P(f"v_cndmask_b32 v{self.vBa + 2}, v{t3}, v{self.vBa + 2}, s[{sMK0}:{sMK0 + 1}]")
        P(f"s_mul_i32 s{sM0B}, s{sW}, 3072")
        P(f"s_cmp_eq_u32 s{sW}, 0")
        P(f"s_cselect_b32 s{sEXA}, 0xffffff00, -1")
        P(f"s_mov_b32 s{sEXA + 1}, -1")
        if any(w <= -1 for w, _ in self.pfs):
            self.pf_setup(P)
        self.stats.addr(P)
        for r, n in ((rX, X_BYTES), (rW0, 640 * 3840)):
            P(f"s_mov_b32 s{r + 2}, {n}")
            P(f"s_mov_b32 s{r + 3}, 0x20000")
        P("s_waitcnt lgkmcnt(0)")
        P(f"s_mov_b64 s[{rW0}:{rW0 + 1}], s[{sWQKV}:{sWQKV + 1}]")
        P(f"s_mov_b64 s[{rX}:{rX + 1}], s[{sX}:{sX + 1}]")

    @staticmethod
    def masks():
        par = cur0 = cur1 = 0
        for l in range(64):
            q, g = l & 15, l >> 4
            if q & 1:
                par |= 1 << l
            if 4 * g + (q & 1) <= q:
                cur0 |= 1 << l
            if 4 * g + 2 + (q & 1) <= q:
                cur1 |= 1 << l
        return par, cur0, cur1

    def pre_barrier(self):
        P = self.P
        t0, t1, t2, t3 = 60, 61, 62, 63
        if not any(w <= -1 for w, _ in self.pfs):
            self.pf_setup(P)
        for k in range(4):
            P(f"v_mov_b32 v{64 + k}, 0x3f803f80")
        P(f"v_and_b32 v{t0}, 7, v0")
        P(f"s_and_b32 s{sT0}, s{sW}, 1")
        P(f"s_mul_i32 s{sT0}, s{sT0}, {self.LA[1]}")
        P(f"v_lshl_add_u32 v{t0}, v{t0}, 4, s{sT0}")
        P.ds(f"ds_write_b128 v{t0}, {vq(64)}")
        P(f"v_and_b32 v{t0}, 15, v0")
        P(f"v_bfe_u32 v{t1}, v0, 4, 2")
        P(f"v_lshrrev_b32 v{t2}, 1, v{t0}")
        P(f"v_xor_b32 v{t2}, v{t2}, v{t1}")
        P(f"v_lshlrev_b32 v{t2}, 4, v{t2}")
        P(f"v_lshl_add_u32 v{t2}, v{t0}, 7, v{t2}")
        P(f"s_mul_i32 s{sT0}, s{sW}, 6144")
        P(f"v_add_u32 v{self.vRA}, s{sT0}, v{t2}")
        P(f"v_xor_b32 v{self.vRA + 1}, 64, v{self.vRA}")
        P(f"v_mul_u32_u24 v{t2}, 1408, v{t1}")
        P(f"v_bfe_u32 v{t3}, v0, 2, 2")
        P(f"v_mul_u32_u24 v{t3}, 160, v{t3}")
        P(f"v_add_u32 v{t2}, v{t2}, v{t3}")
        P(f"v_add_u32 v{t2}, {self.LB}, v{t2}")
        P(f"v_and_b32 v{t3}, 3, v0")
        P(f"v_lshl_add_u32 v{self.vRB}, v{t3}, 3, v{t2}")
        P(f"v_mul_u32_u24 v{t3}, 40, v{t3}")
        P(f"v_add3_u32 v{self.vRB + 1}, v{t2}, v{t3}, 32")
        for k in range(2):
            P(f"v_add_u32 v{self.vRB2 + k}, {5 * 12288}, v{self.vRB + k}")

    def pf_setup(self, P):
        t0, t1, t2 = 60, 61, 62
        P(f"s_lshl_b32 s{sT0}, s{sMT}, 2")
        P(f"s_add_u32 s{sT0}, s{sT0}, s{sW}")
        P(f"s_lshl_b32 s{sT0}, s{sT0}, 4")
        P(f"s_add_u32 s{sT0}, s{sT0}, s{sNT}")
        P(f"s_mul_i32 s{sT0}, s{sT0}, 160")
        P(f"v_cmp_gt_u32 vcc, {4 * self.cfg.pfnq}, v1")
        P(f"v_lshrrev_b32 v{t0}, 2, v1")
        P(f"v_mul_u32_u24 v{t0}, {32 * 3840}, v{t0}")
        P(f"v_and_b32 v{t1}, 2, v1")
        P(f"v_mul_u32_u24 v{t1}, 640, v{t1}")
        P(f"v_and_b32 v{t2}, 1, v1")
        P(f"v_mul_u32_u24 v{t2}, 156, v{t2}")
        P(f"v_add3_u32 v{t0}, v{t0}, v{t1}, v{t2}")
        P(f"v_add_u32 v{t0}, s{sT0}, v{t0}")
        P(f"v_cndmask_b32 v74, v63, v{t0}, vcc")

    def timed(self):
        P, cfg = self.P, self.cfg
        out = [(w, [(1, lambda f=f: P(f"s_mov_b32 s{sT3}, {f * 32 * 3840}")),
                    (1, lambda: P.vm(f"buffer_load_dword a255, v74, {srd(rW0)}, s{sT3} offen"))]) for w, f in self.pfs]
        out += [(w, [(1, lambda k=k: self.stats.load(k))]) for k, w in enumerate(cfg.st)]
        return out

    def build_side(self):
        P, sd = self.P, self.side
        t0, t1, t2, t3 = 60, 61, 62, 63
        R = Rec()
        common_srds(R)
        R(f"s_lshl3_add_u32 s{sFLAG}, s{sMT}, s{sNT}")
        R(f"s_lshl_b32 s{sFLAG}, s{sFLAG}, 7")
        R(f"s_add_u32 s{sFLAG}, s{sFLAG}, {FLAG_OFF + 160 * 128}")
        R.into(sd, 0)
        self.stats.queue(sd, max(self.cfg.st) + self.cfg.stw)
        self.pollr.issue(sd, 0)
        self.SIG = self.le(self.cfg.sig_qkv)
        R = Rec()
        R(f"v_and_b32 v{t0}, 15, v0")
        R(f"v_bfe_u32 v{t1}, v0, 4, 2")
        R(f"s_mul_i32 s{sT0}, s{sMT}, 176")
        R(f"s_mul_i32 s{sT1}, s{sW}, 48")
        R(f"s_add_u32 s{sT0}, s{sT0}, s{sT1}")
        R(f"s_sub_u32 s{sT0}, s{sT0}, 16")
        R(f"v_add_u32 v64, s{sT0}, v1")
        R(f"v_max_i32 v64, 0, v64")
        R(f"v_min_i32 v64, 2047, v64")
        R(f"v_lshlrev_b32 v64, 2, v64")
        R(f"s_lshl_b32 s{sM0R}, s{sW}, 9")
        R(f"s_add_u32 s{sM0R}, s{sM0R}, {self.LS}")
        R(f"v_lshl_add_u32 v65, v{t0}, 2, s{sM0R}")
        R(f"v_lshl_add_u32 v66, v{t1}, 4, s{sM0R}")
        par, cur0, cur1 = self.masks()
        smask(R, sMK0, par)
        smask(R, sMK1, cur0)
        smask(R, sMK2, cur1)
        for h in range(4):
            smask(R, sHM + 2 * h, 0xffff << (16 * h))
        R(f"v_mov_b32 v{t3}, 0x0c0c0c0c")
        for u in range(2):
            lo = 0x0c0c0000 | ((2 * u + 1) << 8) | (2 * u)
            hi = 0x00000c0c | ((2 * u + 1) << 24) | ((2 * u) << 16)
            mk = sMK1 if u == 0 else sMK2
            R(f"v_mov_b32 v{t0}, 0x{lo:x}")
            R(f"v_mov_b32 v{t1}, 0x{hi:x}")
            R(f"v_cndmask_b32 v{t0}, v{t0}, v{t1}, s[{sMK0}:{sMK0 + 1}]")
            R(f"v_cndmask_b32 v{self.vSEL + u}, v{t3}, v{t0}, s[{mk}:{mk + 1}]")
            R(f"v_cndmask_b32 v{self.vSEL + 2 + u}, v{t0}, v{t3}, s[{mk}:{mk + 1}]")
        self.pollr.check(sd, self.bars[self.SIG] / 45 - 0.4)
        early_signal(sd, self.bars[self.SIG] / 45, P, t0, t1)
        R.into(sd, 1)
        R = Rec()
        tile2_setup(R, self.cfg)
        R(f"s_mul_i32 s{sT0}, s{sMT}, 11")
        R(f"s_mul_i32 s{sT1}, s{sW}, 3")
        R(f"s_add_u32 s{sT0}, s{sT0}, s{sT1}")
        for G in range(3):
            R(f"s_add_u32 s{sT1}, s{sT0}, {G - 1}")
            R(f"s_lshr_b32 s{sT2}, s{sT1}, 2")
            R(f"s_mul_i32 s{sT2}, s{sT2}, {A2_MT}")
            R(f"s_cmp_ge_u32 s{sT1}, 128")
            R(f"s_cselect_b32 s{sT2}, {OOB}, s{sT2}")
            if G == 0:
                R(f"s_cmp_eq_u32 s{sW}, 0")
                R(f"s_cselect_b32 s{sT2}, {OOB}, s{sT2}")
            R(f"s_and_b32 s{sT1}, s{sT1}, 3")
            R(f"s_lshl_b32 s{sT1}, s{sT1}, 6")
            R(f"v_add_u32 v{t0}, s{sT1}, v1")
            R(f"v_lshl_add_u32 v{self.vTK + G}, v{t0}, 4, s{sT2}")
            if self.cfg.oswap:
                R(f"v_and_b32 v{t0}, 31, v1")
                R(f"v_lshrrev_b32 v{t1}, 5, v1")
                R(f"v_lshl_add_u32 v{t0}, v{t0}, 1, v{t1}")
                R(f"v_add_u32 v{t0}, s{sT1}, v{t0}")
            R(f"v_lshl_add_u32 v{self.vTK + 3 + G}, v{t0}, 3, s{sT2}")
        R.into(sd, 0)
        self.poll.issue(sd, self.cfg.poll_qkv)
        self.poll.check(sd, self.cfg.poll_qkv + self.cfg.pchk)
        sd.f(0, lambda: setattr(self, "early_ok", -1 if self.cfg.gather else self.nbar), 0)
        sd.t(0, f"s_movk_i32 s{sRC1}, 0x2000")
        b2_touch(self, sd, t0, t1)
        for k in range(2):
            def f(k=k):
                assert self.early_ok < self.nbar
                self.tokM = P.vm(f"buffer_load_dword v64, {srd(rST)}, {f's{sRC1}' if k else '0'} offen sc1 lds")
            self.extra.setdefault(16, []).append(((sM0R, 256 * k), f))
        s2 = self.side2
        s2.f(17.9, lambda: P.wait(vm=self.tokM))
        for G in range(3):
            for k in range(2):
                s2.f(17.9, lambda G=G, k=k: P.ds(f"ds_read_b128 {vq(self.vST + 8 * G + 4 * k)}, v66 offset:{256 * k + 64 * G}"))
                s2.f(17.9, lambda G=G, k=k: P.ds(f"ds_read_b32 v{(self.vR1 if k else self.vM1) + G}, v65 offset:{256 * k + 64 * G}"))
        s2.f(17.9, lambda: setattr(self, "st_ok", True), 0)
        R = Rec()
        R("v_and_b32 v5, 48, v0")
        R("v_and_b32 v6, 15, v0")
        R("v_lshlrev_b32 v6, 2, v6")
        R(f"s_mul_i32 s{sT0}, s{sW}, 5632")
        R(f"s_add_u32 s{sT0}, s{sT0}, 16384")
        R(f"v_lshl_add_u32 v7, v1, 4, s{sT0}")
        R(f"v_lshl_add_u32 v8, v1, 3, s{sT0}")
        R(f"s_add_u32 s{sT0}, s{sW}, 3")
        R(f"s_and_b32 s{sT0}, s{sT0}, 3")
        R(f"s_mul_i32 s{sT0}, s{sT0}, 5632")
        R(f"s_add_u32 s{sT0}, s{sT0}, 16384")
        R(f"v_lshl_add_u32 v9, v1, 4, s{sT0}")
        R(f"v_lshl_add_u32 v10, v1, 3, s{sT0}")
        R(f"s_cmp_eq_u32 s{sW}, 0")
        R(f"s_cselect_b32 s14, 0x00010001, 0")
        R(f"s_cselect_b32 s16, 0xffff, 0")
        R(f"s_mov_b32 s15, s14")
        R(f"s_mov_b32 s17, 0")
        R(f"v_lshlrev_b32 v49, 4, v0")
        R(f"v_add_u32 v49, 4096, v49")
        R(f"v_cndmask_b32 v21, v49, v6, s[16:17]")
        R(f"v_cndmask_b32 v49, v49, v5, s[14:15]")
        R(f"s_or_b32 s{sT3}, s{sMT}, s{sW}")
        R(f"s_cmp_eq_u32 s{sT3}, 0")
        R(f"s_cselect_b32 s{sT3}, 0xf149f2ca, 0")
        R(f"s_lshl_b32 s{sT0}, s{sNT}, 13")
        R(f"s_add_u32 s{sT1}, s{sT0}, 4096")
        R(f"s_lshl_b32 s{sT2}, s{sNT}, 11")
        R(f"s_add_u32 s{sT2}, s{sT2}, {16 * 4096}")
        R.into(sd, 16.6)
        sd.f(16.6, lambda: setattr(self, "epi_ok", True), 0)

    def dma(self, kind, idx, q):
        P = self.P
        if kind == "A":
            def load():
                if q == 0:
                    P(f"s_mov_b64 exec, s[{sEXA}:{sEXA + 1}]")
                t = P.vm(f"buffer_load_dwordx4 v{self.vAa + q}, {srd(rX)}, s{sKA} offen lds")
                if q == 0:
                    P("s_mov_b64 exec, -1")
                assert self.t < 16.6
                return t
            return (sM0A, self.LA[idx % 2] + q * 4096), (sKA, idx * 128), load
        off = f" offset:{q * 1024}" if q else ""
        return ((sM0B, self.LB + (idx % 9) * 12288), (sKB, (idx // 3) * 64 * 3840 + (2 - idx % 3) * 1280),
                lambda: P.vm(f"buffer_load_dwordx4 v{self.vBa + q}, {srd(rW0)}, s{sKB} offen{off} lds") if self.t < 18.5 else None)

    def barrier_needs(self, b):
        return self.stats.done if b == self.SIG else None

    def barrier_ds(self, b):
        return self.tkw if b == len(self.bars) - 2 else None

    def cswrite(self, sec, i):
        self.tkw2 = self.P.ds(f"ds_write_b128 v49, {vq(self.acc(sec, i, 0))} offset:{(sec * 5 + i) * 64}")

    def fixed(self):
        P = self.P
        fx = {}
        for i in range(5):
            def wr(i=i):
                assert self.epi_ok and self.nbar >= len(self.bars) - 2
                self.tkw = P.ds(f"ds_write_b32 v21, v{self.acc(2, i, 0)} offset:{640 + i * 64}")
            fx[839 + 2 * i] = [(1, wr)]
        for g, sec, i in ((862, 1, 0), (866, 1, 1), (874, 1, 2), (886, 1, 3), (889, 1, 4), (892, 0, 0), (895, 0, 1), (898, 0, 2)):
            fx[g] = [(2, lambda sec=sec, i=i: self.cswrite(sec, i))]
        self.al = al = Alloc(list(range(60, 76)))
        self.csV = al.get(6)
        self.tkV, self.Vb, self.cs = {}, {}, {}
        for k, i in enumerate((4, 3, 2, 1, 0)):
            def f(i=i):
                assert self.nbar == len(self.bars) - 1 and self.st_ok
                self.tkV[i] = P.ds(f"ds_read_b32 v{self.csV + i}, v6 offset:{640 + i * 64}")
            fx.setdefault(self.bars[-2] + k, []).append((1, f))
        ops = []
        for i in (4, 3, 2, 1, 0)[:self.cfg.nvo]:
            ops += self.vfix(i, P, False)
        lo, hi = self.bars[-2] + 9, 900
        for k, f in enumerate(ops):
            fx.setdefault(lo + (k * (hi - lo)) // len(ops), []).append((1, f))
        return fx

    @staticmethod
    def bc(reg, pos, n):
        lo, hi = [0] * n, [1] * n
        lo[pos] = hi[pos] = reg & 1
        return vq(reg & ~1, 2), f"op_sel:[{','.join(map(str, lo))}] op_sel_hi:[{','.join(map(str, hi))}]"

    def vfix(self, i, V, packed):
        P, al = self.P, self.al
        out = [lambda: P.wait(ds=self.tkV[i])]
        e = lambda t: out.append(lambda: V(t))
        vb = self.Vb[i] = al.get(8)
        c, m1 = self.bc(self.csV + i, 1, 3)
        if not packed:
            e(f"v_xor_b32 v{self.csV + i}, 0x80000000, v{self.csV + i}")
        for G in (2, 0, 1):
            a = self.acc(2, i, G)
            m4, r4 = self.vST + 8 * G, self.vST + 8 * G + 4
            if packed:
                for h in (0, 2):
                    e(f"v_pk_fma_f32 {vq(a + h, 2)}, {vq(m4 + h, 2)}, {c}, {vq(a + h, 2)} {m1} neg_lo:[0,1,0] neg_hi:[0,1,0]")
                for h in (0, 2):
                    e(f"v_pk_mul_f32 {vq(a + h, 2)}, {vq(a + h, 2)}, {vq(r4 + h, 2)}")
            else:
                for r in range(4):
                    e(f"v_fmac_f32 v{a + r}, v{m4 + r}, v{self.csV + i}")
                for r in range(4):
                    e(f"v_mul_f32 v{a + r}, v{a + r}, v{r4 + r}")
            for h in (0, 2):
                e(f"v_cvt_pk_bf16_f32 v{vb + 2 * (2 - G) + h // 2}, v{a + h}, v{a + h + 1}")
            if G == 2:
                out.append(lambda: P.ds(f"ds_write_b64 v8, {vq(vb, 2)} offset:{3072 + i * 512}"))
        al.put(self.acc(2, i, 0), 12)
        self.cs[i] = al.get(4)
        return out

    def epilogue(self, tr):
        P, cfg, al = self.P, self.cfg, self.al
        BIAS = self.BIAS
        cnt = [0]
        halo_done = []

        def V(text):
            P(text)
            cnt[0] += 1
            if cnt[0] % cfg.ld_every == 0:
                if self.late.arrange(20, False) or halo_done:
                    self.late.emit(1, 20)

        bc = self.bc
        NEG = "neg_lo:[0,1,0] neg_hi:[0,1,0]"
        csV, Vb, cs, tkK = self.csV, self.Vb, self.cs, {}
        al.put(16, 1)
        for k in range(4):
            V(f"v_mov_b32 v{BIAS + k}, s{sT3}")
        rest = [f for i in (4, 3, 2, 1, 0)[cfg.nvo:] for f in self.vfix(i, V, True) + [i]]
        ready = list((4, 3, 2, 1, 0)[:cfg.nvo])
        bar_at = min(len(rest), cfg.vbar)
        for k, f in enumerate(rest + [None]):
            if k == min(bar_at, 4):
                self.cswrite(0, 3)
            if k == min(bar_at, 10):
                self.cswrite(0, 4)
            if k == bar_at:
                P.wait(ds=self.tkw2)
                P("s_barrier")
            if isinstance(f, int):
                ready.append(f)
            elif f:
                f()
            while k >= bar_at and ready:
                ik = ready.pop(0)
                tkK[ik] = P.ds(f"ds_read_b128 {vq(cs[ik])}, v5 offset:{(5 + ik) * 64}")
        al.put(csV, 6)
        al.put(self.vST, 24)
        tr.pt(P, 29)
        k2 = al.get(12)
        Kb = [(al.get(6), al.get(6)), (al.get(6), al.get(6)), (k2, k2 + 6)]
        kr = lambda G, pos: Kb[G][pos // 6] + pos % 6

        def kput(G):
            al.put(Kb[G][0], 6)
            al.put(Kb[G][1], 6)
        kpos = {0: [0], 1: [4], 2: [6], 3: [10], 4: [2, 8]}
        kdone = {3: 2, 1: 1, 0: 0}
        for i in (4, 3, 2, 1, 0):
            P.wait(ds=tkK[i])
            for G in (2, 1, 0):
                a = self.acc(1, i, G)
                m, mm = bc(self.vM1 + G, 1, 3)
                r, rm = bc(self.vR1 + G, 1, 2)
                for h in (0, 2):
                    V(f"v_pk_fma_f32 {vq(a + h, 2)}, {vq(cs[i] + h, 2)}, {m}, {vq(a + h, 2)} {mm} {NEG}")
                for h in (0, 2):
                    V(f"v_pk_mul_f32 {vq(a + h, 2)}, {vq(a + h, 2)}, {r} {rm}")
                for pos in kpos[i]:
                    for h in (0, 2):
                        V(f"v_cvt_pk_bf16_f32 v{kr(G, pos) + h // 2}, v{a + h}, v{a + h + 1}")
                if G == 2 and i in kdone:
                    k = kdone[i]
                    P.ds(f"ds_write_b128 v7, {vq(k2 + 4 * k)} offset:{k * 1024}")
            al.put(self.acc(1, i, 0), 12)
            tkK[i] = P.ds(f"ds_read_b128 {vq(cs[i])}, v5 offset:{i * 64}")
        tr.pt(P, 30)
        k3 = al.get(12)
        Kb.append((k3, k3 + 6))
        for n_, i in enumerate((4, 3, 2, 1, 0)):
            P.wait(ds=tkK[i])
            for G in (2, 1, 0):
                a = self.acc(0, i, G)
                m, mm = bc(self.vM1 + G, 1, 3)
                for h in (0, 2):
                    V(f"v_pk_fma_f32 {vq(a + h, 2)}, {vq(cs[i] + h, 2)}, {m}, {vq(a + h, 2)} {mm} {NEG}")
            al.put(cs[i], 4)
        P("s_barrier")
        assert P.ds_done == P.nds
        halo_done.append(1)
        if cfg.xearly:
            xr = al.get(4)
            xg_addr(P, xr, xr + 3, sKA, sKB)
            run(resid_units(P, {}, reg=xr, sm=sKB))
            al.put(xr, 4)
        for k in range(3):
            P.ds(f"ds_read_b128 {vq(k3 + 4 * k)}, v9 offset:{k * 1024}")
        for i in range(5):
            tkH = P.ds(f"ds_read_b64 {vq(Vb[i] + 6, 2)}, v10 offset:{3072 + i * 512}")
        qmain = lambda h: 4 * h + (0 if h % 2 == 0 else 2)
        qext = lambda h: 4 * h + (2 if h % 2 == 0 else 0)
        kq = {0: 0, 1: 2, 2: 6, 3: 8}
        sm = lambda s: f"s[{s}:{s + 1}]"
        mk = {0: sMK1, 1: sMK2}
        S, X, CQ, Qb = {}, {}, {}, {}
        pend = []

        def VM(text):
            assert "v_pk_" not in text
            V(text)
            VM.c += 1
            if pend and VM.c % 2 == 0:
                pend.pop(0)()
        VM.c = 0

        def qpack(G):
            Qb[G] = al.get(16)
            a = self.acc(0, 4, G)
            for h in (0, 2):
                VM(f"v_cvt_pk_bf16_f32 v{a + h // 2}, v{a + h}, v{a + h + 1}")
            for i in range(4):
                for h in range(2):
                    VM(f"v_cndmask_b32 v{Qb[G] + qext(i) + h}, 0, v{a + h}, {sm(sHM + 2 * i)}")
                b = self.acc(0, i, G)
                for h in (0, 2):
                    VM(f"v_cvt_pk_bf16_f32 v{Qb[G] + qmain(i) + h // 2}, v{b + h}, v{b + h + 1}")
                al.put(b, 4)
            al.put(a, 4)

        def scores(G):
            S[G] = [(al.get(4), al.get(4)) for _ in range(4)]
            for h in range(4):
                q = vq(Qb[G] + 4 * h)
                sc_, sp_ = S[G][h]
                pend.append(lambda h=h, q=q, d=sc_: P(f"v_mfma_f32_16x16x32_bf16 {vq(d)}, {vq(kr(G, kq[h]))}, {q}, 0"))

                def f(h=h, q=q, d=sp_):
                    if G == 0:
                        P.wait(ds=tkH)
                    c = vq(BIAS) if G == 1 else "0"
                    P(f"v_mfma_f32_16x16x32_bf16 {vq(d)}, {vq(kr((G - 1) % 4, kq[h]))}, {q}, {c}")
                pend.append(f)

        def flush():
            while pend:
                pend.pop(0)()

        def select(G):
            X[G] = al.get(8)
            for h in range(4):
                sc_, sp_ = S[G][h]
                for u in range(2):
                    VM(f"v_cndmask_b32 v{sc_ + 2 * u}, v{sc_ + 2 * u}, v{sc_ + 2 * u + 1}, vcc")
                    VM(f"v_cndmask_b32 v{sp_ + 2 * u}, v{sp_ + 2 * u}, v{sp_ + 2 * u + 1}, vcc")
                for u in range(2):
                    VM(f"v_cndmask_b32 v{X[G] + 2 * h + u}, v{sp_ + 2 * u}, v{sc_ + 2 * u}, {sm(mk[u])}")
            for sc_, sp_ in S[G]:
                al.put(sc_, 4)
                al.put(sp_, 4)

        P(f"s_mov_b64 vcc, {sm(sMK0)}")
        qpack(2)
        scores(2)
        qpack(1)
        flush()
        al.put(Qb[2], 16)
        kput(2)
        scores(1)
        qpack(0)
        flush()
        al.put(Qb[1], 16)
        kput(1)
        scores(0)
        select(2)
        flush()
        select(1)
        select(0)
        al.put(Qb[0], 16)
        kput(0)
        kput(3)
        tr.pt(P, 31)
        GS = (2, 1, 0)
        for G in GS:
            CQ[G] = al.get(2)
            V(f"v_mul_f32 v{CQ[G]}, 0x3ea52b5c, v{self.vR1 + G}")
            for u in range(2):
                V(f"v_permlane32_swap_b32 v{X[G] + u}, v{X[G] + 4 + u}")
                V(f"v_permlane32_swap_b32 v{X[G] + 2 + u}, v{X[G] + 6 + u}")
            for u in range(2):
                V(f"v_permlane16_swap_b32 v{X[G] + u}, v{X[G] + 2 + u}")
                V(f"v_permlane16_swap_b32 v{X[G] + 4 + u}, v{X[G] + 6 + u}")
        W, O, O4 = {}, {}, {}
        for G in GS:
            x, m = X[G], CQ[G] + 1
            V(f"v_max3_f32 v{m}, v{x}, v{x + 1}, v{x + 2}")
            V(f"v_max3_f32 v{m}, v{m}, v{x + 3}, v{x + 4}")
            V(f"v_max3_f32 v{m}, v{m}, v{x + 5}, v{x + 6}")
            V(f"v_max_f32 v{m}, v{m}, v{x + 7}")
            V(f"v_mul_f32 v{m}, v{m}, v{CQ[G]}")
            for k in range(0, 8, 2):
                V(f"v_pk_fma_f32 {vq(x + k, 2)}, {vq(x + k, 2)}, {vq(CQ[G], 2)}, {vq(CQ[G], 2)} op_sel:[0,0,1] op_sel_hi:[1,0,1] neg_lo:[0,0,1] neg_hi:[0,0,1]")
            for k in range(8):
                V(f"v_exp_f32 v{x + k}, v{x + k}")
            w = W[G] = al.get(4)
            V(f"v_pk_add_f32 {vq(w, 2)}, {vq(x, 2)}, {vq(x + 2, 2)}")
            V(f"v_pk_add_f32 {vq(w + 2, 2)}, {vq(x + 4, 2)}, {vq(x + 6, 2)}")
            V(f"v_pk_add_f32 {vq(w, 2)}, {vq(w, 2)}, {vq(w + 2, 2)}")
            V(f"v_add_f32 v{w}, v{w}, v{w + 1}")
            V(f"v_rcp_f32 v{CQ[G]}, v{w}")
        for G in GS:
            x, w = X[G], W[G]
            for k in range(0, 8, 2):
                V(f"v_pk_mul_f32 {vq(x + k, 2)}, {vq(x + k, 2)}, {vq(CQ[G], 2)} op_sel:[0,0] op_sel_hi:[1,0]")
            for k in (0, 2, 1, 3):
                V(f"v_cvt_pk_bf16_f32 v{w + k}, v{x + 2 * k}, v{x + 2 * k + 1}")
            al.put(x, 8)
        for G in GS:
            V(f"v_permlane32_swap_b32 v{W[G]}, v{W[G] + 2}")
            V(f"v_permlane32_swap_b32 v{W[G] + 1}, v{W[G] + 3}")
        for G in GS:
            V(f"v_permlane16_swap_b32 v{W[G]}, v{W[G] + 1}")
            V(f"v_permlane16_swap_b32 v{W[G] + 2}, v{W[G] + 3}")
        tr.pt(P, 32)
        if cfg.fastq:
            phase2_setup1(P, self.late.rot)
            self.hpoll = FlagPoll(P, 0, "qkv")
            if cfg.fastq == 1:
                self.hpoll.issue()

        def pv(G):
            Pq = [al.get(4) for _ in range(4)]
            O[G] = [al.get(4) for _ in range(4)]
            O4[G] = [al.get(4) for _ in range(4)]
            for h in range(4):
                for k in range(4):
                    VM(f"v_perm_b32 v{Pq[h] + k}, v{W[G] + h}, v{W[G] + h}, v{self.vSEL + k}")
                assert not pend
                VM.c = 0
                pend.append(lambda h=h: P(f"v_mfma_f32_16x16x32_bf16 {vq(O[G][h])}, {vq(Vb[h] + 2 * (2 - G))}, {vq(Pq[h])}, 0"))
                pend.append(lambda h=h: P(f"v_mfma_f32_16x16x32_bf16 {vq(O4[G][h])}, {vq(Vb[4] + 2 * (2 - G))}, {vq(Pq[h])}, 0"))
            return Pq

        def out(G):
            for p in range(2):
                d = al.get(4, avoid=range(64, 96))
                for hh in range(2):
                    o = O[G][2 * p + hh]
                    VM(f"v_cvt_pk_bf16_f32 v{d + 2 * hh}, v{o}, v{o + 1}")
                    VM(f"v_cvt_pk_bf16_f32 v{d + 2 * hh + 1}, v{o + 2}, v{o + 3}")
                self.stores.append(lambda d=d, p=p: P.vm(f"buffer_store_dwordx4 {vq(d)}, v{self.vTK + G}, {srd(rA2)}, s{sT0 + p} offen sc1"))
                if cfg.qst == 0:
                    self.stores.pop()()

        self.stores = []
        p2 = pv(2)
        pv(1)
        for r in p2:
            al.put(r, 4)
        out(2)
        if cfg.fastq == 2:
            self.hpoll.issue()
        pv(0)
        out(1)
        if cfg.fastq == 3:
            self.hpoll.issue()
        flush()
        out(0)
        d4 = {G: al.get(2, avoid=range(64, 96)) for G in GS}
        for hd in range(4):
            P(f"s_mov_b64 exec, {sm(sHM + 2 * hd)}")
            for G in GS:
                o = O4[G][hd]
                P(f"v_cvt_pk_bf16_f32 v{d4[G]}, v{o}, v{o + 1}")
                P(f"v_cvt_pk_bf16_f32 v{d4[G] + 1}, v{o + 2}, v{o + 3}")
        P("s_mov_b64 exec, -1")
        if not cfg.fastq:
            self.late.emit(99, 20)
        for G in GS:
            def st(G=G):
                self.tokS = P.vm(f"buffer_store_dwordx2 {vq(d4[G], 2)}, v{self.vTK + 3 + G}, {srd(rA2)}, s{sT2} offen sc1")
            self.stores.append(st)
            if cfg.qst == 0:
                self.stores.pop()()
        return cfg.n1_qkv


vA2, vAh, vXL, vFL, vFD, vR, vW, vRd = 5, 9, 10, 12, 14, 22, 24, 27
vXG = 136
vXD = 142
vXS = 28
GO = (2, 3, 1, 0)
sU0, sU1, sU2, sU3 = sKA, sKB, sRP, sRC1


def phase2_setup1(P, rot):
    P(f"s_add_u32 s{sA2Y1}, s{sA2Y}, {8 * 4096 if rot else 0}")
    P(f"s_sub_u32 s{sA2Y2}, s{sA2Y}, {4 * 4096 if rot else 0}")
    P(f"v_lshlrev_b32 v{vA2}, 4, v0")
    for i in range(1, 4):
        P(f"v_add_u32 v{vA2 + i}, {1024 * i}, v{vA2}")
        P(f"v_and_b32 v{vA2 + i}, 4095, v{vA2 + i}")
    for x in range(2048):
        assert (x * 2979) >> 19 == x // 176 and (x * 2789) >> 19 == x // 188
    P(f"s_mul_i32 s{sU0}, s{sMT2}, {64 * 2789}")
    P(f"v_bfe_u32 v{vFD}, v0, 3, 1")
    P(f"v_mul_u32_u24 v{vFD}, {63 * 2789}, v{vFD}")
    P(f"v_add_u32 v{vFD}, s{sU0}, v{vFD}")
    P(f"v_lshrrev_b32 v{vFL}, 19, v{vFD}")
    P(f"v_and_b32 v{vFD}, 7, v0")
    P(f"v_cmp_gt_u32 vcc, 4, v{vFD}")
    P(f"s_mul_i32 s{sU0}, s{sW}, 3")
    P(f"v_add_u32 v{vFD}, s{sU0}, v{vFD}")
    P(f"v_cndmask_b32 v{vFD}, 13, v{vFD}, vcc")
    P(f"v_mad_u32_u24 v{vFL}, v{vFL}, 14, v{vFD}")
    P(f"v_lshlrev_b32 v{vFL}, 7, v{vFL}")
    P(f"v_add_u32 v{vFL}, {FLAG_OFF}, v{vFL}")


def phase2_setup2(P):
    mk_srd(P, rOUT, sOUT, X_BYTES)
    P(f"s_and_b32 s{sU0}, s{sW}, 1")
    P(f"s_add_u32 s{sU0}, s{sU0}, 72")
    P(f"s_mul_i32 s{sB13}, s{sU0}, 5120")
    P(f"s_add_u32 s{sB13}, s{sB13}, s{sB2W}")
    P(f"s_sub_u32 s{sB13}, s{sB13}, s{sM0A}")
    P(f"s_lshl_b32 s{sA13}, s{sU0}, 12")
    P(f"s_add_u32 s{sA13}, s{sA13}, s{sA2S}")
    for i in range(4):
        P(f"s_add_u32 s{sU0}, s{sW}, {i}")
        P(f"s_and_b32 s{sU0}, s{sU0}, 3")
        P(f"s_mul_i32 s{sU1}, s{sU0}, 15360")
        if i > 1:
            P(f"s_add_u32 s{sU1}, s{sU1}, {(i - 1) * 5120}")
        P(f"v_add_u32 v{vW + i - 1 if i else vRd}, s{sU1}, v{vB2}")
    P(f"s_lshl_b32 s{sU0}, s{sMT2}, 6")
    P(f"s_lshl4_add_u32 s{sU1}, s{sW}, s{sU0}")
    xg_addr(P, vXG, vR, sU2, sU3)
    P(f"s_mul_i32 s{sM0R}, s{sW}, 15360")
    P(f"v_and_b32 v{vR}, 15, v0")
    P(f"v_mul_u32_u24 v{vXL}, 160, v{vR}")
    P(f"v_lshrrev_b32 v{vR + 1}, 4, v1")
    P(f"v_lshlrev_b32 v{vR + 1}, 3, v{vR + 1}")
    P(f"v_add3_u32 v{vXL + 1}, v{vXL}, v{vR + 1}, s{sM0R}")
    P(f"v_add_u32 v{vXL}, v{vXL + 1}, v{vR + 1}")
    P(f"s_mul_i32 s{sU2}, s{sW}, {15360 - 3072}")
    P(f"s_sub_u32 s{sU2}, {LWO}, s{sU2}")
    P(f"s_add_u32 s{sM0R}, s{sM0R}, s{sU2}")
    P(f"v_add_u32 v{vXS}, s{sU2}, v{vXL}")
    P(f"v_add_u32 v{vXS + 1}, s{sU2}, v{vXL + 1}")
    P(f"s_lshl2_add_u32 s{sU2}, s{sU1}, 8192")
    P(f"v_lshl_add_u32 v{vR}, v{vR}, 2, s{sU2}")
    P(f"s_mul_i32 s{sU0}, s{sU1}, 2979")
    P(f"s_lshr_b32 s{sU0}, s{sU0}, 19")
    P(f"s_lshl_b32 s{sU0}, s{sU0}, 10")
    P(f"s_add_u32 s{sU0}, s{sU0}, {FLAG_OFF + 160 * 128}")
    P(f"v_and_b32 v{vR + 1}, 7, v0")
    P(f"v_lshl_add_u32 v{vFL + 1}, v{vR + 1}, 7, s{sU0}")
    if Cfg.oswap:
        P(f"v_lshrrev_b32 v{vAh}, 5, v1")
        P(f"v_mul_u32_u24 v{vAh}, 1536, v{vAh}")
        P(f"s_lshl_b32 s{sU0}, s{sW}, 9")
        P(f"v_add3_u32 v{vAh}, v{vAh}, v{vB2}, s{sU0}")
    else:
        P(f"v_lshrrev_b32 v{vAh}, 1, v{vA2}")


class FlagPoll:
    def __init__(self, P, k, tag):
        self.P, self.k, self.tag = P, k, tag

    def ld(self):
        return f"buffer_load_dword v{vFD}, v{vFL + self.k}, {srd(rST)}, 0 offen {FlagPoll.sc}"

    def issue(self):
        self.tok = self.P.vm(self.ld())

    def check(self):
        P = self.P
        P.wait(vm=self.tok)
        P(f"v_cmp_ne_u32 vcc, 1, v{vFD}")
        P("s_nop 0")
        P(f"s_cbranch_vccnz L_fspin_{self.tag}")
        P(f"L_fback_{self.tag}:")

    def slow(self, tr, lane, nap=2):
        P = self.P
        P(f"L_fspin_{self.tag}:")
        P(f"s_mov_b32 s{sSPIN}, 0")
        P(f"L_fspin2_{self.tag}:")
        P.vm(self.ld(), counted=False)
        P(f"s_add_u32 s{sSPIN}, s{sSPIN}, 1")
        if tr.on:
            P(f"v_writelane_b32 v{vTR}, s{sSPIN}, {lane}")
        P("s_waitcnt vmcnt(0)")
        P(f"v_cmp_ne_u32 vcc, 1, v{vFD}")
        P(f"s_cmp_lt_u32 s{sSPIN}, 0x40000")
        P("s_nop 0")
        P(f"s_cbranch_vccz L_fback_{self.tag}")
        P(f"s_sleep {nap}")
        P(f"s_cbranch_scc1 L_fspin2_{self.tag}")
        P(f"s_branch L_fback_{self.tag}")


def abuf(m, i, k):
    if m == 6 and Cfg.merge:
        return (aq(88 + 4 * i) if k == 0 else (aq(248), vq(152))[i])
    return vq(64 - (m % 2) * 32 + i * 8 + 4 * k)


def loadsA(P, tok, m, i, first):
    sA = lambda k: 14 + (m % 2) * 2 + k
    base = lambda s: sA2Y1 if s < 4 else sA2Y2 if s < 12 else sA2Y
    out = []
    for k in range(1 if (m == 6 and i > 1) else 2):
        last = 2 * m + k == 13

        def f(k=k, last=last):
            tok[m, i] = P.vm(f"buffer_load_dwordx4 {abuf(m, i, k)}, v{vA2 + i}, {srd(rA2)}, s{sA13 if last else sA(k)} offen sc1")
        out.append(([lambda k=k: P(f"s_add_u32 s{sA(k)}, s{base(2 * m + k)}, {(2 * m + k) * 4096}")] if first and not last else [], f))
    return out


def run(units):
    for preps, f in units:
        for p in preps:
            p()
        f()


def resid_units(P, tok, early=False, reg=None, sm=None):
    def ldx(q):
        tok["x"] = P.vm(f"buffer_load_dwordx4 v{(reg or vXG) + q}, {srd(rX)}, 0 offen offset:{q * 1024} lds")
    xs = [([lambda: P(f"s_mov_b32 m0, s{sm or sM0R}")] if q == 0 else [], lambda q=q: ldx(q)) for q in range(3)]
    if reg:
        return xs
    return [([], lambda: P.vm(f"buffer_load_dword v{vR}, v{vR}, {srd(rST)}, 0 offen sc1"))] + ([] if early else xs)


def flag_regs(P):
    P(f"v_mov_b32 v{vXD}, s{sFLAG}")
    P(f"v_mov_b32 v{vXD + 1}, {OOB}")
    P("v_cmp_eq_u32 vcc, 0, v0")
    P(f"v_cndmask_b32 v{vXD}, v{vXD + 1}, v{vXD}, vcc")
    P(f"v_mov_b32 v{vXD + 1}, 1")


def raise_flag(P, role, tr):
    P.wait(vm=role.tokS)
    tr.pt(P, 35)
    P("s_barrier")
    P.vm(f"buffer_store_dword v{vXD + 1}, v{vXD}, {srd(rST)}, 0 offen sc1")


def enter_phase2(P, cfg, late, ntail, tr, tag):
    poll = FlagPoll(P, 0, tag)
    late.zsrd = True
    late.emit(len(late.q) - abs(ntail), 99)
    if ntail >= 0:
        run(resid_units(P, {}, early=cfg.xearly and tag != "spare"))
    poll.issue()
    if cfg.atouch and tag != "spare":
        P(f"s_and_b32 s{sU0}, s{sNT2}, 3")
        P(f"s_lshl_b32 s{sU0}, s{sU0}, 7")
        P(f"s_add_u32 s{sU0}, s{sU0}, s{sA2Y1}")
        P(f"v_cmp_gt_u32 vcc, {cfg.atouch}, v1")
        P(f"v_lshl_add_u32 v30, v1, 9, s{sU0}")
        P(f"v_mov_b32 v31, {OOB}")
        P(f"v_cndmask_b32 v30, v31, v30, vcc")
        P.vm(f"buffer_load_dword a255, v30, {srd(rA2)}, 0 offen sc1")
    if ntail < 0:
        run(resid_units(P, {}, early=cfg.xearly and tag != "spare"))
    late.emit(99, 99)
    tr.pt(P, 36)
    poll.check()
    tr.pt(P, 37)
    tr.flush(P)
    return poll


def finish(P, role, n1, tr, tag):
    cfg = role.cfg
    tr.pt(P, 33)
    tok = {}
    if tag == "glu" or not cfg.fastq:
        assert not any(u[1] == "W" for u in role.late.q)
        P.pad(1)
        role.late.emit(n1, 21)
        n2 = cfg.n2 if tag == "glu" else cfg.n2q
        if n2 is None:
            phase2_setup1(P, role.late.rot)
            phase2_setup2(P)
        flag_regs(P)
        tr.pt(P, 34)
        raise_flag(P, role, tr)
        if n2 is not None:
            role.late.emit(n2, 21)
            phase2_setup1(P, role.late.rot)
            phase2_setup2(P)
        poll = enter_phase2(P, cfg, role.late, cfg.ntail if tag == "glu" else cfg.ntailq, tr, tag)
        if tag == "glu":
            P("L_p2:")
            if cfg.warm:
                P("s_cbranch_execz L_ret")
        elif cfg.defer == cfg.deferq and cfg.share:
            P("s_branch L_p2")
            poll.slow(tr, 38)
            return
        tok["x"] = P.nvm
        for n, i in enumerate(GO):
            if n in cfg.fair:
                P("s_barrier")
            run(loadsA(P, tok, 0, i, n == 0))
        if 4 in cfg.fair:
            P("s_barrier")
        spoll = phase2(P, cfg, tr, tag, tok, cfg.defer if tag == "glu" else cfg.deferq)
    else:
        poll = role.hpoll
        if not role.stores:
            P.pad(1)
        role.late.emit(99, 20 if role.stores else 21)
        assert not role.late.q
        tr.pt(P, 36)
        poll.check()
        tr.pt(P, 37)
        for n, i in enumerate(GO):
            run(loadsA(P, tok, 0, i, n == 0))
        for f in role.stores:
            f()
        P.pad(1)
        phase2_setup2(P)
        flag_regs(P)
        tr.pt(P, 34)
        spoll = phase2(P, cfg, tr, tag, tok, cfg.deferq, role)
    poll.slow(tr, 38)
    spoll.slow(tr, 39)


def phase2(P, cfg, tr, tag, tok, defer, role=None):
    ACC, ACS, XU, E = (176, 64, 156, 32) if cfg.merge else (176, 32, 156, 64)
    vWO = 140
    accY = lambda j, i: vq(ACC + (i * 5 + j) * 4)
    oreg = lambda f: 88 + 4 * f
    OSW = 96
    oprd = lambda f: vq(OSW + 4 * (f - 16)) if (cfg.oswap and f >= 16) else aq(oreg(f))
    YP = [ACC + 20, ACC + 40, ACC + 60]
    P(f"v_add_u32 v{vWO}, {LWO}, v{vB2}")
    P(f"v_add_u32 v{vWO + 1}, {LWO + 51200}, v{vB2}")
    poll = FlagPoll(P, 1, "s" + tag)
    dr, dw = defer
    assert dw >= 3
    late = Late(P, [(0, "R", k) for k in range(14 - dr, 14)] + [(0, "W", k) for k in range(dw)], n=5 * dr + dw)
    late.zsrd = True
    tk = {}

    mf = []
    flip = 0
    done = {}
    mg = cfg.merge
    for m in range(6 if mg else 7):
        tailp = m == (5 if mg else 6)
        for i in ((2, 3, 1, 0) if tailp else GO):
            st = list(range(2 * m, 13 if (tailp and i > 1) else 14 if tailp else 2 * m + 2))
            for q, j in enumerate(range(5) if (flip % 2 == 0 or tailp) else range(4, -1, -1)):
                for kk, s in enumerate(st if (q + (0 if tailp else flip)) % 2 == 0 else st[::-1]):
                    d = accY(j, i)
                    done[i, j] = len(mf)
                    mf.append((f"v_mfma_f32_16x16x32_bf16 {d}, {b2_reg(s, j)}, {abuf(s // 2, i, s % 2)}, {d if (m or kk) else '0'}",
                               (s // 2, i), None))
            flip += 1
    S0 = len(mf)
    nf = 4 * (-(-4 * dw // 20))
    FO = list(range(nf, 20)) + list(range(nf))
    seq = []
    for p in range(5):
        for q, j in enumerate(range(4, -1, -1) if p % 2 == 0 else range(5)):
            for kk in range(4):
                seq.append((FO[4 * p + (kk if q % 2 == 0 else 3 - kk)], j))
    wreg = lambda n: aq(168 + 4 * (n % 40) if n % 40 < 20 else 4 * (n % 40 - 20))
    for n, (f, j) in enumerate(seq):
        d = vq(ACS + 4 * j)
        mf.append((f"v_mfma_f32_16x16x32_bf16 {d}, {wreg(n)}, {oprd(f)}, {d if (n >= 20 or n % 4) else '0'}", ("o", f), ("w", n | 1)))
    N = len(mf)
    WBAR = S0 + (20 - nf) * 5 - cfg.look
    lead = [[] for _ in range(N)]
    body = [[] for _ in range(N)]
    cap = [2] * N
    event = {}

    def place(lo, fn, cost=1, step=1, maxn=2):
        g = lo
        while cap[g] < cost or len(body[g]) >= maxn:
            g += step
        body[g].append(fn)
        cap[g] -= cost
        return g

    g = 0
    for i in (2, 3, 1):
        for j in range(5):
            def snd(i=i, j=j):
                tk["sent"] = P.ds(f"ds_write_b128 v{vW + i - 1}, {accY(j, i)} offset:{j * 1024}")
            if cfg.sx:
                for h in range(2):
                    def snd2(i=i, j=j, h=h):
                        tk["sent"] = P.ds(f"ds_write_b64 v{vW + i - 1}, {vq(ACC + (i * 5 + j) * 4 + 2 * h, 2)} offset:{j * 1024 + 8 * h}")
                    g = place(max(int(g), done[i, j] + 8), snd2, cost=2) + cfg.ssp + (g - int(g))
                continue
            g = place(max(int(g), done[i, j] + 8), snd, cost=2) + cfg.ssp + (g - int(g))
    BAR = int(g - cfg.ssp) + cfg.sbar

    def lateu(key):
        _, _, preps, f = late.unit()

        def g():
            tok[key] = f()
        return preps, g

    def ldo(f):
        pre = [lambda: P(f"s_add_u32 s{sKA}, s{sA2S}, {f * 4096}")]
        if f < 16:
            def g():
                tok["o", f] = P.vm(f"buffer_load_dwordx4 {aq(oreg(f))}, v{vA2}, {srd(rA2)}, s{sKA} offen sc1")
            return [(pre, g)]

        if cfg.oswap:
            def g():
                tok["o", f] = P.vm(f"buffer_load_dwordx4 {oprd(f)}, v{vAh}, {srd(rA2)}, s{sKA} offen sc1")
            return [(pre, g)]

        def g():
            tok["o", f] = P.vm(f"buffer_load_dwordx2 {aq(oreg(f) + 2, 2)}, v{vAh}, {srd(rA2)}, s{sKA} offen offset:2048 sc1")
        return [(pre, lambda: P.vm(f"buffer_load_dwordx2 {aq(oreg(f), 2)}, v{vAh}, {srd(rA2)}, s{sKA} offen sc1")), ([], g)]
    qa = [(0 if m == 1 else 40 * (m - 2) + 10 * (n + 1), u) for m in range(1, 7) for n, i in enumerate(GO) for u in loadsA(P, tok, m, i, n == 0)]
    if mg:
        u5 = {i: [x for x in qa[32 + 2 * n:34 + 2 * n]] for n, i in enumerate(GO)}
        u6 = {i: [(120, u) for u in loadsA(P, tok, 6, i, i == 2)] for i in GO}
        qa = qa[:32] + [u for i in GO for u in u5[i] + u6[i]]
    run([u for _, u in qa[:2 * cfg.nfirst]])
    qa = qa[2 * cfg.nfirst:]
    mid = (resid_units(P, tok) if role else []) + [lateu("b") for _ in range(5 * dr)]
    qb = [(20 + (k * (110 if mg else 140)) // len(mid), u) for k, u in enumerate(mid)]
    OCHK = cfg.ochk
    qb.append((OCHK - 60, ([], poll.issue)))
    qb.sort(key=lambda x: x[0])
    qo = [(max(OCHK, S0 if ((mg and f < 4) or (cfg.oswap and f >= 16)) else 0), u) for f in FO for u in ldo(f)]
    assert not mg or nf == 4
    qw = [(BAR, lateu("w")) for _ in range(dw)]
    for q in range(cfg.otouch):
        qo.append((S0, ([], lambda q=q: P.vm(f"buffer_load_dword a255, v{vXG + q}, {srd(rOUT)}, 0 offen offset:{q * 1024}"))))
    p = 2
    while qa or qb or qo or qw:
        assert p < N
        q = next((q for q in (qb, qa, qw, qo) if q and q[0][0] <= p - 2), None)
        if q is None or p + 1 in (BAR, WBAR) or cap[p] < 2:
            p += 1
            continue
        preps, f = q.pop(0)[1]
        for k, pp in enumerate(preps):
            lead[p - len(preps) + k].append(pp)
        body[p].append(f)
        cap[p] = 0
        p += ((cfg.vspq if role else cfg.vsp) + (p >= cfg.vsw)) if (qa or qb) else cfg.vsp2 + (p < cfg.vsw2)
    event[OCHK] = poll.check

    def rdw(n):
        f, j = seq[n]
        off = f * 5120 + j * 1024
        tk["w", n] = P.ds(f"ds_read_b128 {wreg(n)}, v{vWO + (off >= 51200)} offset:{off % 51200}")
    g = 0
    NPRE = 30 if mg else 40
    for n in range(NPRE):
        g = place(max(g, 161 if n < 20 else 201 if n < 30 else 241), lambda n=n: rdw(n), maxn=1 if n < 30 else 2) + (n < 30)

    def barA():
        assert P.ds_done >= tk["x"]
        P.wait(ds=tk["sent"])
        P("s_barrier")
    event[BAR] = barA
    g = BAR
    for jj in range(5):
        for k in range(3):
            def fet(jj=jj, k=k):
                tk[jj] = P.ds(f"ds_read_b128 {vq(YP[k] + 4 * jj)}, v{vRd} offset:{k * 5120 + jj * 1024}")
            g = place(g, fet)
    GATE = g + cfg.sgate
    for n in range(NPRE, 100, 2):
        g = max(g, S0 + n - cfg.look)
        g = place(g, lambda n=n: (rdw(n), rdw(n + 1)), cost=2)
        assert g <= S0 + n - 5 or g < GATE <= S0 + n, (n, g)

    def barW():
        P.wait(vm=tok["w"])
        P("s_barrier")
    event[WBAR] = barW
    if role:
        event[cfg.qpub] = lambda: raise_flag(P, role, tr)

    if cfg.oswap:
        n0 = S0 + min(n for n, (f, j) in enumerate(seq) if f >= 16)
        g = n0 - cfg.oswap
        for f in range(16, 20):
            for k in range(2):
                def sw(f=f, k=k):
                    P.wait(vm=tok["o", f])
                    P(f"v_permlane32_swap_b32 v{OSW + 4 * (f - 16) + k}, v{OSW + 4 * (f - 16) + 2 + k}")
                g = place(g, sw, cost=2)
        assert g < n0

    fill = Side(P)

    def rdx():
        assert P.vm_done >= tok["x"]
        P.ds(f"ds_read_b128 {vq(vXD)}, v{vXS}")
        P.ds(f"ds_read_b128 {vq(vXD + 4)}, v{vXS} offset:64")
    fill.f(140, rdx, 2)

    def rdx2():
        tk["x"] = P.ds(f"ds_read_b64 {vq(vXD + 8, 2)}, v{vXS + 1} offset:128")
    fill.f(140, rdx2)
    fill.t(140, f"v_mul_f32 v{vR}, v{vR}, v{vR}\nv_mul_f32 v{vR + 1}, 0xbfb8aa3b, v{vR}\nv_rcp_f32 v{vR}, v{vR}")
    fill.f(150, lambda: P.wait(ds=tk["x"]))
    for k in range(10):
        fill.t(150, f"v_lshlrev_b32 v{XU + 2 * k}, 16, v{vXD + k}\nv_and_b32 v{XU + 2 * k + 1}, 0xffff0000, v{vXD + k}")

    def gate_head():
        tr.pt(P, 49)
        for j in range(5):
            P.wait(ds=tk[j])
            y, e = ACC + 4 * j, E + 4 * j
            for k in range(3):
                for h in (0, 2):
                    P(f"v_pk_add_f32 {vq(y + h, 2)}, {vq(y + h, 2)}, {vq(YP[k] + 4 * j + h, 2)}")
            for h in (0, 2):
                P(f"v_pk_mul_f32 {vq(e + h, 2)}, {vq(y + h, 2)}, {vq(vR, 2)} op_sel:[0,1] op_sel_hi:[1,1]")
        for r in range(cfg.ghead):
            P(f"v_exp_f32 v{E + 19 - r}, v{E + 19 - r}")
        tr.pt(P, 51)
    event[GATE] = gate_head
    for r in range(19 - cfg.ghead, -1, -1):
        fill.t(GATE, f"v_exp_f32 v{E + r}, v{E + r}")
    for r in range(18, -1, -2):
        fill.t(GATE, f"v_fma_f32 v{E + r + 1}, v{E + r + 1}, v{vR}, v{vR}\nv_fma_f32 v{E + r}, v{E + r}, v{vR}, v{vR}")
        fill.t(GATE, f"v_rcp_f32 v{E + r + 1}, v{E + r + 1}\nv_rcp_f32 v{E + r}, v{E + r}")

    for r in range(19, 19 - cfg.gmul, -1):
        fill.t(GATE, f"v_mul_f32 v{ACC + r}, v{ACC + r}, v{E + r}")

    for n, (text, vk, dk) in enumerate(mf):
        if cfg.p2fine and n % 20 == 0:
            tr.flush(P, lazy=True)
            tr.pt(P, 9 + n // 20)
        if cfg.p2fine and n == BAR:
            tr.pt(P, 43)
        if n in event:
            event[n]()
        if cfg.p2fine and n == BAR:
            tr.pt(P, 45)
            print("BAR, GATE, WBAR", BAR, GATE, WBAR, file=sys.stderr)
        P.wait(vm=tok[vk], ds=tk[dk] if dk else None)
        if n == (200 if mg else 240):
            assert P.vm_done >= tok.get("b", 0)
        if n in (0, 80, 160, 240):
            tr.pt(P, 40 + n // 40)
        if n == 20:
            tr.pt(P, 41)
        if n == S0:
            tr.pt(P, 48)
        P(text)
        if n + 1 < N and n + 1 not in event and not lead[n]:
            _, vk1, dk1 = mf[n + 1]
            if vk1 in tok and (dk1 is None or dk1 in tk):
                P.wait(vm=tok[vk1], ds=tk[dk1] if dk1 else None)
        for f in lead[n] + body[n]:
            f()
        if cap[n] > 0:
            fill.take(n, cap[n] + (cfg.gover if n >= GATE else 0), False, strict=True)
    tr.pt(P, 50)
    fill.drain()
    for r in range(18 - cfg.gmul, -1, -2):
        P(f"v_pk_mul_f32 {vq(ACC + r, 2)}, {vq(ACC + r, 2)}, {vq(E + r, 2)}")
    for j in (4, 3, 2, 1, 0):
        s = ACS + 4 * j
        for h in (0, 2):
            P(f"v_pk_fma_f32 {vq(s + h, 2)}, {vq(s + h, 2)}, {vq(ACC + 4 * j + h, 2)}, {vq(XU + 4 * j + h, 2)}")
        for h in (0, 2):
            P(f"v_cvt_pk_bf16_f32 v{vXD + 2 * j + h // 2}, v{s + h}, v{s + h + 1}")
        if j == 0:
            P.ds(f"ds_write_b128 v{vXL}, {vq(vXD)}")
        if j == 2:
            P.ds(f"ds_write_b128 v{vXL}, {vq(vXD + 4)} offset:64")
        if j == 4:
            P.ds(f"ds_write_b64 v{vXL + 1}, {vq(vXD + 8, 2)} offset:128")
    tq = [P.ds(f"ds_read_b128 {vq(E + 4 * q)}, v{vRd} offset:{q * 1024}") for q in range(3)]
    for q in range(3):
        P.wait(ds=tq[q])
        P.vm(f"buffer_store_dwordx4 {vq(E + 4 * q)}, v{vXG + q}, {srd(rOUT)}, 0 offen offset:{q * 1024}{cfg.osc}")
    if tr.on:
        tr.pt(P, 52)
        P.wait_all_vm()
        tr.pt(P, 53)
        tr.pt(P, 54, real=True)
        tr.store(P)
    P("s_endpgm")
    return poll


def gen(cfg):
    FlagPoll.sc = cfg.psc
    Poll.trace = cfg.trace
    Cfg.merge, Cfg.oswap = cfg.merge, cfg.oswap
    outs = []
    P = Prog()
    tr = Trace(cfg)
    tr.pt(P, 0, real=True)
    tr.pt(P, 1)
    P("s_load_dwordx16 s[4:19], s[0:1], 0")
    P("s_load_dwordx4 s[20:23], s[0:1], 64")
    P("s_cmp_lt_u32 s2, 96")
    P("s_cbranch_scc1 L_qkv")
    P("s_cmp_lt_u32 s2, 256")
    P("s_cbranch_scc1 L_go")
    P("s_endpgm")
    if cfg.warm:
        P("L_ret:")
        P(f"s_setpc_b64 s[{sRET}:{sRET + 1}]")
    P("L_go:")

    def ids(P):
        P("v_lshrrev_b32 v1, 6, v0")
        P(f"s_lshr_b32 s{sT0}, s2, 3")
        P(f"v_readfirstlane_b32 s{sW}, v1")
        P("v_and_b32 v1, 63, v0")
        if tr.on:
            P(f"v_mov_b32 v{vTR}, 0")
        P(f"s_bfe_u32 s{sT1}, s2, 0x10002")
        P(f"s_and_b32 s{sT2}, s2, 3")
        P(f"s_lshl_b32 s{sM0A}, s{sW}, 10")
    P(f"s_getpc_b64 s[{sPC}:{sPC + 1}]")
    P("L_pc:")
    P("s_and_b32 s3, s2, 0xf8")
    P("s_lshl_b32 s3, s3, 9")
    P(f"s_sub_u32 s3, s3, {12 * 4096}")
    P("v_lshlrev_b32 v5, 4, v0")
    P("v_add_u32 v5, s3, v5")
    P("v_min_u32 v5, L_codeend-L_pc-4, v5")
    P.vm(f"global_load_dword a255, v5, s[{sPC}:{sPC + 1}]")
    nvm0 = P.nvm
    ids(P)
    P(f"s_and_b32 s{sT3}, s2, 0xfb")
    P(f"s_sub_u32 s{sT3}, s{sT3}, 248")
    P(f"s_cmp_lt_u32 s{sT3}, 3")
    P("s_cbranch_scc1 L_spare")
    P(f"s_mul_i32 s{sT2}, s{sT2}, 19")
    P(f"s_add_u32 s{sT2}, s{sT2}, s{sT0}")
    P(f"s_sub_u32 s{sT2}, s{sT2}, 12")
    for x in range(77):
        assert (x * 94) >> 10 == x // 11
    P(f"s_mul_i32 s{sNT}, s{sT2}, 94")
    P(f"s_lshr_b32 s{sNT}, s{sNT}, 10")
    P(f"s_mul_i32 s{sT3}, s{sNT}, 11")
    P(f"s_sub_u32 s{sT2}, s{sT2}, s{sT3}")
    P(f"s_mul_i32 s{sMT}, s{sT1}, 5")
    P(f"s_add_u32 s{sMT}, s{sMT}, s{sT2}")
    P(f"s_add_u32 s{sT1}, s{sT1}, 5")
    P(f"s_cmp_ge_u32 s{sT2}, s{sT1}")
    P(f"s_cselect_b32 s{sT3}, 5, 0")
    P(f"s_addc_u32 s{sNT}, s{sNT}, s{sNT}")
    P(f"s_sub_u32 s{sMT}, s{sMT}, s{sT3}")
    outs.append(P)
    pend0, n0 = list(tr.pend), tr.n

    for cls, lab in ((GLU, "L_glu"), (QKV, "L_qkv")):
        Q = Prog()
        Q.nvm = nvm0
        tr.pend, tr.n = list(pend0), n0
        Q(f"{lab}:")
        if cls is QKV:
            ids(Q)
            Q(f"s_lshr_b32 s{sMT}, s{sT0}, 1")
            Q(f"s_mul_i32 s{sT3}, s{sT1}, 6")
            Q(f"s_add_u32 s{sMT}, s{sMT}, s{sT3}")
            Q(f"s_and_b32 s{sNT}, s{sT0}, 1")
            Q(f"s_lshl1_add_u32 s{sNT}, s{sT2}, s{sNT}")
        role = cls(Q, cfg)
        if cfg.kdiag:
            Q("s_waitcnt lgkmcnt(0)")
            tr.pt(Q, 9)
        role.prologue()
        tr.pt(Q, 2)
        phase1_loop(Q, cfg, role, tr)
        n1 = role.epilogue(tr)
        finish(Q, role, n1, tr, lab[2:])
        role.poll.slow(2 if cfg.gather else cfg.enap)
        role.pollr.slow()
        if cfg.near:
            H = Prog()
            H.lines, Q.lines = Q.lines[:Q.cut - 1], Q.lines[Q.cut - 1:]
            outs.insert(1 if lab == "L_glu" else 2, H)
        outs.append(Q)

    Q = Prog()
    Q.nvm = nvm0
    tr.pend, tr.n = list(pend0), n0
    Q("L_spare:")
    st = Stats(Q, 24)
    st.addr(Q)
    Q("s_waitcnt lgkmcnt(0)")
    mk_srd(Q, rX, sX, X_BYTES)
    common_srds(Q)
    Q(f"s_cmp_eq_u32 s2, {RESET_WG}")
    Q("s_cbranch_scc0 L_noreset")
    for k in range(4):
        Q(f"v_mov_b32 v{52 + k}, 0")
    Q("v_lshlrev_b32 v48, 4, v0")
    Q(f"v_add_u32 v48, {EF_OFF}, v48")
    Q("v_lshlrev_b32 v49, 7, v0")
    Q(f"v_add_u32 v49, {FLAG_OFF}, v49")
    Q.vm(f"buffer_store_dwordx4 {vq(52)}, v48, {srd(rST)}, 0 offen sc1", counted=False)
    Q.vm(f"buffer_store_dwordx4 {vq(52)}, v49, {srd(rST)}, 0 offen sc1", counted=False)
    Q("v_lshlrev_b32 v48, 8, v0")
    Q("v_mov_b32 v49, 1")
    Q("s_waitcnt vmcnt(0)")
    Q("s_barrier")
    Q.vm(f"buffer_store_dword v49, v48, {srd(rDBG)}, 0 offen sc1", counted=False)
    Q("L_noreset:")
    mk_srd(Q, rW0, sWQKV, 640 * 3840)
    mk_srd(Q, rW1, sWG, 640 * 3456)
    mk_srd(Q, rWR, sWU, 640 * 3456)
    Q(f"s_bfe_u32 s{sT0}, s2, 0x10002")
    Q(f"s_mul_i32 s{sT0}, s{sT0}, 3")
    Q(f"s_and_b32 s{sT1}, s2, 3")
    Q(f"s_add_u32 s{sT0}, s{sT0}, s{sT1}")
    Q(f"s_lshl_b32 s{sT0}, s{sT0}, 15")
    Q(f"v_lshl_add_u32 v56, v0, 7, s{sT0}")
    segs = {rW0: [cfg.spf * 32 * 3840, 640 * 3840], rW1: [cfg.spf2 * 32 * 3456, 640 * 3456], rWR: [cfg.spf2 * 32 * 3456, 640 * 3456]}
    rounds = []
    while any(a < b for a, b in segs.values()):
        r = rW0 if segs[rW0][0] < segs[rW0][1] else min((rW1, rWR), key=lambda r: segs[r][0])
        rounds.append((r, segs[r][0]))
        segs[r][0] += (6 if len(rounds) <= cfg.nsix else 5) * 256 * 128

    def spf(n):
        for _ in range(min(n, len(rounds))):
            r, o = rounds.pop(0)
            Q(f"v_add_u32 v57, {o}, v56")
            Q.vm(f"buffer_load_dword a255, v57, {srd(r)}, 0 offen")
    spf(1)
    for k in range(10):
        st.load(k)
    spf(2)
    sd = Side(Q)
    st.queue(sd, 0)
    pollr = Poll(Q, 48, 52, "spare", "r")
    pollr.issue(sd, 0)
    sd.drain()
    spf(2)
    pollr.check(sd, 0)
    sd.drain()
    Q("s_barrier")
    early_signal(sd, 0, Q, 48, 49)
    sd.drain()
    spf(cfg.nsix - 5)
    Q(f"s_cmp_eq_u32 s2, {RESET_WG}")
    Q("s_cbranch_scc1 L_gather")
    spf(99)
    Q("s_branch L_gathered")
    Q("L_gather:")
    polle = Poll(Q, 48, 52, "spare", "e")
    polle.issue(sd, 0)
    polle.check(sd, 0)
    sd.drain()
    Q("v_lshlrev_b32 v48, 8, v0")
    Q("v_mov_b32 v49, 1")
    Q.vm(f"buffer_store_dword v49, v48, {srd(rDBG)}, 0 offen offset:128 sc1")
    Q("L_gathered:")
    poll = Poll(Q, 48, 52, "spare", "g")
    poll.issue(sd, 0)
    poll.check(sd, 0)
    sd.drain()
    tr.pt(Q, 33)
    tile2_setup(Q, cfg)
    phase2_setup1(Q, False)
    phase2_setup2(Q)
    hpoll = enter_phase2(Q, cfg, Late(Q, [(0, "R", k) for k in range(14)] + [(0, "W", k) for k in range(25)], cut=cfg.defer), 0, tr, "spare")
    Q("s_barrier")
    Q("s_branch L_p2")
    hpoll.slow(tr, 38, cfg.snap)
    poll.slow(8)
    polle.slow(cfg.gnap)
    pollr.slow()
    outs.append(Q)
    T = Prog()
    T("L_codeend:")
    outs.append(T)
    lines = "\n".join(o.text() for o in outs).split("\n")
    if cfg.warm:
        assert cfg.share and cfg.defer == cfg.deferq and not cfg.fastq
        qh = "L_qkv2:" if cfg.near else "L_qkv:"
        fake = [f"L_chain_{t}{w}:" for t in ("glu", "qkv") for w in range(4)]
        lines, n, slots = align_pass(lines + fake, cfg.align, ("L_spare:",), ("L_glu2:", qh), ("L_fspin_glu:", "L_fspin_qkv:"))
        lines = lines[:-len(fake)]
        p2 = lines.index("L_p2:")
        name = {pos: f"L_pg{k}" for k, (_, pos) in enumerate(slots)}
        shared = [name[pos] for r, pos in slots if r == "L_glu2:" and pos > p2]
        nxt, sub = {x: "L_ret" for x in shared}, {}
        for t, r in (("glu", "L_glu2:"), ("qkv", qh)):
            own = [name[pos] for rr, pos in slots if rr == r and name[pos] not in shared]
            chains = [own[w::4] for w in range(4)]
            tails = shared + (["L_p2"] if t == "qkv" else [])
            assert len(tails) <= 4
            for c, x in zip(sorted(chains, key=len), tails):
                c.append(x)
            for w, c in enumerate(chains):
                sub[f"L_chain_{t}{w}"] = c[0]
                for x, y in zip(c, c[1:] + ["L_ret"]):
                    nxt.setdefault(x, y)
            print(t, "page chains", chains, file=sys.stderr)
        for k, l in enumerate(lines):
            if k in name:
                lines[k] = f"{name[k]}:\n    s_cbranch_execz {nxt[name[k]]}"
            elif l.split()[-1] in sub:
                lines[k] = l.replace(l.split()[-1], sub[l.split()[-1]])
    else:
        lines, n, _ = align_pass(lines, cfg.align, ("L_qkv:", "L_spare:"))
    print("alignment fixes:", n, file=sys.stderr)
    return "\n".join(lines)


HEADER = """; Kernarg layout for this problem (80 bytes, ptrs only, base s[0:1]):
;   offset   8: d_in[1] A_wqkv  shape=(640, 1920) dtype=bfloat16 strides=(3840, 2) contiguous=True
;
"""


def build(cfg):
    name = NAME + "_kernel"
    return HEADER + f"""; @launch grid=(256,1,1) block=(256,1,1) lds=163840
.amdgcn_target "amdgcn-amd-amdhsa--gfx950"
.text
.globl {name}
{'.p2align 12' if cfg.page else ''}
.p2align 8
.type {name},@function
{name}:
{gen(cfg)}
.section .rodata,"a"
.p2align 6
.amdhsa_kernel {name}
  .amdhsa_next_free_vgpr 512
  .amdhsa_next_free_sgpr 102
  .amdhsa_accum_offset 256
  .amdhsa_group_segment_fixed_size 0
  .amdhsa_kernarg_size 80
  .amdhsa_user_sgpr_count 2
  .amdhsa_user_sgpr_kernarg_segment_ptr 1
  .amdhsa_system_sgpr_workgroup_id_x 1
  .amdhsa_float_denorm_mode_32 3
.end_amdhsa_kernel
"""


if __name__ == "__main__":
    cfg = Cfg()
    out = sys.argv[1]
    for a in sys.argv[2:]:
        k, v = a.split("=")
        assert hasattr(cfg, k), k
        setattr(cfg, k, eval(v))
    open(out, "w").write(build(cfg))
```
